```python
import torch

def _softmax(x, axis=-1):
    return torch.softmax(x, dim=axis)
def _gelu(x):
    return torch.nn.functional.gelu(x, approximate="tanh")
def _silu(x):
    return torch.nn.functional.silu(x)
def _sigmoid(x):
    return torch.sigmoid(x)
def _layernorm(x, axis=-1, eps=1e-5):
    m = x.mean(dim=axis, keepdim=True)
    v = x.var(dim=axis, keepdim=True, unbiased=False)
    return (x - m) / torch.sqrt(v + eps)
def _scatter_add(tgt, idx, src, axis=0):
    return tgt.clone().index_add_(axis, idx, src)
def _segment_sum(src, seg, n):
    out = torch.zeros((n,) + src.shape[1:], dtype=src.dtype)
    return out.index_add_(0, seg, src)
def _pad(x, pw):
    flat = tuple(v for pair in reversed(pw) for v in pair)
    return torch.nn.functional.pad(x, flat)

kernel_name = 'recurrent_scan__linear_kernel_hedgehog__dense_activation_silu__prompt'

def setup_inputs():

    _w = (lambda a: (lambda t: t.to(torch.bfloat16) if t.is_floating_point() else t)(torch.as_tensor(a)))
    def _A_setup():
        B, S, D, H = 1, 2048, 1024, 32
        Dh = D // H
        return {
            "x": _w((lambda *s: torch.randn(*s, dtype=torch.bfloat16) * 0.05)(B, S, D)),
            "wqkv": _w((lambda *s: torch.randn(*s, dtype=torch.bfloat16) * 0.4)(D, 3 * D)),
            "w_phi": _w((lambda *s: torch.randn(*s, dtype=torch.bfloat16) * 0.4)(H, Dh, Dh) * (Dh ** -0.5)),
            "wo": _w((lambda *s: torch.randn(*s, dtype=torch.bfloat16) * 0.2)(D, D)),
        }
    _A_in = _A_setup()

    def _B_setup():
        B, S, D, F = 1, 2048, 1024, 3584
        return {
            "x": _w((lambda *s: torch.randn(*s, dtype=torch.bfloat16) * 0.05)(B, S, D)),
            "w1": _w((lambda *s: torch.randn(*s, dtype=torch.bfloat16) * 0.4)(D, F) * (D ** -0.5)),
            "w2": _w((lambda *s: torch.randn(*s, dtype=torch.bfloat16) * 0.1)(F, D) * (F ** -0.5)),
        }
    _B_in = _B_setup()

    return {
        "A_x": _A_in["x"],
        "A_wqkv": _A_in["wqkv"],
        "A_w_phi": _A_in["w_phi"],
        "A_wo": _A_in["wo"],
        "B_x": _B_in["x"],
        "B_w1": _B_in["w1"],
        "B_w2": _B_in["w2"],
    }

def reference(A_x, A_wqkv, A_w_phi, A_wo, B_x, B_w1, B_w2):
    def _A_ref(x, wqkv, w_phi, wo):
        B, S, D = x.shape
        H = 32; Dh = D // H
        qkv = (lambda x, *d: x.permute(*d))((x @ wqkv).reshape(B, S, 3, H, Dh), 2, 0, 3, 1, 4)
        q, k, v = qkv[0], qkv[1], qkv[2]
        pq = torch.einsum("bhsd,hdf->bhsf", q, w_phi)
        pk = torch.einsum("bhsd,hdf->bhsf", k, w_phi)
        phi_q = torch.concatenate([_softmax(pq, axis=-1), _softmax(-pq, axis=-1)], axis=-1)
        phi_k = torch.concatenate([_softmax(pk, axis=-1), _softmax(-pk, axis=-1)], axis=-1)
        kv = torch.einsum("bhsf,bhsd->bhfd", phi_k, v)
        z  = torch.einsum("bhsf->bhf", phi_k)
        num = torch.einsum("bhqf,bhfd->bhqd", phi_q, kv)
        den = torch.einsum("bhqf,bhf->bhq", phi_q, z)[..., None] + 1e-6
        o = num / den
        return (lambda x, *d: x.permute(*d))(o, 0, 2, 1, 3).reshape(B, S, D) @ wo

    def _B_ref(x, w1, w2):
        h = torch.einsum("bsd,df->bsf", x, w1)
        h = _silu(h)
        out = torch.einsum("bsf,fd->bsd", h, w2)
        return out

    x = A_x
    xn = _layernorm(x, axis=-1)
    s = _A_ref(xn, A_wqkv, A_w_phi, A_wo)
    g = _silu(_B_ref(xn, B_w1, B_w2))
    return x + s * g
```

```python
import re

def vr(a, n=1):
    return f"v{a}" if n == 1 else f"v[{a}:{a+n-1}]"
def ar(a, n=1):
    return f"a{a}" if n == 1 else f"a[{a}:{a+n-1}]"
def sr(a, n=1):
    return f"s{a}" if n == 1 else f"s[{a}:{a+n-1}]"

class Asm:
    def __init__(self):
        self.lines = []
    def __call__(self, *ls):
        for l in ls:
            if isinstance(l, (list, tuple)):
                self(*l)
            else:
                for x in l.split("\n"):
                    x = x.strip()
                    if x:
                        self.lines.append(x)
    def label(self, name):
        self.lines.append(name + ":")
    def c(self, text):
        self.lines.append("; " + text)
    def text(self):
        out = []
        for l in self.lines:
            out.append(l if (l.endswith(":") or l.startswith(".") or l.startswith(";")) else "    " + l)
        return "\n".join(out) + "\n"

def weave(main, fill):
    out = list(fill.get(-1, []))
    for i, m in enumerate(main):
        out.append(m)
        out.extend(fill.get(i, []))
    for g in fill:
        assert g < len(main), g
    return out

def spread(items, gaps, fill=None):
    fill = {} if fill is None else fill
    assert len(items) <= len(gaps), (len(items), len(gaps))
    for it, g in zip(items, gaps):
        fill.setdefault(g, [])
        fill[g].extend(it if isinstance(it, list) else [it])
    return fill

_REG = re.compile(r"(?<![\w.])(-?)(?:abs\()?([vas])(\d+|\[(\d+):(\d+)\])")
def _regs(op):
    out = set()
    for m in _REG.finditer(op):
        k = m.group(2)
        if m.group(4) is not None:
            out |= {(k, i) for i in range(int(m.group(4)), int(m.group(5)) + 1)}
        else:
            out.add((k, int(m.group(3))))
    if re.search(r"\bvcc\b", op): out |= {("s", 106), ("s", 107)}
    if re.search(r"\bm0\b", op): out.add(("s", 124))
    if re.search(r"\bexec\b", op): out |= {("s", 126), ("s", 127)}
    return out

TRANS = ("v_exp_f32", "v_log_f32", "v_rcp_f32", "v_rsq_f32", "v_sqrt_f32")
def classify(line):
    t = line.split(";")[0].strip()
    if not t or t.endswith(":") or t.startswith("."):
        return None
    parts = t.split(None, 1)
    op = parts[0]
    ops = [x.strip() for x in parts[1].split(",")] if len(parts) > 1 else []
    d = dict(op=op, text=t, w=set(), r=set(), kind="other", passes=0, states=1)
    base = op.replace("_e32", "").replace("_e64", "").replace("_dpp", "")
    if op == "s_nop":
        d["states"] = int(ops[0], 0) + 1
    elif op.startswith("v_mfma"):
        d["kind"] = "mfma"; d["passes"] = 8 if "32x32" in op else 4
        d["w"] = _regs(ops[0]); d["ra"] = _regs(ops[1]) | _regs(ops[2]); d["rc"] = _regs(ops[3]); d["r"] = d["ra"] | d["rc"]
    elif op.startswith("v_permlane"):
        d["kind"] = "valu"; d["perm"] = True
        d["w"] = _regs(ops[0]) | _regs(ops[1]); d["r"] = set(d["w"])
    elif op.startswith("v_readfirstlane") or op.startswith("v_readlane"):
        d["kind"] = "valu"; d["rl"] = True
        d["w"] = _regs(ops[0]); d["r"] = set().union(*[_regs(o) for o in ops[1:]])
    elif op.startswith("v_cmp"):
        d["kind"] = "valu"; d["w"] = _regs(ops[0]); d["r"] = set().union(*[_regs(o) for o in ops[1:]])
    elif op.startswith("v_"):
        d["kind"] = "valu"; d["w"] = _regs(ops[0]); d["r"] = set().union(*[_regs(o) for o in ops[1:]]) if len(ops) > 1 else set()
        if base in ("v_fmac_f32", "v_dot2c_f32_bf16"): d["r"] |= d["w"]
        if "_co_" in op: d["w"] |= _regs(ops[1])
        if base in TRANS: d["trans"] = True
        if "_dpp" in op or "row_" in t or "quad_perm" in t: d["dpp"] = True
    elif op.startswith("ds_read"):
        d["kind"] = "ds"; d["w"] = _regs(ops[0]); d["r"] = _regs(ops[1])
    elif op.startswith("ds_write"):
        d["kind"] = "ds"; d["r"] = set().union(*[_regs(o) for o in ops])
    elif op.startswith("buffer_load") or op.startswith("global_load"):
        d["kind"] = "vmem"
        if re.search(r"\blds\b", t):
            d["r"] = set().union(*[_regs(o) for o in ops]) | {("s", 124)}; d["dma"] = True
        else:
            d["w"] = _regs(ops[0]); d["r"] = set().union(*[_regs(o) for o in ops[1:]])
    elif op.startswith("buffer_store") or op.startswith("global_store") or "atomic" in op:
        d["kind"] = "vmem"; d["r"] = set().union(*[_regs(o) for o in ops])
        if "x4" in op or "x3" in op:
            d["wide"] = _regs(ops[0] if op.startswith("buffer") else ops[1])
    elif op.startswith("s_"):
        d["kind"] = "salu"
        if op.startswith(("s_cmp", "s_bitcmp", "s_cbranch", "s_branch", "s_waitcnt", "s_barrier", "s_sleep", "s_setprio", "s_endpgm")):
            d["r"] = set().union(*[_regs(o) for o in ops]) if ops else set()
        else:
            d["w"] = _regs(ops[0]); d["r"] = set().union(*[_regs(o) for o in ops[1:]]) if len(ops) > 1 else set()
    return d

def need(p, c):
    n = 0
    vw = {x for x in p["w"] if x[0] in "va"}
    sw = {x for x in p["w"] if x[0] == "s"}
    if p["kind"] == "valu":
        if c["kind"] == "mfma" and vw & c["r"]: n = max(n, 2)
        if c.get("perm") and vw & c["r"]: n = max(n, 2)
        if c.get("dpp") and vw & c["r"]: n = max(n, 2)
        if c.get("rl") and vw & c["r"]: n = max(n, 1)
        if p.get("trans") and c["kind"] in ("valu",) and not c.get("trans") and vw & c["r"]: n = max(n, 1)
        if p.get("trans") and c["kind"] in ("ds", "vmem", "mfma") and vw & c["r"]: n = max(n, 2)
        if sw and c["kind"] == "vmem" and sw & c["r"]: n = max(n, 5)
        if sw and c["kind"] == "valu" and sw & c["r"]: n = max(n, 4 if c.get("rl") else 2)
        if sw and c["kind"] == "salu" and sw & c["r"]: n = max(n, 1)
    if p["kind"] == "salu" and ("s", 124) in sw and c.get("dma"): n = max(n, 1)
    if p["kind"] == "mfma":
        P = p["passes"]
        full = {4: 8, 8: 12}[P]; part = {4: 6, 8: 10}[P]; war = {4: 3, 8: 7}[P]
        if c["kind"] == "mfma":
            if vw & c["ra"]: n = max(n, full)
            if vw & c["rc"]:
                if not (c["rc"] == vw and c["passes"] == P): n = max(n, part)
            elif vw & c["w"]: n = max(n, part)
        elif c["kind"] in ("valu", "ds", "vmem"):
            if vw & (c["r"] | c["w"]): n = max(n, full)
        if c["kind"] == "valu" and p["rc"] & c["w"]: n = max(n, war)
    if p.get("wide") and c["kind"] == "valu" and p["wide"] & c["w"]: n = max(n, 2)
    if p.get("wide") and c["kind"] in ("ds", "vmem", "mfma") and p["wide"] & c["w"]: n = max(n, 1)
    return n

def check_hazards(lines, window=24):
    ins = [(i, classify(l)) for i, l in enumerate(lines)]
    ins = [(i, d) for i, d in ins if d]
    probs = []
    for k, (i, c) in enumerate(ins):
        dist = 0
        for j in range(k - 1, max(-1, k - window), -1):
            p = ins[j][1]
            if p["op"] in ("s_endpgm", "s_branch"): break
            n = need(p, c)
            if n > dist:
                probs.append(f"line {i}: '{c['text']}' needs {n} states after '{p['text']}' (has {dist})")
            dist += p["states"]
            if dist > 20: break
    return probs
```

```python
import sys, os
sys.path.insert(0, os.path.dirname(os.path.abspath(__file__)))
from asmlib import *

NAME = "recurrent_scan__linear_kernel_hedgehog__dense_activation_silu__prompt"
WS_XN = 0
WS_HO = 0x400000
HO_STEPS = 144
HO_TB = HO_STEPS * 1024
HO_SIZE = 128 * HO_TB
WS_KV = 0x1600000
KV_SIZE = 32 * 2 * 8 * 4096
WS_Z = 0x1800000
Z_SIZE = 32 * 2 * 8 * 128
WS_STAMP = 0x2000000
LOG2E = 0x3fb8aa3b
NLOG2E = 0xbfb8aa3b

OPT = dict(stamp=0)

def srd(a, s, base, off, size):
    if off == 0:
        a(f"s_mov_b32 s{s}, s{base}", f"s_mov_b32 s{s+1}, s{base+1}")
    elif isinstance(off, int) and off < 0:
        a(f"s_sub_u32 s{s}, s{base}, {-off}", f"s_subb_u32 s{s+1}, s{base+1}, 0")
    else:
        o = off if isinstance(off, str) else hex(off)
        a(f"s_add_u32 s{s}, s{base}, {o}", f"s_addc_u32 s{s+1}, s{base+1}, 0")
    a(f"s_mov_b32 s{s+2}, {hex(size)}", f"s_mov_b32 s{s+3}, 0x20000")

def kernel_desc(name, vgpr, accum, sgpr=96):
    return f""".amdhsa_kernel {name}
  .amdhsa_next_free_vgpr {vgpr}
  .amdhsa_next_free_sgpr {sgpr}
  .amdhsa_accum_offset {accum}
  .amdhsa_group_segment_fixed_size 0
  .amdhsa_kernarg_size 80
  .amdhsa_user_sgpr_count 2
  .amdhsa_user_sgpr_kernarg_segment_ptr 1
  .amdhsa_system_sgpr_workgroup_id_x 1
  .amdhsa_float_denorm_mode_32 3
.end_amdhsa_kernel
"""

def stamp(a, idx, kern):
    if not OPT["stamp"]:
        return
    a("s_memrealtime s[90:91]", "s_waitcnt lgkmcnt(0)", "v_mov_b32 v254, s90",
      f"buffer_store_dword v254, v253, s[84:87], 0 offen offset:{idx*4}")

def stamp_setup(a, kern, wsreg, wave_s):
    if not OPT["stamp"]:
        return
    srd(a, 84, wsreg, WS_STAMP + kern * 0x40000, 0x40000)
    a("s_lshl_b32 s90, s2, 2", f"s_add_u32 s90, s90, s{wave_s}", "s_lshl_b32 s90, s90, 6", "v_mov_b32 v253, s90")

def k0():
    a = Asm()
    a.label("ln_kernel")
    a("s_cmp_ge_u32 s2, 256", "s_cbranch_scc1 L0_end")
    a("s_load_dwordx2 s[4:5], s[0:1], 0", "s_load_dwordx2 s[6:7], s[0:1], 72")
    a("v_lshrrev_b32 v1, 6, v0", "v_and_b32 v2, 63, v0")
    a("s_lshl_b32 s3, s2, 14")
    a("v_lshlrev_b32 v1, 12, v1", "v_lshl_add_u32 v1, v2, 4, v1", "v_add_u32 v1, s3, v1")
    a("s_waitcnt lgkmcnt(0)")
    srd(a, 8, 4, 0, 2048 * 2048)
    srd(a, 12, 6, WS_XN, 2048 * 2048)
    for r in range(2):
        for h in range(2):
            a(f"buffer_load_dwordx4 {vr(4+8*r+4*h,4)}, v1, s[8:11], 0 offen offset:{r*2048+h*1024}")
    a("s_mov_b32 s16, 0xffff0000", "s_mov_b32 s17, 0x3a800000", "s_mov_b32 s18, 0x3727c5ac")
    F = [32, 48]
    S = [20, 21]; T = [22, 23]
    def allsum():
        for pat in ("quad_perm:[1,0,3,2]", "quad_perm:[2,3,0,1]", "row_half_mirror", "row_mirror"):
            a("s_nop 1")
            for r in range(2):
                a(f"v_add_f32_dpp v{S[r]}, v{S[r]}, v{S[r]} {pat} row_mask:0xf bank_mask:0xf")
        for pl in ("v_permlane16_swap_b32", "v_permlane32_swap_b32"):
            for r in range(2):
                a(f"v_mov_b32 v{T[r]}, v{S[r]}")
            a("s_nop 1")
            for r in range(2):
                a(f"{pl} v{S[r]}, v{T[r]}")
            for r in range(2):
                a(f"v_add_f32 v{S[r]}, v{S[r]}, v{T[r]}")
    def rnd(reg):
        a(f"v_cvt_pk_bf16_f32 v{reg}, v{reg}, v{reg}", f"v_and_b32 v{reg}, s16, v{reg}")
    for r in range(2):
        a(f"s_waitcnt vmcnt({2-2*r})")
        for i in range(8):
            a(f"v_lshlrev_b32 v{F[r]+2*i}, 16, v{4+8*r+i}", f"v_and_b32 v{F[r]+2*i+1}, s16, v{4+8*r+i}")
        a(f"v_add_f32 v{S[r]}, v{F[r]}, v{F[r]+1}")
        for i in range(2, 16):
            a(f"v_add_f32 v{S[r]}, v{S[r]}, v{F[r]+i}")
    allsum()
    M = [24, 25]
    for r in range(2):
        a(f"v_mul_f32 v{M[r]}, s17, v{S[r]}")
    for r in range(2):
        a(f"v_sub_f32 v26, v{F[r]}, v{M[r]}", f"v_mul_f32 v{S[r]}, v26, v26")
        for i in range(1, 16):
            a(f"v_sub_f32 v26, v{F[r]+i}, v{M[r]}", f"v_fmac_f32 v{S[r]}, v26, v26")
    allsum()
    for r in range(2):
        a(f"v_mul_f32 v{S[r]}, s17, v{S[r]}")
        rnd(S[r])
        a(f"v_add_f32 v{S[r]}, s18, v{S[r]}")
        rnd(S[r])
        a(f"v_sqrt_f32 v{S[r]}, v{S[r]}", "s_nop 0")
        rnd(S[r])
        a(f"v_rcp_f32 v{S[r]}, v{S[r]}")
        rnd(M[r])
    for r in range(2):
        for i in range(8):
            x0, x1 = F[r]+2*i, F[r]+2*i+1
            a(f"v_sub_f32 v{x0}, v{x0}, v{M[r]}", f"v_sub_f32 v{x1}, v{x1}, v{M[r]}",
              f"v_cvt_pk_bf16_f32 v26, v{x0}, v{x1}",
              f"v_lshlrev_b32 v{x0}, 16, v26", f"v_and_b32 v{x1}, s16, v26",
              f"v_mul_f32 v{x0}, v{x0}, v{S[r]}", f"v_mul_f32 v{x1}, v{x1}, v{S[r]}",
              f"v_cvt_pk_bf16_f32 v{4+8*r+i}, v{x0}, v{x1}")
        for h in range(2):
            a(f"buffer_store_dwordx4 {vr(4+8*r+4*h,4)}, v1, s[12:15], 0 offen offset:{r*2048+h*1024}")
    a.label("L0_end")
    a("s_endpgm")
    return a

G1_SLOT = 36864
G2 = 3 * G1_SLOT
G2_SLOT = 12288
LDS_WPHI = G2 + 4 * G2_SLOT
K1_LDS = 163840
vAoff, vBoff, vBh, vXa, vWa, vWh = 224, 232, 235, 236, 238, 240
vT = 241
vL = 255
sA, sB, sHO, sKV, sZ = 8, 12, 16, 20, 24
sW, sTH, sNH = 28, 29, 30
sSoffA, sSoffB, sSoffH, sRd, sWr, sDelta, sM0A, sM0B, sCnt, sMT, sIDX = 31, 32, 33, 34, 35, 36, 37, 38, 39, 40, 41
sT0 = 42
sP = 50
SETREG = 60

def k1_mainloop(a, ffn):
    tag = "F" if ffn else "Q"
    RS = 7168 if ffn else 6144
    ngs = 7 if ffn else 6
    def acc(ng, tb):
        if ffn:
            return (tb * 7 + ng) * 4
        return (ng >> 1) * 64 + tb * 8 + (ng & 1) * 4
    def mfmas(s):
        base = (s & 1) * SETREG
        out = []
        for ng in range(ngs):
            for tb in range(8):
                X = ar(base + tb * 4, 4); W = ar(base + 32 + ng * 4, 4); D = vr(acc(ng, tb), 4)
                if (not ffn) and ng >= 4:
                    out.append(f"v_mfma_f32_16x16x32_bf16 {D}, {X}, {W}, {D}")
                else:
                    out.append(f"v_mfma_f32_16x16x32_bf16 {D}, {W}, {X}, {D}")
        return out
    def reads(u):
        base = (u & 1) * SETREG
        j = u & 1; slot = u & 3
        xs = [f"ds_read_b128 {ar(base+tb*4,4)}, v{vXa+j} offset:{tb*2048}" for tb in range(8)]
        ws = []
        for ng in range(ngs):
            for jj in range(2):
                dst = ar(base + 32 + ng * 4 + jj * 2, 2)
                if ng < 6:
                    ws.append(f"ds_read_b64_tr_b16 {dst}, v{vWa+(ng&1)} offset:{slot*G2_SLOT+(ng>>1)*1024+jj*512}")
                else:
                    ws.append(f"ds_read_b64_tr_b16 {dst}, v{vWh} offset:{j*2048+jj*256}")
        return ws[:2] + xs + ws[2:]
    def dma_B(u):
        out = [[f"s_add_u32 m0, s{sM0B}, {(u&3)*G2_SLOT}"]]
        for b in range(3):
            out.append([f"buffer_load_dwordx4 v{vBoff+b}, s[{sB}:{sB+3}], s{sSoffB} offen offset:{b*1024} lds"])
        out[-1].append(f"s_add_u32 s{sSoffB}, s{sSoffB}, {32*RS}")
        return out
    def dma_A(half):
        out = [[f"s_add_u32 m0, s{sM0A}, {half*4096}"]]
        for i in range(4):
            out.append([f"buffer_load_dwordx4 v{vAoff+half*4+i}, s[{sA}:{sA+3}], s{sSoffA} offen offset:{i*1024} lds"])
        if half and ffn:
            out.append([f"s_add_u32 m0, s{sWr}, s{sT0}"])
            out.append([f"buffer_load_dwordx4 v{vBh}, s[{sB}:{sB+3}], s{sSoffH} offen lds",
                        f"s_add_u32 s{sSoffH}, s{sSoffH}, {64*RS}"])
        if half:
            out.append([f"s_add_u32 s{sWr}, s{sWr}, {G1_SLOT}", f"s_cmp_eq_u32 s{sWr}, {G2}"])
            out.append([f"s_cselect_b32 s{sWr}, 0, s{sWr}", f"s_add_u32 s{sSoffA}, s{sSoffA}, 128"])
            out.append([f"s_add_u32 s{sM0A}, s{sWr}, s{sT0+1}"])
        return out
    def window(u):
        return dma_B(u + 3) + dma_A(u & 1)
    def rd_advance():
        o = [[f"s_add_u32 s{sRd}, s{sRd}, {G1_SLOT}", f"s_cmp_eq_u32 s{sRd}, {G2}"],
             [f"s_cselect_b32 s{sDelta}, s{sT0+2}, s{sT0+3}", f"s_cselect_b32 s{sRd}, 0, s{sRd}"],
             [f"v_add_u32 v{vXa}, s{sDelta}, v{vXa}"], [f"v_add_u32 v{vXa+1}, s{sDelta}, v{vXa+1}"]]
        if ffn:
            o.append([f"v_add_u32 v{vWh}, s{sDelta}, v{vWh}"])
        return o
    n_even, n_odd = (15, 19) if ffn else (14, 18)
    nm = ngs * 8
    def step(s, last=False, dma=True, nvm=None, extra=None):
        u = s + 1
        m = mfmas(s)
        fill = {}
        if last:
            fill[-1] = ["s_waitcnt lgkmcnt(0)"]
            return weave(m, fill)
        n = nvm if nvm is not None else (n_even if u % 2 == 0 else n_odd)
        fill[-1] = [f"s_waitcnt vmcnt({n}) lgkmcnt(0)", "s_barrier"]
        r = reads(u)
        spread(r, list(range(len(r))), fill)
        rest = []
        if dma:
            rest += window(u)
        if u % 2 == 1:
            rest += rd_advance()
        if extra:
            rest += extra
        g0 = len(r)
        gaps = []
        k = len(rest)
        room = nm - g0
        assert k <= room, (k, room)
        for i in range(k):
            gaps.append(g0 + (i * room) // k)
        spread(rest, gaps, fill)
        return weave(m, fill)

    a(f"s_lshl_b32 s{sT0}, s{sW}, 10", f"s_add_u32 s{sT0}, s{sT0}, 32768",
      f"s_lshl_b32 s{sT0+1}, s{sW}, 13", f"s_mov_b32 s{sT0+2}, {hex((-2*G1_SLOT) & 0xffffffff)}", f"s_mov_b32 s{sT0+3}, {G1_SLOT}",
      f"s_mul_i32 s{sM0B}, s{sW}, 3072", f"s_add_u32 s{sM0B}, s{sM0B}, {G2}",
      f"s_mov_b32 s{sSoffA}, 0", f"s_mov_b32 s{sSoffB}, 0", f"s_mov_b32 s{sSoffH}, 0",
      f"s_mov_b32 s{sRd}, 0", f"s_mov_b32 s{sWr}, 0", f"s_mov_b32 s{sM0A}, s{sT0+1}")
    def flat(x):
        o = []
        for it in x:
            o.extend(it)
            if it[0].startswith("s_add_u32 m0"):
                o.append("s_nop 0")
        return o
    a(flat(dma_A(0)))
    for u in (-3, -2, -1):
        a(flat(window(u)))
    a.c("zero accumulators while the first tiles are in flight")
    for i in range(nm * 4):
        a(f"v_mov_b32 v{i}, 0")
    stamp(a, 1, 1)
    a(f"s_waitcnt vmcnt({n_even + (1 if OPT['stamp'] else 0)})", "s_barrier")
    stamp(a, 2, 1)
    a(reads(0))
    if not ffn:
        for s in range(2):
            for jj in range(2):
                a(f"ds_read_b64_tr_b16 {ar(120+s*4+jj*2,2)}, v{vT} offset:{s*1024+jj*256}")
    a(flat(window(0)))
    a(f"s_mov_b32 s{sCnt}, 0")
    a(".p2align 6")
    a.label(f"L1{tag}_loop")
    for s in range(4):
        extra = None
        if s == 2:
            extra = [[f"s_cmp_eq_u32 s{sCnt}, 6", f"s_cselect_b32 s{sA+2}, 0, s{sA+2}"]]
        if s == 3:
            extra = [[f"s_add_u32 s{sCnt}, s{sCnt}, 1"]]
        body = step(s, extra=extra)
        if s == 3:
            body += [f"s_cmp_lg_u32 s{sCnt}, 7", f"s_cbranch_scc1 L1{tag}_loop"]
        a(body)
    a(step(28, dma=False))
    a(step(29, dma=False, nvm=7))
    a(step(30, dma=False, nvm=0))
    a(step(31, last=True))
    return acc

def silu_block(a, regs, tmp, dst):
    n = len(regs)
    for i in range(0, n, 2):
        a(f"v_pk_mul_f32 {vr(tmp+i,2)}, {vr(regs[i],2)}, s[{sT0+4}:{sT0+5}]")
    for i in range(n):
        a(f"v_exp_f32 v{tmp+i}, v{tmp+i}")
    for i in range(0, n, 2):
        a(f"v_pk_add_f32 {vr(tmp+i,2)}, {vr(tmp+i,2)}, 1.0 op_sel_hi:[1,0]")
    for i in range(n):
        a(f"v_rcp_f32 v{tmp+i}, v{tmp+i}")
    for i in range(0, n, 2):
        a(f"v_pk_mul_f32 {vr(tmp+i,2)}, {vr(tmp+i,2)}, {vr(regs[i],2)}")
    for i in range(0, n, 2):
        a(f"v_cvt_pk_bf16_f32 v{dst[i//2]}, v{tmp+i}, v{tmp+i+1}")

def k1_ffn(a):
    a.label("L1_ffn")
    srd(a, sB, sP + 10, -4096, 1024 * 7168 + 4096)
    a(f"s_mul_i32 s{sT0+4}, s{sIDX}, 448", f"s_and_b32 s{sT0+5}, s{sIDX}, 1",
      f"s_lshl_b32 s{sT0+6}, s{sT0+5}, 6", f"s_add_u32 s{sT0+6}, s{sT0+6}, s{sT0+4}",
      f"s_mul_i32 s{sT0+5}, s{sT0+5}, 384", f"s_sub_u32 s{sT0+7}, s{sT0+4}, s{sT0+5}", f"s_add_u32 s{sT0+7}, s{sT0+7}, 384")
    k1_b_offsets(a, 7168, 128, sT0 + 6)
    a(f"v_lshrrev_b32 v{vT}, 2, v{vL}", f"s_lshl_b32 s3, s{sW}, 4", f"v_add_u32 v{vT}, s3, v{vT}",
      f"s_movk_i32 s3, 7168", f"v_mul_lo_u32 v{vBh}, v{vT}, s3",
      f"v_lshrrev_b32 v{vT}, 5, v{vL}", f"v_lshlrev_b32 v{vT}, 1, v{vT}", f"v_and_b32 v{vT+1}, 3, v{vL}", f"v_xor_b32 v{vT}, v{vT}, v{vT+1}",
      f"v_lshl_add_u32 v{vBh}, v{vT}, 4, v{vBh}", f"s_add_u32 s3, s{sT0+7}, 4096", f"v_add_u32 v{vBh}, s3, v{vBh}")
    a(f"v_lshrrev_b32 v{vT}, 4, v{vL}", f"v_lshlrev_b32 v{vWh}, 9, v{vT}",
      f"v_and_b32 v{vT}, 1, v{vT}", f"v_xor_b32 v{vT}, s{sNH}, v{vT}", f"v_lshl_add_u32 v{vWh}, v{vT}, 5, v{vWh}",
      f"v_bfe_u32 v{vT}, v{vL}, 2, 2", f"v_lshl_add_u32 v{vWh}, v{vT}, 6, v{vWh}",
      f"v_and_b32 v{vT}, 3, v{vL}", f"v_lshl_add_u32 v{vWh}, v{vT}, 3, v{vWh}", f"v_add_u32 v{vWh}, 0x8000, v{vWh}")
    a(f"s_lshr_b32 s70, s{sT0+6}, 6", f"s_add_u32 s70, s70, s{sNH}", "s_lshl_b32 s70, s70, 10",
      f"s_lshr_b32 s71, s{sT0+7}, 6", "s_lshl_b32 s71, s71, 10")
    acc = k1_mainloop(a, True)
    stamp(a, 3, 1)
    a.c("---- FFN epilogue: h = silu(acc) -> fragment-major bf16")
    a(f"s_mov_b32 s{sT0+4}, {hex(NLOG2E)}", f"s_mov_b32 s{sT0+5}, {hex(NLOG2E)}")
    a(f"s_lshl_b32 s3, s{sMT}, 4", f"s_lshl_b32 s72, s{sTH}, 3", "s_add_u32 s3, s3, s72", f"s_mul_i32 s3, s3, {HO_TB}",
      "s_add_u32 s70, s70, s3", "s_add_u32 s71, s71, s3")
    a(f"v_lshlrev_b32 v240, 4, v{vL}", f"s_lshl_b32 s3, s{sNH}, 3", "v_add_u32 v241, s3, v240")
    a("s_nop 3")
    tmp = 224
    for tb in range(8):
        base = tb * 28
        for b in range(3):
            regs = list(range(base + b * 8, base + b * 8 + 8))
            t = tmp + (b & 1) * 8
            silu_block(a, regs, t, [base + b * 8 + i for i in range(4)])
            if b == 2:
                a(f"s_add_u32 s72, s70, 4096")
            so, imm = ("s70", b * 2048) if b < 2 else ("s72", 0)
            a(f"buffer_store_dwordx4 {vr(base+b*8,4)}, v240, s[{sHO}:{sHO+3}], {so} offen offset:{imm}")
        regs = list(range(base + 24, base + 28))
        silu_block(a, regs, tmp + 8, [base + 24, base + 25])
        a(f"buffer_store_dwordx2 {vr(base+24,2)}, v241, s[{sHO}:{sHO+3}], s71 offen")
        if tb < 7:
            a(f"s_add_u32 s70, s70, {HO_TB}", f"s_add_u32 s71, s71, {HO_TB}")
    stamp(a, 4, 1)
    if OPT["stamp"]:
        a("s_waitcnt vmcnt(0)")
        stamp(a, 5, 1)
    a("s_endpgm")

def k1_b_offsets(a, RS, blockstride, scol):
    a(f"v_lshrrev_b32 v{vT}, 3, v{vL}", f"s_lshl_b32 s3, s{sW}, 3", f"v_add_u32 v{vT}, s3, v{vT}",
      f"s_movk_i32 s3, {RS}", f"v_mul_lo_u32 v{vBoff}, v{vT}, s3",
      f"v_bfe_u32 v{vT}, v{vL}, 4, 1", f"v_lshlrev_b32 v{vT}, 2, v{vT}", f"s_lshl_b32 s3, s{sNH}, 1", f"v_or_b32 v{vT}, s3, v{vT}",
      f"v_and_b32 v{vT+1}, 7, v{vL}", f"v_xor_b32 v{vT}, v{vT}, v{vT+1}",
      f"v_lshl_add_u32 v{vBoff}, v{vT}, 4, v{vBoff}", f"s_add_u32 s3, s{scol}, 4096", f"v_add_u32 v{vBoff}, s3, v{vBoff}")
    for b in (1, 2):
        d = b * blockstride - b * 1024
        a(f"v_add_u32 v{vBoff+b}, {hex(d & 0xffffffff)}, v{vBoff}")

def softmax_pair(a, P, E, tmp, dstp, dstm):
    t0, t1, t2, t3 = tmp, tmp + 1, tmp + 2, tmp + 3
    a(f"v_max3_f32 v{t0}, v{P}, v{P+1}, v{P+2}", f"v_max3_f32 v{t1}, -v{P}, -v{P+1}, -v{P+2}")
    for i in range(3, 15, 2):
        a(f"v_max3_f32 v{t0}, v{t0}, v{P+i}, v{P+i+1}", f"v_max3_f32 v{t1}, v{t1}, -v{P+i}, -v{P+i+1}")
    a(f"v_max_f32 v{t0}, v{t0}, v{P+15}", f"v_max_f32_e64 v{t1}, v{t1}, -v{P+15}", "s_nop 1",
      f"v_permlane32_swap_b32 v{t0}, v{t1}", f"v_max_f32 v{t0}, v{t0}, v{t1}",
      f"v_mul_f32 v{t0}, s{sT0+4}, v{t0}", f"v_mov_b32 v{t2}, v{t0}", "s_nop 1",
      f"v_permlane32_swap_b32 v{t0}, v{t2}")
    for i in range(0, 16, 2):
        a(f"v_pk_fma_f32 {vr(E+i,2)}, {vr(P+i,2)}, s[{sT0+4}:{sT0+5}], {vr(t0,2)} op_sel_hi:[1,1,0] neg_lo:[0,0,1] neg_hi:[0,0,1]")
    for i in range(0, 16, 2):
        a(f"v_pk_fma_f32 {vr(P+i,2)}, {vr(P+i,2)}, s[{sT0+4}:{sT0+5}], {vr(t2,2)} op_sel_hi:[1,1,0] neg_lo:[1,0,1] neg_hi:[1,0,1]")
    for i in range(16):
        a(f"v_exp_f32 v{E+i}, v{E+i}")
    for i in range(16):
        a(f"v_exp_f32 v{P+i}, v{P+i}")
    a(f"v_pk_add_f32 {vr(t0,2)}, {vr(E,2)}, {vr(E+2,2)}", f"v_pk_add_f32 {vr(t2,2)}, {vr(P,2)}, {vr(P+2,2)}")
    for i in range(4, 16, 2):
        a(f"v_pk_add_f32 {vr(t0,2)}, {vr(t0,2)}, {vr(E+i,2)}", f"v_pk_add_f32 {vr(t2,2)}, {vr(t2,2)}, {vr(P+i,2)}")
    a(f"v_add_f32 v{t0}, v{t0}, v{t1}", f"v_add_f32 v{t2}, v{t2}, v{t3}", "s_nop 1",
      f"v_permlane32_swap_b32 v{t0}, v{t2}", f"v_add_f32 v{t0}, v{t0}, v{t2}", f"v_rcp_f32 v{t0}, v{t0}", "s_nop 0",
      f"v_mov_b32 v{t2}, v{t0}", "s_nop 1", f"v_permlane32_swap_b32 v{t0}, v{t2}")
    for i in range(0, 16, 2):
        a(f"v_pk_mul_f32 {vr(P+i,2)}, {vr(P+i,2)}, {vr(t2,2)} op_sel_hi:[1,0]")
    for i in range(0, 16, 2):
        a(f"v_pk_mul_f32 {vr(E+i,2)}, {vr(E+i,2)}, {vr(t0,2)} op_sel_hi:[1,0]")
    for i in range(7, -1, -1):
        a(f"v_cvt_pk_bf16_f32 v{dstm+i}, v{P+2*i}, v{P+2*i+1}")
    for i in range(8):
        a(f"v_cvt_pk_bf16_f32 v{dstp+i}, v{E+2*i}, v{E+2*i+1}")

def k1_qkv(a):
    a.label("L1_qkv")
    srd(a, sB, sP + 2, -4096, 1024 * 6144 + 4096)
    a(f"s_lshl_b32 s{sT0+6}, s{sIDX}, 7")
    k1_b_offsets(a, 6144, 2048, sT0 + 6)
    srd(a, sKV, sP + 4, 0, 65536)
    a(f"s_lshl_b32 s3, s{sIDX}, 12", f"s_lshl_b32 s72, s{sW}, 10", "s_add_u32 s3, s3, s72",
      f"s_add_u32 m0, s72, {LDS_WPHI}", f"v_lshlrev_b32 v{vT}, 4, v{vL}",
      f"buffer_load_dwordx4 v{vT}, s[{sKV}:{sKV+3}], s3 offen lds")
    srd(a, sKV, sP + 18, WS_KV, KV_SIZE)
    srd(a, sZ, sP + 18, WS_Z, Z_SIZE)
    a(f"v_lshrrev_b32 v{vT+1}, 5, v{vL}", f"v_lshlrev_b32 v{vT}, 9, v{vT+1}",
      f"v_bfe_u32 v{vT+1}, v{vL}, 2, 2", f"v_lshl_add_u32 v{vT}, v{vT+1}, 6, v{vT}",
      f"v_bfe_u32 v{vT+1}, v{vL}, 4, 1", f"v_lshl_add_u32 v{vT}, v{vT+1}, 5, v{vT}",
      f"v_and_b32 v{vT+1}, 3, v{vL}", f"v_lshl_add_u32 v{vT}, v{vT+1}, 3, v{vT}",
      f"s_lshl_b32 s3, s{sNH}, 11", f"s_add_u32 s3, s3, {LDS_WPHI}", f"v_add_u32 v{vT}, s3, v{vT}")
    acc = k1_mainloop(a, False)
    stamp(a, 3, 1)
    a.c("---- QKV epilogue")
    Q, K, V = 0, 64, 128
    T = 192
    a(f"s_mov_b32 s{sT0+4}, {hex(LOG2E)}", f"s_mov_b32 s{sT0+5}, {hex(LOG2E)}")
    vPW, vPR, vLin, vONE, vZo, tmp = 224, 228, 230, 232, 231, 236
    a(f"v_and_b32 v{tmp}, 31, v{vL}", f"v_lshrrev_b32 v{tmp+1}, 5, v{vL}",
      f"v_bfe_u32 v{tmp+2}, v{vL}, 1, 1", f"v_lshlrev_b32 v{tmp+2}, 2, v{tmp+2}",
      f"v_bfe_u32 v{tmp+3}, v{vL}, 2, 1", f"v_lshl_or_b32 v{tmp+2}, v{tmp+3}, 1, v{tmp+2}",
      f"v_and_b32 v{tmp+3}, 1, v{vL}", f"v_or_b32 v{tmp+2}, v{tmp+3}, v{tmp+2}",
      f"v_xor_b32 v{tmp+2}, v{tmp+2}, v{tmp+1}", f"v_lshlrev_b32 v{tmp+2}, 4, v{tmp+2}",
      f"v_lshl_add_u32 v{vPW}, v{tmp}, 7, v{tmp+2}", f"s_lshl_b32 s3, s{sW}, 14", f"v_add_u32 v{vPW}, s3, v{vPW}")
    for i in range(1, 4):
        a(f"v_xor_b32 v{vPW+i}, {i*32}, v{vPW}")
    a(f"v_bfe_u32 v{tmp}, v{vL}, 2, 2",
      f"v_lshlrev_b32 v{vPR}, 10, v{tmp+1}", f"v_lshl_add_u32 v{vPR}, v{tmp}, 7, v{vPR}",
      f"v_lshrrev_b32 v{tmp+2}, 1, v{tmp}", f"v_lshlrev_b32 v{tmp+2}, 2, v{tmp+2}", f"v_and_b32 v{tmp+3}, 1, v{tmp}", f"v_or_b32 v{tmp+2}, v{tmp+2}, v{tmp+3}",
      f"v_bfe_u32 v{tmp+3}, v{vL}, 4, 1", f"v_lshlrev_b32 v{tmp+3}, 1, v{tmp+3}", f"v_xor_b32 v{tmp+2}, v{tmp+2}, v{tmp+3}",
      f"v_and_b32 v{tmp+3}, 1, v{vL}", f"v_xor_b32 v{tmp+2}, v{tmp+2}, v{tmp+3}",
      f"v_lshl_add_u32 v{vPR}, v{tmp+2}, 4, v{vPR}",
      f"v_bfe_u32 v{tmp+3}, v{vL}, 1, 1", f"v_lshl_add_u32 v{vPR}, v{tmp+3}, 3, v{vPR}", f"v_add_u32 v{vPR}, s3, v{vPR}")
    vPRx = [vPR, 244, 245, 246]
    a(f"v_xor_b32 v244, 32, v{vPR}", f"v_xor_b32 v245, 64, v{vPR}", f"v_xor_b32 v246, 0x60, v{vPR}")
    a(f"v_lshlrev_b32 v{vLin}, 4, v{vL}")
    for i in range(4):
        a(f"v_mov_b32 v{vONE+i}, 0x3f803f80")
    a("s_barrier")
    WP = [ar(120, 4), ar(124, 4)]
    def to_frags(src, T0, what):
        for tbb in range(2):
            for dt in range(2):
                s = src + tbb * 8 + dt * 4
                d = T0 + (dt * 4 + tbb * 2 if what == "qk" else tbb * 4 + dt * 2)
                a(f"v_cvt_pk_bf16_f32 v{d}, v{s}, v{s+1}", f"v_cvt_pk_bf16_f32 v{d+1}, v{s+2}, v{s+3}")
        a("s_nop 0")
        for f in range(2):
            a(f"v_permlane16_swap_b32 v{T0+4*f}, v{T0+4*f+2}", f"v_permlane16_swap_b32 v{T0+4*f+1}, v{T0+4*f+3}")
    n = 0
    for X in (K, Q):
        for p in range(4):
            T0 = T + (n & 1) * 8; n += 1
            src = X + 16 * p
            to_frags(src, T0, "qk")
            a("s_nop 1")
            a(f"v_mfma_f32_32x32x16_bf16 {vr(src,16)}, {WP[0]}, {vr(T0,4)}, 0",
              f"v_mfma_f32_32x32x16_bf16 {vr(src,16)}, {WP[1]}, {vr(T0+4,4)}, {vr(src,16)}")
    for p in range(4):
        src = V + 16 * p
        to_frags(src, T + 16, "v")
        for i in range(8):
            a(f"v_mov_b32 v{src+i}, v{T+16+i}")
    KVa, Za = [128, 144], [160, 176]
    for p in range(4):
        P = K + 16 * p
        softmax_pair(a, P, T, tmp, T + 16, P + 8)
        for sign in range(2):
            for qq in range(2):
                src = (T + 16 if sign == 0 else P + 8) + qq * 4
                a(f"ds_write_b128 v{vPW+sign*2+qq}, {vr(src,4)} offset:{p*4096}")
        a("s_waitcnt lgkmcnt(0)")
        fb = (p & 1) * 16
        for sign in range(2):
            for ks in range(2):
                for jj in range(2):
                    a(f"ds_read_b64_tr_b16 {ar(fb+sign*8+ks*4+jj*2,2)}, v{vPRx[sign*2+jj]} offset:{p*4096+ks*2048+jj*512}")
        a("s_waitcnt lgkmcnt(0)")
        for ks in range(2):
            for sign in range(2):
                A = ar(fb + sign * 8 + ks * 4, 4)
                first = (p == 0 and ks == 0)
                a(f"v_mfma_f32_32x32x16_bf16 {ar(KVa[sign],16)}, {A}, {vr(V+16*p+4*ks,4)}, {'0' if first else ar(KVa[sign],16)}")
                a(f"v_mfma_f32_32x32x16_bf16 {ar(Za[sign],16)}, {A}, {vr(vONE,4)}, {'0' if first else ar(Za[sign],16)}")
    stamp(a, 6, 1)
    a.c("pair reduction through LDS: wave th keeps sign th")
    XR = 65536
    a(f"s_lshl_b32 s3, s{sW}, 13", f"s_add_u32 s3, s3, {XR}", f"v_add_u32 v{tmp}, s3, v{vLin}",
      f"s_xor_b32 s3, s3, 0x4000", f"v_add_u32 v{tmp+1}, s3, v{vLin}")
    a(f"s_cmp_eq_u32 s{sTH}, 0", "s_cbranch_scc1 L1q_th0")
    for th in (1, 0):
        if th == 0:
            a.label("L1q_th0")
        a("s_nop 7", "s_nop 3")
        for i in range(4):
            a(f"ds_write_b128 v{tmp}, {ar(KVa[1-th]+4*i,4)} offset:{i*1024}")
        for i in range(4):
            a(f"ds_write_b128 v{tmp}, {ar(Za[1-th]+4*i,4)} offset:{4096+i*1024}")
        for i in range(16):
            a(f"v_accvgpr_read_b32 v{K+i}, a{KVa[th]+i}")
        for i in range(16):
            a(f"v_accvgpr_read_b32 v{K+16+i}, a{Za[th]+i}")
        if th == 1:
            a("s_branch L1q_thj")
    a.label("L1q_thj")
    a("s_waitcnt lgkmcnt(0)", "s_barrier")
    for i in range(8):
        a(f"ds_read_b128 {vr(K+32+4*i,4)}, v{tmp+1} offset:{i*1024}")
    a(f"s_lshl_b32 s72, s{sIDX}, 2", f"s_lshl_b32 s3, s{sNH}, 1", "s_add_u32 s72, s72, s3", f"s_add_u32 s72, s72, s{sTH}",
      f"s_lshl_b32 s73, s72, 3", f"s_add_u32 s73, s73, s{sMT}",
      "s_lshl_b32 s74, s73, 12", "s_lshl_b32 s75, s73, 7",
      f"v_lshrrev_b32 v{vZo}, 5, v{vL}", f"v_lshlrev_b32 v{vZo}, 6, v{vZo}",
      f"v_and_b32 v{tmp+2}, 31, v{vL}", f"v_lshl_add_u32 v{vZo}, v{tmp+2}, 24, v{vZo}")
    a("s_waitcnt lgkmcnt(0)")
    for i in range(0, 32, 2):
        a(f"v_pk_add_f32 {vr(K+i,2)}, {vr(K+i,2)}, {vr(K+32+i,2)}")
    for i in range(4):
        a(f"buffer_store_dwordx4 {vr(K+4*i,4)}, v{vLin}, s[{sKV}:{sKV+3}], s74 offen offset:{i*1024} sc1")
    for i in range(4):
        a(f"buffer_store_dwordx4 {vr(K+16+4*i,4)}, v{vZo}, s[{sZ}:{sZ+3}], s75 offen offset:{i*16} sc1")
    def qsoft(p):
        P = Q + 16 * p
        softmax_pair(a, P, T, tmp, P, P + 8)
    qsoft(0)
    srd(a, 76, sP + 16, 0, 256)
    a("s_lshl_b32 s3, s72, 2", f"v_lshlrev_b32 v{tmp+5}, 12, v{vL}", f"v_add_u32 v{tmp+5}, s3, v{tmp+5}", f"v_mov_b32 v{tmp+6}, s3", f"v_mov_b32 v{tmp+4}, 1")
    a("s_waitcnt vmcnt(0)")
    a(f"buffer_atomic_add v{tmp+4}, v{tmp+5}, s[76:79], 0 offen sc1")
    stamp(a, 7, 1)
    qsoft(1)
    qsoft(2)
    a("s_mov_b32 s80, 0")
    a.label("L1q_poll")
    a(f"buffer_load_dword v{tmp+4}, v{tmp+6}, s[76:79], 0 offen sc1", "s_waitcnt vmcnt(0)",
      f"v_readfirstlane_b32 s3, v{tmp+4}", "s_add_u32 s80, s80, 1", "s_cmp_ge_u32 s80, 0x40000", "s_cbranch_scc1 L1q_go",
      "s_cmp_lt_u32 s3, 8", "s_cbranch_scc1 L1q_poll")
    a.label("L1q_go")
    stamp(a, 8, 1)
    a("s_lshl_b32 s74, s72, 15", "s_lshl_b32 s75, s72, 10")
    vZ = 248
    a(f"buffer_load_dwordx4 {vr(vZ,4)}, v{vLin}, s[{sZ}:{sZ+3}], s75 offen sc1")
    for m in range(8):
        for i in range(4):
            a(f"buffer_load_dwordx4 {vr(K+16*m+4*i,4)}, v{vLin}, s[{sKV}:{sKV+3}], s74 offen offset:{i*1024} sc1")
        if m < 7:
            a("s_add_u32 s74, s74, 4096")
    qsoft(3)
    X2 = 98304
    a(f"s_mul_i32 s3, s{sNH}, 4352", f"s_add_u32 s3, s3, {X2}", f"s_lshl_b32 s73, s{sTH}, 11", "s_add_u32 s73, s73, s3",
      f"v_add_u32 v{tmp}, s73, v{vLin}",
      f"v_add_u32 v{tmp+1}, s3, v{vLin}",
      f"s_lshl_b32 s73, s{sTH}, 6", "s_add_u32 s73, s73, s3", "s_add_u32 s73, s73, 4096",
      f"v_and_b32 v{tmp+2}, 7, v{vL}", f"v_lshlrev_b32 v{tmp+2}, 3, v{tmp+2}", f"v_add_u32 v{tmp+2}, s73, v{tmp+2}",
      f"v_lshrrev_b32 v{tmp+3}, 5, v{vL}", f"v_lshlrev_b32 v{tmp+3}, 5, v{tmp+3}", "s_add_u32 s3, s3, 4096", f"v_add_u32 v{tmp+3}, s3, v{tmp+3}")
    a("s_waitcnt vmcnt(32)")
    for i in range(4):
        a(f"v_add_f32_dpp v{vZ+i}, v{vZ+i}, v{vZ+i} row_ror:8 row_mask:0xf bank_mask:0xf")
    for pl in ("v_permlane16_swap_b32", "v_permlane32_swap_b32"):
        for i in range(4):
            a(f"v_mov_b32 v{T+i}, v{vZ+i}")
        a("s_nop 0")
        for i in range(4):
            a(f"{pl} v{vZ+i}, v{T+i}")
        for i in range(4):
            a(f"v_add_f32 v{vZ+i}, v{vZ+i}, v{T+i}")
    a(f"v_cvt_pk_bf16_f32 v{vZ}, v{vZ}, v{vZ+1}", f"v_cvt_pk_bf16_f32 v{vZ+1}, v{vZ+2}, v{vZ+3}",
      f"ds_write_b64 v{tmp+2}, {vr(vZ,2)}")
    for m in range(1, 8):
        a(f"s_waitcnt vmcnt({28-4*m})")
        for i in range(0, 16, 2):
            a(f"v_pk_add_f32 {vr(K+i,2)}, {vr(K+i,2)}, {vr(K+16*m+i,2)}")
    for i in range(8):
        a(f"v_cvt_pk_bf16_f32 v{T+i}, v{K+2*i}, v{K+2*i+1}")
    a(f"ds_write_b128 v{tmp}, {vr(T,4)}", f"ds_write_b128 v{tmp}, {vr(T+4,4)} offset:1024")
    a("s_waitcnt lgkmcnt(0)", "s_barrier")
    for sign in range(2):
        for s in range(2):
            a(f"ds_read_b128 {ar(sign*8+s*4,4)}, v{tmp+1} offset:{sign*2048+s*1024}")
            a(f"ds_read_b128 {ar(16+sign*8+s*4,4)}, v{tmp+3} offset:{sign*64+s*16}")
    stamp(a, 9, 1)
    a(f"v_bfe_u32 v{tmp}, v{vL}, 4, 1", f"s_mov_b32 s3, {HO_TB}", f"v_mul_lo_u32 v{tmp}, v{tmp}, s3",
      f"v_lshrrev_b32 v{tmp+1}, 5, v{vL}", f"v_lshl_add_u32 v{tmp}, v{tmp+1}, 8, v{tmp}",
      f"v_and_b32 v{tmp+1}, 15, v{vL}", f"v_lshl_add_u32 v{tmp}, v{tmp+1}, 4, v{tmp}",
      f"s_lshl_b32 s3, s{sMT}, 4", f"s_lshl_b32 s73, s{sTH}, 3", "s_add_u32 s3, s3, s73", f"s_mul_i32 s3, s3, {HO_TB}",
      f"s_lshl_b32 s73, s{sIDX}, 1", f"s_add_u32 s73, s73, s{sNH}", "s_add_u32 s73, s73, 112", "s_lshl_b32 s73, s73, 10", "s_add_u32 s73, s73, s3",
      "s_mov_b32 s74, 0x358637bd")
    a("s_waitcnt lgkmcnt(0)")
    def nd(p):
        N = K + 32 * p; D = N + 16
        k = 0
        for sign in range(2):
            for s in range(2):
                B = vr(Q + 16 * p + sign * 8 + s * 4, 4)
                a(f"v_mfma_f32_32x32x16_bf16 {vr(N,16)}, {ar(sign*8+s*4,4)}, {B}, {'0' if k == 0 else vr(N,16)}")
                a(f"v_mfma_f32_32x32x16_bf16 {vr(D,16)}, {ar(16+sign*8+s*4,4)}, {B}, {'0' if k == 0 else vr(D,16)}")
                k += 1
    def fin(p):
        N = K + 32 * p; D = N + 16
        a(f"v_add_f32 v{D}, s74, v{D}", f"v_rcp_f32 v{D}, v{D}", "s_nop 0")
        for i in range(0, 16, 2):
            a(f"v_pk_mul_f32 {vr(N+i,2)}, {vr(N+i,2)}, {vr(D,2)} op_sel_hi:[1,0]")
        for i in range(8):
            a(f"v_cvt_pk_bf16_f32 v{N+i}, v{N+2*i}, v{N+2*i+1}")
        for s in range(2):
            a(f"buffer_store_dwordx4 {vr(N+4*s,4)}, v{tmp}, s[{sHO}:{sHO+3}], s73 offen offset:{s*512}")
        a(f"s_add_u32 s73, s73, {2*HO_TB}")
    nd(0); nd(1); a("s_nop 3"); fin(0); nd(2); a("s_nop 3"); fin(1); nd(3); a("s_nop 3"); fin(2); a("s_nop 3"); fin(3)
    stamp(a, 4, 1)
    if OPT["stamp"]:
        a("s_waitcnt vmcnt(0)")
        stamp(a, 5, 1)
    a("s_endpgm")

def k1():
    a = Asm()
    a.label("gemm1_kernel")
    a("s_cmp_ge_u32 s2, 256", "s_cbranch_scc1 L1_end")
    a(f"s_load_dwordx16 s[{sP+2}:{sP+17}], s[0:1], 8" if False else "")
    for i in range(10):
        a(f"s_load_dwordx2 s[{sP+2*i}:{sP+2*i+1}], s[0:1], {8*i}")
    a(f"v_and_b32 v{vL}, 63, v0", "v_lshrrev_b32 v1, 6, v0", "s_nop 0", f"v_readfirstlane_b32 s{sW}, v1")
    a("s_and_b32 s3, s2, 1", f"s_lshl_b32 s{sMT}, s3, 2", "s_bfe_u32 s3, s2, 0x20003", f"s_add_u32 s{sMT}, s{sMT}, s3",
      "s_bfe_u32 s3, s2, 0x20001", f"s_lshl_b32 s{sIDX}, s3, 2", "s_bfe_u32 s3, s2, 0x20005", f"s_add_u32 s{sIDX}, s{sIDX}, s3",
      f"s_lshr_b32 s{sTH}, s{sW}, 1", f"s_and_b32 s{sNH}, s{sW}, 1")
    a(f"v_lshrrev_b32 v{vT}, 3, v{vL}", f"s_lshl_b32 s3, s{sW}, 6", f"v_add_u32 v{vT}, s3, v{vT}", f"v_lshlrev_b32 v{vT}, 11, v{vT}",
      f"v_lshrrev_b32 v{vT+1}, 4, v{vL}", f"v_and_b32 v{vT+2}, 7, v{vL}", f"v_xor_b32 v{vT+1}, v{vT+1}, v{vT+2}",
      f"v_lshl_add_u32 v{vAoff}, v{vT+1}, 4, v{vT}", f"v_xor_b32 v{vT+3}, 64, v{vAoff}")
    for i in range(1, 8):
        src = vAoff if i % 2 == 0 else vT + 3
        a(f"v_add_u32 v{vAoff+i}, {i*16384-(i&3)*1024}, v{src}")
    a(f"v_and_b32 v{vT}, 15, v{vL}", f"s_lshl_b32 s3, s{sTH}, 7", f"v_add_u32 v{vT}, s3, v{vT}", f"v_lshlrev_b32 v{vT}, 7, v{vT}",
      f"v_lshrrev_b32 v{vT+1}, 4, v{vL}", f"v_bfe_u32 v{vT+2}, v{vL}, 1, 3", f"v_xor_b32 v{vT+1}, v{vT+1}, v{vT+2}",
      f"v_lshl_add_u32 v{vXa}, v{vT+1}, 4, v{vT}", f"v_xor_b32 v{vXa+1}, 64, v{vXa}")
    a(f"v_lshrrev_b32 v{vT}, 4, v{vL}", f"v_mul_u32_u24 v{vWa}, 3072, v{vT}", f"v_and_b32 v{vT}, 1, v{vT}",
      f"v_bfe_u32 v{vT+1}, v{vL}, 3, 1", f"v_lshl_or_b32 v{vT}, v{vT+1}, 1, v{vT}",
      f"s_lshl_b32 s3, s{sNH}, 1", f"v_xor_b32 v{vT}, s3, v{vT}", f"v_lshl_add_u32 v{vWa}, v{vT}, 5, v{vWa}",
      f"v_bfe_u32 v{vT+1}, v{vL}, 2, 2", f"v_lshl_add_u32 v{vWa}, v{vT+1}, 7, v{vWa}",
      f"v_and_b32 v{vT+1}, 3, v{vL}", f"v_lshl_add_u32 v{vWa}, v{vT+1}, 3, v{vWa}",
      f"v_add_u32 v{vWa}, {G2}, v{vWa}", f"v_xor_b32 v{vWa+1}, 32, v{vWa}")
    a("s_waitcnt lgkmcnt(0)")
    stamp_setup(a, 1, sP + 18, sW)
    stamp(a, 0, 1)
    a(f"s_lshl_b32 s3, s{sMT}, 19", f"s_add_u32 s3, s3, {hex(WS_XN)}" if WS_XN else "")
    srd(a, sA, sP + 18, "s3", 256 * 2048)
    srd(a, sHO, sP + 18, WS_HO, HO_SIZE)
    a("s_cmp_ge_u32 s2, 128", "s_cbranch_scc1 L1_ffn")
    k1_qkv(a)
    k1_ffn(a)
    a.label("L1_end")
    a("s_endpgm")
    return a

K2_LDS = 65536 + 16384
def k2():
    a = Asm()
    a.label("gemm2_kernel")
    a("s_cmp_ge_u32 s2, 256", "s_cbranch_scc1 L2_end")
    for i in (0, 3, 6, 7, 9):
        a(f"s_load_dwordx2 s[{sP+2*i}:{sP+2*i+1}], s[0:1], {8*i}")
    sX0, sX1, sSo, sM0, sNT = 31, 32, 33, 34, 41
    sXs, sO = 20, 24
    vDo, vR1, vR2, vXo, vXg, vEw, vEr = 224, 228, 232, 236, 237, 238, 242
    T = 244
    a(f"v_and_b32 v{vL}, 63, v0", "v_lshrrev_b32 v1, 6, v0", "s_nop 0", f"v_readfirstlane_b32 s{sW}, v1")
    a("s_and_b32 s3, s2, 3", f"s_lshl_b32 s{sMT}, s3, 2", "s_bfe_u32 s3, s2, 0x20003", f"s_add_u32 s{sMT}, s{sMT}, s3",
      "s_bfe_u32 s3, s2, 0x10002", f"s_lshl_b32 s{sNT}, s3, 3", "s_bfe_u32 s3, s2, 0x30005", f"s_add_u32 s{sNT}, s{sNT}, s3")
    a(f"v_lshrrev_b32 v{T}, 3, v{vL}", f"s_lshl_b32 s3, s{sW}, 5", f"v_add_u32 v{T}, s3, v{T}", f"v_lshlrev_b32 v{vXg}, 11, v{T}",
      f"v_lshrrev_b32 v{T+1}, 4, v{vL}", f"v_lshlrev_b32 v{T+1}, 1, v{T+1}", f"v_and_b32 v{T+2}, 7, v{vL}", f"v_xor_b32 v{T+1}, v{T+1}, v{T+2}",
      f"v_lshl_add_u32 v{vDo}, v{T+1}, 4, v{vXg}", f"s_lshl_b32 s3, s{sNT}, 7", f"v_add_u32 v{vDo}, s3, v{vDo}",
      f"v_lshl_add_u32 v{vXg}, v{T+2}, 4, v{vXg}", f"s_lshl_b32 s42, s{sMT}, 18", "s_add_u32 s3, s3, s42", f"v_add_u32 v{vXg}, s3, v{vXg}")
    for i in range(1, 4):
        a(f"v_add_u32 v{vDo+i}, {i*16384-i*1024}, v{vDo}")
    a(f"v_bfe_u32 v{T}, v{vL}, 2, 3", f"v_lshlrev_b32 v{vR1}, 7, v{T}", f"v_lshrrev_b32 v{T}, 1, v{T}", f"v_lshl_add_u32 v{vR1}, v{T}, 5, v{vR1}",
      f"v_and_b32 v{T}, 3, v{vL}", f"v_lshl_add_u32 v{vR1}, v{T}, 3, v{vR1}",
      f"v_lshrrev_b32 v{T}, 5, v{vL}", f"v_lshl_add_u32 v{vR2}, v{T}, 11, v{vR1}", f"v_lshl_add_u32 v{vR1}, v{T}, 10, v{vR1}")
    for q in range(1, 4):
        a(f"v_xor_b32 v{vR1+q}, {q*32}, v{vR1}", f"v_xor_b32 v{vR2+q}, {q*32}, v{vR2}")
    a(f"v_lshlrev_b32 v{vXo}, 4, v{vL}")
    a(f"v_and_b32 v{T}, 15, v{vL}", f"v_lshlrev_b32 v{vEw}, 7, v{T}", f"v_and_b32 v{T}, 7, v{vL}", f"v_lshrrev_b32 v{T+1}, 5, v{vL}",
      f"v_xor_b32 v{T}, v{T}, v{T+1}", f"v_lshl_add_u32 v{vEw}, v{T}, 4, v{vEw}", f"v_bfe_u32 v{T}, v{vL}, 4, 1", f"v_lshl_add_u32 v{vEw}, v{T}, 3, v{vEw}",
      f"s_lshl_b32 s3, s{sW}, 12", "s_add_u32 s3, s3, 65536", f"v_add_u32 v{vEw}, s3, v{vEw}",
      f"v_lshrrev_b32 v{T}, 3, v{vL}", f"v_and_b32 v{T+1}, 7, v{vL}", f"v_xor_b32 v{T+1}, v{T}, v{T+1}", f"v_lshlrev_b32 v{vEr}, 7, v{T}",
      f"v_lshl_add_u32 v{vEr}, v{T+1}, 4, v{vEr}", f"v_add_u32 v{vEr}, s3, v{vEr}")
    for q in range(1, 4):
        a(f"v_xor_b32 v{vEw+q}, {q*32}, v{vEw}")
    a("s_waitcnt lgkmcnt(0)")
    stamp_setup(a, 2, sP + 18, sW)
    stamp(a, 0, 2)
    srd(a, sA, sP + 18, WS_HO, HO_SIZE)
    srd(a, sB, sP + 12, 0, 3584 * 2048)
    srd(a, sXs, sP + 0, 0, 2048 * 2048)
    srd(a, sO, sP + 14, 0, 2048 * 2048)
    a(f"s_lshl_b32 s3, s{sMT}, 3", f"s_lshl_b32 s42, s{sW}, 1", "s_add_u32 s3, s3, s42", f"s_mul_i32 s{sX0}, s3, {HO_TB}",
      f"s_add_u32 s{sX1}, s{sX0}, {HO_TB}", f"s_mov_b32 s{sSo}, 0", f"s_lshl_b32 s{sM0}, s{sW}, 12",
      "s_mov_b32 s71, 0x4000", "s_mov_b32 s72, 0x8000", "s_mov_b32 s73, 0xc000")
    OUT, S, XR = 0, 32, 64
    WF = 128
    trace = []
    def xload(t, j):
        return [("vm", f"buffer_load_dwordx4 {ar((t&3)*32+j*8+tb*4,4)}, v{vXo}, s[{sA}:{sA+3}], s{sX0+tb} offen offset:{j*1024}", ("X", t, j)) for tb in range(2)]
    def xadv():
        return [f"s_add_u32 s{sX0}, s{sX0}, 4096", f"s_add_u32 s{sX1}, s{sX1}, 4096"]
    def dma(t, i):
        return ("vm", f"buffer_load_dwordx4 v{vDo+i}, s[{sB}:{sB+3}], s{sSo} offen offset:{i*1024} lds", ("D", t))
    def m0(t):
        return f"s_add_u32 m0, s{sM0}, {(t&3)*16384}"
    def soadv():
        return f"s_add_u32 s{sSo}, s{sSo}, 0x40000"
    def reads(t, j, typ):
        st = WF + (j & 1) * 16
        R = vR1 if typ == 1 else vR2
        return [f"ds_read_b64_tr_b16 {ar(st+q*4+jj*2,2)}, v{R+q} offset:{(t&3)*16384+j*4096+jj*(2048 if typ == 1 else 1024)}"
                for q in range(4) for jj in range(2)]
    def step(t, j):
        typ = 1 if t < 28 else 2
        acc = OUT if t < 28 else S
        st = WF + (j & 1) * 16
        m = [f"v_mfma_f32_16x16x32_bf16 {vr(acc+(tb*4+q)*4,4)}, {ar(st+q*4,4)}, {ar((t&3)*32+j*8+tb*4,4)}, {vr(acc+(tb*4+q)*4,4)}"
             for q in range(4) for tb in range(2)]
        fill = {}
        need = [("X", t, j)]
        lastst = (t == 35 and j == 3)
        if j == 3 and not lastst:
            need.append(("D", t + 1))
        fill[-1] = [("wait", (t if t >= 28 else t & 3, j), need)]
        if j == 3 and not lastst:
            fill[-1].append("s_barrier")
        if not lastst:
            nt, nj = (t, j + 1) if j < 3 else (t + 1, 0)
            spread(reads(nt, nj, typ), list(range(8)), fill)
        td = t + 4 if j == 3 else t + 3
        if td <= 35:
            i = (j + 1) & 3
            if i == 0:
                if t < 28 and (t & 3) == 0:
                    fill.setdefault(0, []).extend([f"s_cmp_eq_u32 s{sCnt}, 6", f"s_cselect_b32 s{sB}, s{sP+6}, s{sB}"])
                    fill.setdefault(1, []).extend([f"s_cselect_b32 s{sB+1}, s{sP+7}, s{sB+1}", f"s_cselect_b32 s{sB+2}, s74, s{sB+2}"])
                    fill.setdefault(2, []).extend([f"s_cselect_b32 s{sSo}, 0, s{sSo}"])
                fill.setdefault(2, []).append(m0(td))
            fill.setdefault(4, []).append(dma(td, i))
            if i == 3:
                fill.setdefault(5, []).append(soadv())
        if t + 4 <= 35:
            fill.setdefault(7, []).extend(xload(t + 4, j))
            if j == 3:
                fill[7].extend(xadv())
        return weave(m, fill)
    pro = []
    for i in range(4):
        so = "0" if i == 0 else f"s{70+i}"
        pro.append(("vm", f"buffer_load_dwordx4 {vr(XR+4*i,4)}, v{vXg}, s[{sXs}:{sXs+3}], {so} offen", ("x",)))
    for t in range(4):
        if t < 3:
            pro += [m0(t), "s_nop 0"] + [dma(t, i) for i in range(4)] + [soadv()]
        for j in range(4):
            pro += xload(t, j)
        pro += xadv()
    pro += [f"v_mov_b32 v{i}, 0" for i in range(64)]
    pro += ["s_mov_b32 s74, 0x200000", ("wait", "pro", [("D", 0)]), "s_barrier"] + reads(0, 0, 1) + [m0(3), "s_nop 0", dma(3, 0)]
    pro += [f"s_mov_b32 s{sCnt}, 0"]
    dyn = list(pro)
    for t in range(36):
        for j in range(4):
            dyn += step(t, j)
    cnt = {}
    issued = []
    for it in dyn:
        if isinstance(it, tuple) and it[0] == "vm":
            issued.append(it[2])
        elif isinstance(it, tuple) and it[0] == "wait":
            last = max(i for i, tg in enumerate(issued) if tg in it[2])
            n = len(issued) - 1 - last
            cnt[it[1]] = min(cnt.get(it[1], 63), n)
    def emit(items):
        for it in items:
            if isinstance(it, tuple):
                if it[0] == "vm":
                    a(it[1])
                else:
                    a(f"s_waitcnt vmcnt({cnt[it[1]]}) lgkmcnt(0)")
            else:
                a(it)
    emit(pro)
    a(".p2align 6")
    a.label("L2_loop")
    for t in range(4):
        for j in range(4):
            emit(step(t, j))
    a(f"s_add_u32 s{sCnt}, s{sCnt}, 1", f"s_cmp_lg_u32 s{sCnt}, 7", "s_cbranch_scc1 L2_loop")
    stamp(a, 2, 2)
    a("s_waitcnt lgkmcnt(0)")
    a(reads(28, 0, 2))
    for t in range(28, 36):
        for j in range(4):
            emit(step(t, j))
    stamp(a, 3, 2)
    a.c("---- epilogue")
    a(f"s_mov_b32 s{sT0+4}, {hex(NLOG2E)}", f"s_mov_b32 s{sT0+5}, {hex(NLOG2E)}", "s_mov_b32 s48, 0xffff0000")
    E = 96
    for i in range(0, 32, 2):
        a(f"v_pk_mul_f32 {vr(E+i,2)}, {vr(OUT+i,2)}, s[{sT0+4}:{sT0+5}]")
    for i in range(32):
        a(f"v_exp_f32 v{E+i}, v{E+i}")
    for i in range(0, 32, 2):
        a(f"v_pk_add_f32 {vr(E+i,2)}, {vr(E+i,2)}, 1.0 op_sel_hi:[1,0]")
    for i in range(32):
        a(f"v_rcp_f32 v{E+i}, v{E+i}")
    for i in range(0, 32, 2):
        a(f"v_pk_mul_f32 {vr(OUT+i,2)}, {vr(OUT+i,2)}, {vr(S+i,2)}")
    for i in range(0, 32, 2):
        a(f"v_pk_mul_f32 {vr(E+i,2)}, {vr(E+i,2)}, {vr(OUT+i,2)}")
    for i in range(16):
        a(f"v_cvt_pk_bf16_f32 v{OUT+i}, v{E+2*i}, v{E+2*i+1}")
    for tb in range(2):
        for q in range(4):
            a(f"ds_write_b64 v{vEw+q}, {vr(OUT+(tb*4+q)*2,2)} offset:{tb*2048}")
    a("s_waitcnt lgkmcnt(0)")
    for i in range(4):
        a(f"ds_read_b128 {vr(S+4*i,4)}, v{vEr} offset:{i*1024}")
    for i in range(16):
        a(f"v_lshlrev_b32 v{E+2*i}, 16, v{XR+i}", f"v_and_b32 v{E+2*i+1}, s48, v{XR+i}")
    a("s_waitcnt lgkmcnt(0)")
    for i in range(4):
        for k in range(4):
            r = 4 * i + k
            a(f"v_lshlrev_b32 v{OUT}, 16, v{S+r}", f"v_and_b32 v{OUT+1}, s48, v{S+r}",
              f"v_pk_add_f32 {vr(E+2*r,2)}, {vr(E+2*r,2)}, {vr(OUT,2)}", f"v_cvt_pk_bf16_f32 v{XR+r}, v{E+2*r}, v{E+2*r+1}")
        so = "0" if i == 0 else f"s{70+i}"
        a(f"buffer_store_dwordx4 {vr(XR+4*i,4)}, v{vXg}, s[{sO}:{sO+3}], {so} offen")
    stamp(a, 4, 2)
    if OPT["stamp"]:
        a("s_waitcnt vmcnt(0)")
        stamp(a, 5, 2)
    a.label("L2_end")
    a("s_endpgm")
    return a

def build():
    ks = [("ln_kernel", k0(), 64, 64, 0), ("gemm1_kernel", k1(), 256 + 192, 256, K1_LDS), ("gemm2_kernel", k2(), 256 + 160, 256, K2_LDS)]
    out = ["; generated by gen/gen.py: layernorm -> (qkv+hedgehog attention | ffn1+silu) -> (ffn2, wo, gate, residual)"]
    for n, _, _, _, lds in ks:
        out.append(f"; @launch kernel={n} grid=(256,1,1) block=(256,1,1) lds={lds}")
    out.append('.amdgcn_target "amdgcn-amd-amdhsa--gfx950"')
    out.append(".text")
    bad = 0
    for n, a, _, _, _ in ks:
        for p in check_hazards(a.lines):
            print(f"HAZARD {n}: {p}", file=sys.stderr); bad += 1
        out += [f".globl {n}", ".p2align 8", f".type {n},@function", a.text()]
    out += ['.section .rodata,"a"']
    for n, _, v, acc, _ in ks:
        out += [".p2align 6", kernel_desc(n, v, acc)]
    return "\n".join(out), bad

if __name__ == "__main__":
    dst = f"cdna_kernels/{NAME}.s"
    for arg in sys.argv[1:]:
        if "=" in arg:
            k, v = arg.split("=")
            if k == "out": dst = v
            else: OPT[k] = int(v)
    txt, bad = build()
    open(dst, "w").write(txt)
    print("wrote", dst, len(txt), "bytes; hazards:", bad)
```

```python
import sys, os
sys.path.insert(0, os.path.dirname(os.path.abspath(__file__)))
from asmlib import *

NAME = "recurrent_scan__linear_kernel_hedgehog__dense_activation_silu__prompt"
WS_XN = 0
WS_HO = 0x400000
HO_STEPS = 144
HO_TB = HO_STEPS * 1024
HO_SIZE = 128 * HO_TB
WS_KV = 0x1600000
KV_SIZE = 32 * 2 * 8 * 4096
WS_Z = 0x1800000
Z_SIZE = 32 * 2 * 8 * 128
WS_STAMP = 0x2000000
LOG2E = 0x3fb8aa3b
NLOG2E = 0xbfb8aa3b

OPT = dict(stamp=0)

def srd(a, s, base, off, size):
    if off == 0:
        a(f"s_mov_b32 s{s}, s{base}", f"s_mov_b32 s{s+1}, s{base+1}")
    elif isinstance(off, int) and off < 0:
        a(f"s_sub_u32 s{s}, s{base}, {-off}", f"s_subb_u32 s{s+1}, s{base+1}, 0")
    else:
        o = off if isinstance(off, str) else hex(off)
        a(f"s_add_u32 s{s}, s{base}, {o}", f"s_addc_u32 s{s+1}, s{base+1}, 0")
    a(f"s_mov_b32 s{s+2}, {hex(size)}", f"s_mov_b32 s{s+3}, 0x20000")

def kernel_desc(name, vgpr, accum, sgpr=96):
    return f""".amdhsa_kernel {name}
  .amdhsa_next_free_vgpr {vgpr}
  .amdhsa_next_free_sgpr {sgpr}
  .amdhsa_accum_offset {accum}
  .amdhsa_group_segment_fixed_size 0
  .amdhsa_kernarg_size 80
  .amdhsa_user_sgpr_count 2
  .amdhsa_user_sgpr_kernarg_segment_ptr 1
  .amdhsa_system_sgpr_workgroup_id_x 1
  .amdhsa_float_denorm_mode_32 3
.end_amdhsa_kernel
"""

def stamp(a, idx, kern):
    if not OPT["stamp"]:
        return
    a("s_memrealtime s[90:91]", "s_waitcnt lgkmcnt(0)", "v_mov_b32 v254, s90",
      f"buffer_store_dword v254, v253, s[84:87], 0 offen offset:{idx*4}")

def stamp_setup(a, kern, wsreg, wave_s):
    if not OPT["stamp"]:
        return
    srd(a, 84, wsreg, WS_STAMP + kern * 0x40000, 0x40000)
    a("s_lshl_b32 s90, s2, 2", f"s_add_u32 s90, s90, s{wave_s}", "s_lshl_b32 s90, s90, 6", "v_mov_b32 v253, s90")

def k0():
    a = Asm()
    a.label("ln_kernel")
    a("s_cmp_ge_u32 s2, 256", "s_cbranch_scc1 L0_end")
    a("s_load_dwordx2 s[4:5], s[0:1], 0", "s_load_dwordx2 s[6:7], s[0:1], 72")
    a("v_lshrrev_b32 v1, 6, v0", "v_and_b32 v2, 63, v0")
    a("s_lshl_b32 s3, s2, 14")
    a("v_lshlrev_b32 v1, 12, v1", "v_lshl_add_u32 v1, v2, 4, v1", "v_add_u32 v1, s3, v1")
    a("s_waitcnt lgkmcnt(0)")
    srd(a, 8, 4, 0, 2048 * 2048)
    srd(a, 12, 6, WS_XN, 2048 * 2048)
    for r in range(2):
        for h in range(2):
            a(f"buffer_load_dwordx4 {vr(4+8*r+4*h,4)}, v1, s[8:11], 0 offen offset:{r*2048+h*1024}")
    a("s_mov_b32 s16, 0xffff0000", "s_mov_b32 s17, 0x3a800000", "s_mov_b32 s18, 0x3727c5ac")
    F = [32, 48]
    S = [20, 21]; T = [22, 23]
    def allsum():
        for pat in ("quad_perm:[1,0,3,2]", "quad_perm:[2,3,0,1]", "row_half_mirror", "row_mirror"):
            a("s_nop 1")
            for r in range(2):
                a(f"v_add_f32_dpp v{S[r]}, v{S[r]}, v{S[r]} {pat} row_mask:0xf bank_mask:0xf")
        for pl in ("v_permlane16_swap_b32", "v_permlane32_swap_b32"):
            for r in range(2):
                a(f"v_mov_b32 v{T[r]}, v{S[r]}")
            a("s_nop 1")
            for r in range(2):
                a(f"{pl} v{S[r]}, v{T[r]}")
            for r in range(2):
                a(f"v_add_f32 v{S[r]}, v{S[r]}, v{T[r]}")
    def rnd(reg):
        a(f"v_cvt_pk_bf16_f32 v{reg}, v{reg}, v{reg}", f"v_and_b32 v{reg}, s16, v{reg}")
    for r in range(2):
        a(f"s_waitcnt vmcnt({2-2*r})")
        for i in range(8):
            a(f"v_lshlrev_b32 v{F[r]+2*i}, 16, v{4+8*r+i}", f"v_and_b32 v{F[r]+2*i+1}, s16, v{4+8*r+i}")
        a(f"v_add_f32 v{S[r]}, v{F[r]}, v{F[r]+1}")
        for i in range(2, 16):
            a(f"v_add_f32 v{S[r]}, v{S[r]}, v{F[r]+i}")
    allsum()
    M = [24, 25]
    for r in range(2):
        a(f"v_mul_f32 v{M[r]}, s17, v{S[r]}")
    for r in range(2):
        a(f"v_sub_f32 v26, v{F[r]}, v{M[r]}", f"v_mul_f32 v{S[r]}, v26, v26")
        for i in range(1, 16):
            a(f"v_sub_f32 v26, v{F[r]+i}, v{M[r]}", f"v_fmac_f32 v{S[r]}, v26, v26")
    allsum()
    for r in range(2):
        a(f"v_mul_f32 v{S[r]}, s17, v{S[r]}")
        rnd(S[r])
        a(f"v_add_f32 v{S[r]}, s18, v{S[r]}")
        rnd(S[r])
        a(f"v_sqrt_f32 v{S[r]}, v{S[r]}", "s_nop 0")
        rnd(S[r])
        a(f"v_rcp_f32 v{S[r]}, v{S[r]}")
        rnd(M[r])
    for r in range(2):
        for i in range(8):
            x0, x1 = F[r]+2*i, F[r]+2*i+1
            a(f"v_sub_f32 v{x0}, v{x0}, v{M[r]}", f"v_sub_f32 v{x1}, v{x1}, v{M[r]}",
              f"v_cvt_pk_bf16_f32 v26, v{x0}, v{x1}",
              f"v_lshlrev_b32 v{x0}, 16, v26", f"v_and_b32 v{x1}, s16, v26",
              f"v_mul_f32 v{x0}, v{x0}, v{S[r]}", f"v_mul_f32 v{x1}, v{x1}, v{S[r]}",
              f"v_cvt_pk_bf16_f32 v{4+8*r+i}, v{x0}, v{x1}")
        for h in range(2):
            a(f"buffer_store_dwordx4 {vr(4+8*r+4*h,4)}, v1, s[12:15], 0 offen offset:{r*2048+h*1024}")
    a.label("L0_end")
    a("s_endpgm")
    return a

G1_SLOT = 36864
G2 = 3 * G1_SLOT
G2_SLOT = 12288
LDS_WPHI = G2 + 4 * G2_SLOT
K1_LDS = 163840
vAoff, vBoff, vBh, vXa, vWa, vWh = 224, 232, 235, 236, 238, 240
vT = 241
vL = 255
sA, sB, sHO, sKV, sZ = 8, 12, 16, 20, 24
sW, sTH, sNH = 28, 29, 30
sSoffA, sSoffB, sSoffH, sRd, sWr, sDelta, sM0A, sM0B, sCnt, sMT, sIDX = 31, 32, 33, 34, 35, 36, 37, 38, 39, 40, 41
sT0 = 42
sP = 50
SETREG = 60

def k1_mainloop(a, ffn):
    tag = "F" if ffn else "Q"
    RS = 7168 if ffn else 6144
    ngs = 7 if ffn else 6
    def acc(ng, tb):
        if ffn:
            return (tb * 7 + ng) * 4
        return (ng >> 1) * 64 + tb * 8 + (ng & 1) * 4
    def mfmas(s):
        base = (s & 1) * SETREG
        out = []
        for ng in range(ngs):
            for tb in range(8):
                X = ar(base + tb * 4, 4); W = ar(base + 32 + ng * 4, 4); D = vr(acc(ng, tb), 4)
                if (not ffn) and ng >= 4:
                    out.append(f"v_mfma_f32_16x16x32_bf16 {D}, {X}, {W}, {D}")
                else:
                    out.append(f"v_mfma_f32_16x16x32_bf16 {D}, {W}, {X}, {D}")
        return out
    def reads(u):
        base = (u & 1) * SETREG
        j = u & 1; slot = u & 3
        xs = [f"ds_read_b128 {ar(base+tb*4,4)}, v{vXa+j} offset:{tb*2048}" for tb in range(8)]
        ws = []
        for ng in range(ngs):
            for jj in range(2):
                dst = ar(base + 32 + ng * 4 + jj * 2, 2)
                if ng < 6:
                    ws.append(f"ds_read_b64_tr_b16 {dst}, v{vWa+(ng&1)} offset:{slot*G2_SLOT+(ng>>1)*1024+jj*512}")
                else:
                    ws.append(f"ds_read_b64_tr_b16 {dst}, v{vWh} offset:{j*2048+jj*256}")
        return ws[:2] + xs + ws[2:]
    def dma_B(u):
        out = [[f"s_add_u32 m0, s{sM0B}, {(u&3)*G2_SLOT}"]]
        for b in range(3):
            out.append([f"buffer_load_dwordx4 v{vBoff+b}, s[{sB}:{sB+3}], s{sSoffB} offen offset:{b*1024} lds"])
        out[-1].append(f"s_add_u32 s{sSoffB}, s{sSoffB}, {32*RS}")
        return out
    def dma_A(half):
        out = [[f"s_add_u32 m0, s{sM0A}, {half*4096}"]]
        for i in range(4):
            out.append([f"buffer_load_dwordx4 v{vAoff+half*4+i}, s[{sA}:{sA+3}], s{sSoffA} offen offset:{i*1024} lds"])
        if half and ffn:
            out.append([f"s_add_u32 m0, s{sWr}, s{sT0}"])
            out.append([f"buffer_load_dwordx4 v{vBh}, s[{sB}:{sB+3}], s{sSoffH} offen lds",
                        f"s_add_u32 s{sSoffH}, s{sSoffH}, {64*RS}"])
        if half:
            out.append([f"s_add_u32 s{sWr}, s{sWr}, {G1_SLOT}", f"s_cmp_eq_u32 s{sWr}, {G2}"])
            out.append([f"s_cselect_b32 s{sWr}, 0, s{sWr}", f"s_add_u32 s{sSoffA}, s{sSoffA}, 128"])
            out.append([f"s_add_u32 s{sM0A}, s{sWr}, s{sT0+1}"])
        return out
    def window(u):
        return dma_B(u + 3) + dma_A(u & 1)
    def rd_advance():
        o = [[f"s_add_u32 s{sRd}, s{sRd}, {G1_SLOT}", f"s_cmp_eq_u32 s{sRd}, {G2}"],
             [f"s_cselect_b32 s{sDelta}, s{sT0+2}, s{sT0+3}", f"s_cselect_b32 s{sRd}, 0, s{sRd}"],
             [f"v_add_u32 v{vXa}, s{sDelta}, v{vXa}"], [f"v_add_u32 v{vXa+1}, s{sDelta}, v{vXa+1}"]]
        if ffn:
            o.append([f"v_add_u32 v{vWh}, s{sDelta}, v{vWh}"])
        return o
    n_even, n_odd = (15, 19) if ffn else (14, 18)
    nm = ngs * 8
    def step(s, last=False, dma=True, nvm=None, extra=None):
        u = s + 1
        m = mfmas(s)
        fill = {}
        if last:
            fill[-1] = ["s_waitcnt lgkmcnt(0)"]
            return weave(m, fill)
        n = nvm if nvm is not None else (n_even if u % 2 == 0 else n_odd)
        fill[-1] = [f"s_waitcnt vmcnt({n}) lgkmcnt(0)", "s_barrier"]
        r = reads(u)
        spread(r, list(range(len(r))), fill)
        rest = []
        if dma:
            rest += window(u)
        if u % 2 == 1:
            rest += rd_advance()
        if extra:
            rest += extra
        g0 = len(r)
        gaps = []
        k = len(rest)
        room = nm - g0
        assert k <= room, (k, room)
        for i in range(k):
            gaps.append(g0 + (i * room) // k)
        spread(rest, gaps, fill)
        return weave(m, fill)

    a(f"s_lshl_b32 s{sT0}, s{sW}, 10", f"s_add_u32 s{sT0}, s{sT0}, 32768",
      f"s_lshl_b32 s{sT0+1}, s{sW}, 13", f"s_mov_b32 s{sT0+2}, {hex((-2*G1_SLOT) & 0xffffffff)}", f"s_mov_b32 s{sT0+3}, {G1_SLOT}",
      f"s_mul_i32 s{sM0B}, s{sW}, 3072", f"s_add_u32 s{sM0B}, s{sM0B}, {G2}",
      f"s_mov_b32 s{sSoffA}, 0", f"s_mov_b32 s{sSoffB}, 0", f"s_mov_b32 s{sSoffH}, 0",
      f"s_mov_b32 s{sRd}, 0", f"s_mov_b32 s{sWr}, 0", f"s_mov_b32 s{sM0A}, s{sT0+1}")
    def flat(x):
        o = []
        for it in x:
            o.extend(it)
            if it[0].startswith("s_add_u32 m0"):
                o.append("s_nop 0")
        return o
    a(flat(dma_A(0)))
    for u in (-3, -2, -1):
        a(flat(window(u)))
    a.c("zero accumulators while the first tiles are in flight")
    for i in range(nm * 4):
        a(f"v_mov_b32 v{i}, 0")
    stamp(a, 1, 1)
    a(f"s_waitcnt vmcnt({n_even + (1 if OPT['stamp'] else 0)})", "s_barrier")
    stamp(a, 2, 1)
    a(reads(0))
    if not ffn:
        for s in range(2):
            for jj in range(2):
                a(f"ds_read_b64_tr_b16 {ar(120+s*4+jj*2,2)}, v{vT} offset:{s*1024+jj*256}")
    a(flat(window(0)))
    a(f"s_mov_b32 s{sCnt}, 0")
    a(".p2align 6")
    a.label(f"L1{tag}_loop")
    for s in range(4):
        extra = None
        if s == 2:
            extra = [[f"s_cmp_eq_u32 s{sCnt}, 6", f"s_cselect_b32 s{sA+2}, 0, s{sA+2}"]]
        if s == 3:
            extra = [[f"s_add_u32 s{sCnt}, s{sCnt}, 1"]]
        body = step(s, extra=extra)
        if s == 3:
            body += [f"s_cmp_lg_u32 s{sCnt}, 7", f"s_cbranch_scc1 L1{tag}_loop"]
        a(body)
    a(step(28, dma=False))
    a(step(29, dma=False, nvm=7))
    a(step(30, dma=False, nvm=0))
    a(step(31, last=True))
    return acc

def silu_block(a, regs, tmp, dst):
    n = len(regs)
    for i in range(0, n, 2):
        a(f"v_pk_mul_f32 {vr(tmp+i,2)}, {vr(regs[i],2)}, s[{sT0+4}:{sT0+5}]")
    for i in range(n):
        a(f"v_exp_f32 v{tmp+i}, v{tmp+i}")
    for i in range(0, n, 2):
        a(f"v_pk_add_f32 {vr(tmp+i,2)}, {vr(tmp+i,2)}, 1.0 op_sel_hi:[1,0]")
    for i in range(n):
        a(f"v_rcp_f32 v{tmp+i}, v{tmp+i}")
    for i in range(0, n, 2):
        a(f"v_pk_mul_f32 {vr(tmp+i,2)}, {vr(tmp+i,2)}, {vr(regs[i],2)}")
    for i in range(0, n, 2):
        a(f"v_cvt_pk_bf16_f32 v{dst[i//2]}, v{tmp+i}, v{tmp+i+1}")

def k1_ffn(a):
    a.label("L1_ffn")
    srd(a, sB, sP + 10, -4096, 1024 * 7168 + 4096)
    a(f"s_mul_i32 s{sT0+4}, s{sIDX}, 448", f"s_and_b32 s{sT0+5}, s{sIDX}, 1",
      f"s_lshl_b32 s{sT0+6}, s{sT0+5}, 6", f"s_add_u32 s{sT0+6}, s{sT0+6}, s{sT0+4}",
      f"s_mul_i32 s{sT0+5}, s{sT0+5}, 384", f"s_sub_u32 s{sT0+7}, s{sT0+4}, s{sT0+5}", f"s_add_u32 s{sT0+7}, s{sT0+7}, 384")
    k1_b_offsets(a, 7168, 128, sT0 + 6)
    a(f"v_lshrrev_b32 v{vT}, 2, v{vL}", f"s_lshl_b32 s3, s{sW}, 4", f"v_add_u32 v{vT}, s3, v{vT}",
      f"s_movk_i32 s3, 7168", f"v_mul_lo_u32 v{vBh}, v{vT}, s3",
      f"v_lshrrev_b32 v{vT}, 5, v{vL}", f"v_lshlrev_b32 v{vT}, 1, v{vT}", f"v_and_b32 v{vT+1}, 3, v{vL}", f"v_xor_b32 v{vT}, v{vT}, v{vT+1}",
      f"v_lshl_add_u32 v{vBh}, v{vT}, 4, v{vBh}", f"s_add_u32 s3, s{sT0+7}, 4096", f"v_add_u32 v{vBh}, s3, v{vBh}")
    a(f"v_lshrrev_b32 v{vT}, 4, v{vL}", f"v_lshlrev_b32 v{vWh}, 9, v{vT}",
      f"v_and_b32 v{vT}, 1, v{vT}", f"v_xor_b32 v{vT}, s{sNH}, v{vT}", f"v_lshl_add_u32 v{vWh}, v{vT}, 5, v{vWh}",
      f"v_bfe_u32 v{vT}, v{vL}, 2, 2", f"v_lshl_add_u32 v{vWh}, v{vT}, 6, v{vWh}",
      f"v_and_b32 v{vT}, 3, v{vL}", f"v_lshl_add_u32 v{vWh}, v{vT}, 3, v{vWh}", f"v_add_u32 v{vWh}, 0x8000, v{vWh}")
    a(f"s_lshr_b32 s70, s{sT0+6}, 6", f"s_add_u32 s70, s70, s{sNH}", "s_lshl_b32 s70, s70, 10",
      f"s_lshr_b32 s71, s{sT0+7}, 6", "s_lshl_b32 s71, s71, 10")
    acc = k1_mainloop(a, True)
    stamp(a, 3, 1)
    a.c("---- FFN epilogue: h = silu(acc) -> fragment-major bf16")
    a(f"s_mov_b32 s{sT0+4}, {hex(NLOG2E)}", f"s_mov_b32 s{sT0+5}, {hex(NLOG2E)}")
    a(f"s_lshl_b32 s3, s{sMT}, 4", f"s_lshl_b32 s72, s{sTH}, 3", "s_add_u32 s3, s3, s72", f"s_mul_i32 s3, s3, {HO_TB}",
      "s_add_u32 s70, s70, s3", "s_add_u32 s71, s71, s3")
    a(f"v_lshlrev_b32 v240, 4, v{vL}", f"s_lshl_b32 s3, s{sNH}, 3", "v_add_u32 v241, s3, v240")
    a("s_nop 3")
    tmp = 224
    for tb in range(8):
        base = tb * 28
        for b in range(3):
            regs = list(range(base + b * 8, base + b * 8 + 8))
            t = tmp + (b & 1) * 8
            silu_block(a, regs, t, [base + b * 8 + i for i in range(4)])
            if b == 2:
                a(f"s_add_u32 s72, s70, 4096")
            so, imm = ("s70", b * 2048) if b < 2 else ("s72", 0)
            a(f"buffer_store_dwordx4 {vr(base+b*8,4)}, v240, s[{sHO}:{sHO+3}], {so} offen offset:{imm}")
        regs = list(range(base + 24, base + 28))
        silu_block(a, regs, tmp + 8, [base + 24, base + 25])
        a(f"buffer_store_dwordx2 {vr(base+24,2)}, v241, s[{sHO}:{sHO+3}], s71 offen")
        if tb < 7:
            a(f"s_add_u32 s70, s70, {HO_TB}", f"s_add_u32 s71, s71, {HO_TB}")
    stamp(a, 4, 1)
    if OPT["stamp"]:
        a("s_waitcnt vmcnt(0)")
        stamp(a, 5, 1)
    a("s_endpgm")

def k1_b_offsets(a, RS, blockstride, scol):
    a(f"v_lshrrev_b32 v{vT}, 3, v{vL}", f"s_lshl_b32 s3, s{sW}, 3", f"v_add_u32 v{vT}, s3, v{vT}",
      f"s_movk_i32 s3, {RS}", f"v_mul_lo_u32 v{vBoff}, v{vT}, s3",
      f"v_bfe_u32 v{vT}, v{vL}, 4, 1", f"v_lshlrev_b32 v{vT}, 2, v{vT}", f"s_lshl_b32 s3, s{sNH}, 1", f"v_or_b32 v{vT}, s3, v{vT}",
      f"v_and_b32 v{vT+1}, 7, v{vL}", f"v_xor_b32 v{vT}, v{vT}, v{vT+1}",
      f"v_lshl_add_u32 v{vBoff}, v{vT}, 4, v{vBoff}", f"s_add_u32 s3, s{scol}, 4096", f"v_add_u32 v{vBoff}, s3, v{vBoff}")
    for b in (1, 2):
        d = b * blockstride - b * 1024
        a(f"v_add_u32 v{vBoff+b}, {hex(d & 0xffffffff)}, v{vBoff}")

def softmax_pair(a, P, E, tmp, dstp, dstm):
    t0, t1, t2, t3 = tmp, tmp + 1, tmp + 2, tmp + 3
    a(f"v_max3_f32 v{t0}, v{P}, v{P+1}, v{P+2}", f"v_max3_f32 v{t1}, -v{P}, -v{P+1}, -v{P+2}")
    for i in range(3, 15, 2):
        a(f"v_max3_f32 v{t0}, v{t0}, v{P+i}, v{P+i+1}", f"v_max3_f32 v{t1}, v{t1}, -v{P+i}, -v{P+i+1}")
    a(f"v_max_f32 v{t0}, v{t0}, v{P+15}", f"v_max_f32_e64 v{t1}, v{t1}, -v{P+15}", "s_nop 1",
      f"v_permlane32_swap_b32 v{t0}, v{t1}", f"v_max_f32 v{t0}, v{t0}, v{t1}",
      f"v_mul_f32 v{t0}, s{sT0+4}, v{t0}", f"v_mov_b32 v{t2}, v{t0}", "s_nop 1",
      f"v_permlane32_swap_b32 v{t0}, v{t2}")
    for i in range(0, 16, 2):
        a(f"v_pk_fma_f32 {vr(E+i,2)}, {vr(P+i,2)}, s[{sT0+4}:{sT0+5}], {vr(t0,2)} op_sel_hi:[1,1,0] neg_lo:[0,0,1] neg_hi:[0,0,1]")
    for i in range(0, 16, 2):
        a(f"v_pk_fma_f32 {vr(P+i,2)}, {vr(P+i,2)}, s[{sT0+4}:{sT0+5}], {vr(t2,2)} op_sel_hi:[1,1,0] neg_lo:[1,0,1] neg_hi:[1,0,1]")
    for i in range(16):
        a(f"v_exp_f32 v{E+i}, v{E+i}")
    for i in range(16):
        a(f"v_exp_f32 v{P+i}, v{P+i}")
    a(f"v_pk_add_f32 {vr(t0,2)}, {vr(E,2)}, {vr(E+2,2)}", f"v_pk_add_f32 {vr(t2,2)}, {vr(P,2)}, {vr(P+2,2)}")
    for i in range(4, 16, 2):
        a(f"v_pk_add_f32 {vr(t0,2)}, {vr(t0,2)}, {vr(E+i,2)}", f"v_pk_add_f32 {vr(t2,2)}, {vr(t2,2)}, {vr(P+i,2)}")
    a(f"v_add_f32 v{t0}, v{t0}, v{t1}", f"v_add_f32 v{t2}, v{t2}, v{t3}", "s_nop 1",
      f"v_permlane32_swap_b32 v{t0}, v{t2}", f"v_add_f32 v{t0}, v{t0}, v{t2}", f"v_rcp_f32 v{t0}, v{t0}", "s_nop 0",
      f"v_mov_b32 v{t2}, v{t0}", "s_nop 1", f"v_permlane32_swap_b32 v{t0}, v{t2}")
    for i in range(0, 16, 2):
        a(f"v_pk_mul_f32 {vr(P+i,2)}, {vr(P+i,2)}, {vr(t2,2)} op_sel_hi:[1,0]")
    for i in range(0, 16, 2):
        a(f"v_pk_mul_f32 {vr(E+i,2)}, {vr(E+i,2)}, {vr(t0,2)} op_sel_hi:[1,0]")
    for i in range(7, -1, -1):
        a(f"v_cvt_pk_bf16_f32 v{dstm+i}, v{P+2*i}, v{P+2*i+1}")
    for i in range(8):
        a(f"v_cvt_pk_bf16_f32 v{dstp+i}, v{E+2*i}, v{E+2*i+1}")

def k1_qkv(a):
    a.label("L1_qkv")
    srd(a, sB, sP + 2, -4096, 1024 * 6144 + 4096)
    a(f"s_lshl_b32 s{sT0+6}, s{sIDX}, 7")
    k1_b_offsets(a, 6144, 2048, sT0 + 6)
    srd(a, sKV, sP + 4, 0, 65536)
    a(f"s_lshl_b32 s3, s{sIDX}, 12", f"s_lshl_b32 s72, s{sW}, 10", "s_add_u32 s3, s3, s72",
      f"s_add_u32 m0, s72, {LDS_WPHI}", f"v_lshlrev_b32 v{vT}, 4, v{vL}",
      f"buffer_load_dwordx4 v{vT}, s[{sKV}:{sKV+3}], s3 offen lds")
    srd(a, sKV, sP + 18, WS_KV, KV_SIZE)
    srd(a, sZ, sP + 18, WS_Z, Z_SIZE)
    a(f"v_lshrrev_b32 v{vT+1}, 5, v{vL}", f"v_lshlrev_b32 v{vT}, 9, v{vT+1}",
      f"v_bfe_u32 v{vT+1}, v{vL}, 2, 2", f"v_lshl_add_u32 v{vT}, v{vT+1}, 6, v{vT}",
      f"v_bfe_u32 v{vT+1}, v{vL}, 4, 1", f"v_lshl_add_u32 v{vT}, v{vT+1}, 5, v{vT}",
      f"v_and_b32 v{vT+1}, 3, v{vL}", f"v_lshl_add_u32 v{vT}, v{vT+1}, 3, v{vT}",
      f"s_lshl_b32 s3, s{sNH}, 11", f"s_add_u32 s3, s3, {LDS_WPHI}", f"v_add_u32 v{vT}, s3, v{vT}")
    acc = k1_mainloop(a, False)
    stamp(a, 3, 1)
    a.c("---- QKV epilogue")
    Q, K, V = 0, 64, 128
    T = 192
    a(f"s_mov_b32 s{sT0+4}, {hex(LOG2E)}", f"s_mov_b32 s{sT0+5}, {hex(LOG2E)}")
    vPW, vPR, vLin, vONE, vZo, tmp = 224, 228, 230, 232, 231, 236
    a(f"v_and_b32 v{tmp}, 31, v{vL}", f"v_lshrrev_b32 v{tmp+1}, 5, v{vL}",
      f"v_bfe_u32 v{tmp+2}, v{vL}, 1, 1", f"v_lshlrev_b32 v{tmp+2}, 2, v{tmp+2}",
      f"v_bfe_u32 v{tmp+3}, v{vL}, 2, 1", f"v_lshl_or_b32 v{tmp+2}, v{tmp+3}, 1, v{tmp+2}",
      f"v_and_b32 v{tmp+3}, 1, v{vL}", f"v_or_b32 v{tmp+2}, v{tmp+3}, v{tmp+2}",
      f"v_xor_b32 v{tmp+2}, v{tmp+2}, v{tmp+1}", f"v_lshlrev_b32 v{tmp+2}, 4, v{tmp+2}",
      f"v_lshl_add_u32 v{vPW}, v{tmp}, 7, v{tmp+2}", f"s_lshl_b32 s3, s{sW}, 14", f"v_add_u32 v{vPW}, s3, v{vPW}")
    for i in range(1, 4):
        a(f"v_xor_b32 v{vPW+i}, {i*32}, v{vPW}")
    a(f"v_bfe_u32 v{tmp}, v{vL}, 2, 2",
      f"v_lshlrev_b32 v{vPR}, 10, v{tmp+1}", f"v_lshl_add_u32 v{vPR}, v{tmp}, 7, v{vPR}",
      f"v_lshrrev_b32 v{tmp+2}, 1, v{tmp}", f"v_lshlrev_b32 v{tmp+2}, 2, v{tmp+2}", f"v_and_b32 v{tmp+3}, 1, v{tmp}", f"v_or_b32 v{tmp+2}, v{tmp+2}, v{tmp+3}",
      f"v_bfe_u32 v{tmp+3}, v{vL}, 4, 1", f"v_lshlrev_b32 v{tmp+3}, 1, v{tmp+3}", f"v_xor_b32 v{tmp+2}, v{tmp+2}, v{tmp+3}",
      f"v_and_b32 v{tmp+3}, 1, v{vL}", f"v_xor_b32 v{tmp+2}, v{tmp+2}, v{tmp+3}",
      f"v_lshl_add_u32 v{vPR}, v{tmp+2}, 4, v{vPR}",
      f"v_bfe_u32 v{tmp+3}, v{vL}, 1, 1", f"v_lshl_add_u32 v{vPR}, v{tmp+3}, 3, v{vPR}", f"v_add_u32 v{vPR}, s3, v{vPR}")
    vPRx = [vPR, 244, 245, 246]
    a(f"v_xor_b32 v244, 32, v{vPR}", f"v_xor_b32 v245, 64, v{vPR}", f"v_xor_b32 v246, 0x60, v{vPR}")
    a(f"v_lshlrev_b32 v{vLin}, 4, v{vL}")
    for i in range(4):
        a(f"v_mov_b32 v{vONE+i}, 0x3f803f80")
    a("s_barrier")
    WP = [ar(120, 4), ar(124, 4)]
    def to_frags(src, T0, what):
        for tbb in range(2):
            for dt in range(2):
                s = src + tbb * 8 + dt * 4
                d = T0 + (dt * 4 + tbb * 2 if what == "qk" else tbb * 4 + dt * 2)
                a(f"v_cvt_pk_bf16_f32 v{d}, v{s}, v{s+1}", f"v_cvt_pk_bf16_f32 v{d+1}, v{s+2}, v{s+3}")
        a("s_nop 0")
        for f in range(2):
            a(f"v_permlane16_swap_b32 v{T0+4*f}, v{T0+4*f+2}", f"v_permlane16_swap_b32 v{T0+4*f+1}, v{T0+4*f+3}")
    n = 0
    for X in (K, Q):
        for p in range(4):
            T0 = T + (n & 1) * 8; n += 1
            src = X + 16 * p
            to_frags(src, T0, "qk")
            a("s_nop 1")
            a(f"v_mfma_f32_32x32x16_bf16 {vr(src,16)}, {WP[0]}, {vr(T0,4)}, 0",
              f"v_mfma_f32_32x32x16_bf16 {vr(src,16)}, {WP[1]}, {vr(T0+4,4)}, {vr(src,16)}")
    for p in range(4):
        src = V + 16 * p
        to_frags(src, T + 16, "v")
        for i in range(8):
            a(f"v_mov_b32 v{src+i}, v{T+16+i}")
    KVa, Za = [128, 144], [160, 176]
    for p in range(4):
        P = K + 16 * p
        softmax_pair(a, P, T, tmp, T + 16, P + 8)
        for sign in range(2):
            for qq in range(2):
                src = (T + 16 if sign == 0 else P + 8) + qq * 4
                a(f"ds_write_b128 v{vPW+sign*2+qq}, {vr(src,4)} offset:{p*4096}")
        a("s_waitcnt lgkmcnt(0)")
        fb = (p & 1) * 16
        for sign in range(2):
            for ks in range(2):
                for jj in range(2):
                    a(f"ds_read_b64_tr_b16 {ar(fb+sign*8+ks*4+jj*2,2)}, v{vPRx[sign*2+jj]} offset:{p*4096+ks*2048+jj*512}")
        a("s_waitcnt lgkmcnt(0)")
        for ks in range(2):
            for sign in range(2):
                A = ar(fb + sign * 8 + ks * 4, 4)
                first = (p == 0 and ks == 0)
                a(f"v_mfma_f32_32x32x16_bf16 {ar(KVa[sign],16)}, {A}, {vr(V+16*p+4*ks,4)}, {'0' if first else ar(KVa[sign],16)}")
                a(f"v_mfma_f32_32x32x16_bf16 {ar(Za[sign],16)}, {A}, {vr(vONE,4)}, {'0' if first else ar(Za[sign],16)}")
    stamp(a, 6, 1)
    a.c("pair reduction through LDS: wave th keeps sign th")
    XR = 65536
    a(f"s_lshl_b32 s3, s{sW}, 13", f"s_add_u32 s3, s3, {XR}", f"v_add_u32 v{tmp}, s3, v{vLin}",
      f"s_xor_b32 s3, s3, 0x4000", f"v_add_u32 v{tmp+1}, s3, v{vLin}")
    a(f"s_cmp_eq_u32 s{sTH}, 0", "s_cbranch_scc1 L1q_th0")
    for th in (1, 0):
        if th == 0:
            a.label("L1q_th0")
        a("s_nop 7", "s_nop 3")
        for i in range(4):
            a(f"ds_write_b128 v{tmp}, {ar(KVa[1-th]+4*i,4)} offset:{i*1024}")
        for i in range(4):
            a(f"ds_write_b128 v{tmp}, {ar(Za[1-th]+4*i,4)} offset:{4096+i*1024}")
        for i in range(16):
            a(f"v_accvgpr_read_b32 v{K+i}, a{KVa[th]+i}")
        for i in range(16):
            a(f"v_accvgpr_read_b32 v{K+16+i}, a{Za[th]+i}")
        if th == 1:
            a("s_branch L1q_thj")
    a.label("L1q_thj")
    a("s_waitcnt lgkmcnt(0)", "s_barrier")
    for i in range(8):
        a(f"ds_read_b128 {vr(K+32+4*i,4)}, v{tmp+1} offset:{i*1024}")
    a(f"s_lshl_b32 s72, s{sIDX}, 2", f"s_lshl_b32 s3, s{sNH}, 1", "s_add_u32 s72, s72, s3", f"s_add_u32 s72, s72, s{sTH}",
      f"s_lshl_b32 s73, s72, 3", f"s_add_u32 s73, s73, s{sMT}",
      "s_lshl_b32 s74, s73, 12", "s_lshl_b32 s75, s73, 7",
      f"v_lshrrev_b32 v{vZo}, 5, v{vL}", f"v_lshlrev_b32 v{vZo}, 6, v{vZo}",
      f"v_and_b32 v{tmp+2}, 31, v{vL}", f"v_lshl_add_u32 v{vZo}, v{tmp+2}, 24, v{vZo}")
    a("s_waitcnt lgkmcnt(0)")
    for i in range(0, 32, 2):
        a(f"v_pk_add_f32 {vr(K+i,2)}, {vr(K+i,2)}, {vr(K+32+i,2)}")
    for i in range(4):
        a(f"buffer_store_dwordx4 {vr(K+4*i,4)}, v{vLin}, s[{sKV}:{sKV+3}], s74 offen offset:{i*1024} sc1")
    for i in range(4):
        a(f"buffer_store_dwordx4 {vr(K+16+4*i,4)}, v{vZo}, s[{sZ}:{sZ+3}], s75 offen offset:{i*16} sc1")
    def qsoft(p):
        P = Q + 16 * p
        softmax_pair(a, P, T, tmp, P, P + 8)
    qsoft(0)
    srd(a, 76, sP + 16, 0, 256)
    a("s_lshl_b32 s3, s72, 2", f"v_lshlrev_b32 v{tmp+5}, 12, v{vL}", f"v_add_u32 v{tmp+5}, s3, v{tmp+5}", f"v_mov_b32 v{tmp+6}, s3", f"v_mov_b32 v{tmp+4}, 1")
    a("s_waitcnt vmcnt(0)")
    a(f"buffer_atomic_add v{tmp+4}, v{tmp+5}, s[76:79], 0 offen sc1")
    stamp(a, 7, 1)
    qsoft(1)
    qsoft(2)
    a("s_mov_b32 s80, 0")
    a.label("L1q_poll")
    a(f"buffer_load_dword v{tmp+4}, v{tmp+6}, s[76:79], 0 offen sc1", "s_waitcnt vmcnt(0)",
      f"v_readfirstlane_b32 s3, v{tmp+4}", "s_add_u32 s80, s80, 1", "s_cmp_ge_u32 s80, 0x40000", "s_cbranch_scc1 L1q_go",
      "s_cmp_lt_u32 s3, 8", "s_cbranch_scc1 L1q_poll")
    a.label("L1q_go")
    stamp(a, 8, 1)
    a("s_lshl_b32 s74, s72, 15", "s_lshl_b32 s75, s72, 10")
    vZ = 248
    a(f"buffer_load_dwordx4 {vr(vZ,4)}, v{vLin}, s[{sZ}:{sZ+3}], s75 offen sc1")
    for m in range(8):
        for i in range(4):
            a(f"buffer_load_dwordx4 {vr(K+16*m+4*i,4)}, v{vLin}, s[{sKV}:{sKV+3}], s74 offen offset:{i*1024} sc1")
        if m < 7:
            a("s_add_u32 s74, s74, 4096")
    qsoft(3)
    X2 = 98304
    a(f"s_mul_i32 s3, s{sNH}, 4352", f"s_add_u32 s3, s3, {X2}", f"s_lshl_b32 s73, s{sTH}, 11", "s_add_u32 s73, s73, s3",
      f"v_add_u32 v{tmp}, s73, v{vLin}",
      f"v_add_u32 v{tmp+1}, s3, v{vLin}",
      f"s_lshl_b32 s73, s{sTH}, 6", "s_add_u32 s73, s73, s3", "s_add_u32 s73, s73, 4096",
      f"v_and_b32 v{tmp+2}, 7, v{vL}", f"v_lshlrev_b32 v{tmp+2}, 3, v{tmp+2}", f"v_add_u32 v{tmp+2}, s73, v{tmp+2}",
      f"v_lshrrev_b32 v{tmp+3}, 5, v{vL}", f"v_lshlrev_b32 v{tmp+3}, 5, v{tmp+3}", "s_add_u32 s3, s3, 4096", f"v_add_u32 v{tmp+3}, s3, v{tmp+3}")
    a("s_waitcnt vmcnt(32)")
    for i in range(4):
        a(f"v_add_f32_dpp v{vZ+i}, v{vZ+i}, v{vZ+i} row_ror:8 row_mask:0xf bank_mask:0xf")
    for pl in ("v_permlane16_swap_b32", "v_permlane32_swap_b32"):
        for i in range(4):
            a(f"v_mov_b32 v{T+i}, v{vZ+i}")
        a("s_nop 0")
        for i in range(4):
            a(f"{pl} v{vZ+i}, v{T+i}")
        for i in range(4):
            a(f"v_add_f32 v{vZ+i}, v{vZ+i}, v{T+i}")
    a(f"v_cvt_pk_bf16_f32 v{vZ}, v{vZ}, v{vZ+1}", f"v_cvt_pk_bf16_f32 v{vZ+1}, v{vZ+2}, v{vZ+3}",
      f"ds_write_b64 v{tmp+2}, {vr(vZ,2)}")
    for m in range(1, 8):
        a(f"s_waitcnt vmcnt({28-4*m})")
        for i in range(0, 16, 2):
            a(f"v_pk_add_f32 {vr(K+i,2)}, {vr(K+i,2)}, {vr(K+16*m+i,2)}")
    for i in range(8):
        a(f"v_cvt_pk_bf16_f32 v{T+i}, v{K+2*i}, v{K+2*i+1}")
    a(f"ds_write_b128 v{tmp}, {vr(T,4)}", f"ds_write_b128 v{tmp}, {vr(T+4,4)} offset:1024")
    a("s_waitcnt lgkmcnt(0)", "s_barrier")
    for sign in range(2):
        for s in range(2):
            a(f"ds_read_b128 {ar(sign*8+s*4,4)}, v{tmp+1} offset:{sign*2048+s*1024}")
            a(f"ds_read_b128 {ar(16+sign*8+s*4,4)}, v{tmp+3} offset:{sign*64+s*16}")
    stamp(a, 9, 1)
    a(f"v_bfe_u32 v{tmp}, v{vL}, 4, 1", f"s_mov_b32 s3, {HO_TB}", f"v_mul_lo_u32 v{tmp}, v{tmp}, s3",
      f"v_lshrrev_b32 v{tmp+1}, 5, v{vL}", f"v_lshl_add_u32 v{tmp}, v{tmp+1}, 8, v{tmp}",
      f"v_and_b32 v{tmp+1}, 15, v{vL}", f"v_lshl_add_u32 v{tmp}, v{tmp+1}, 4, v{tmp}",
      f"s_lshl_b32 s3, s{sMT}, 4", f"s_lshl_b32 s73, s{sTH}, 3", "s_add_u32 s3, s3, s73", f"s_mul_i32 s3, s3, {HO_TB}",
      f"s_lshl_b32 s73, s{sIDX}, 1", f"s_add_u32 s73, s73, s{sNH}", "s_add_u32 s73, s73, 112", "s_lshl_b32 s73, s73, 10", "s_add_u32 s73, s73, s3",
      "s_mov_b32 s74, 0x358637bd")
    a("s_waitcnt lgkmcnt(0)")
    def nd(p):
        N = K + 32 * p; D = N + 16
        k = 0
        for sign in range(2):
            for s in range(2):
                B = vr(Q + 16 * p + sign * 8 + s * 4, 4)
                a(f"v_mfma_f32_32x32x16_bf16 {vr(N,16)}, {ar(sign*8+s*4,4)}, {B}, {'0' if k == 0 else vr(N,16)}")
                a(f"v_mfma_f32_32x32x16_bf16 {vr(D,16)}, {ar(16+sign*8+s*4,4)}, {B}, {'0' if k == 0 else vr(D,16)}")
                k += 1
    def fin(p):
        N = K + 32 * p; D = N + 16
        a(f"v_add_f32 v{D}, s74, v{D}", f"v_rcp_f32 v{D}, v{D}", "s_nop 0")
        for i in range(0, 16, 2):
            a(f"v_pk_mul_f32 {vr(N+i,2)}, {vr(N+i,2)}, {vr(D,2)} op_sel_hi:[1,0]")
        for i in range(8):
            a(f"v_cvt_pk_bf16_f32 v{N+i}, v{N+2*i}, v{N+2*i+1}")
        for s in range(2):
            a(f"buffer_store_dwordx4 {vr(N+4*s,4)}, v{tmp}, s[{sHO}:{sHO+3}], s73 offen offset:{s*512}")
        a(f"s_add_u32 s73, s73, {2*HO_TB}")
    nd(0); nd(1); a("s_nop 3"); fin(0); nd(2); a("s_nop 3"); fin(1); nd(3); a("s_nop 3"); fin(2); a("s_nop 3"); fin(3)
    stamp(a, 4, 1)
    if OPT["stamp"]:
        a("s_waitcnt vmcnt(0)")
        stamp(a, 5, 1)
    a("s_endpgm")

def k1():
    a = Asm()
    a.label("gemm1_kernel")
    a("s_cmp_ge_u32 s2, 256", "s_cbranch_scc1 L1_end")
    a(f"s_load_dwordx16 s[{sP+2}:{sP+17}], s[0:1], 8" if False else "")
    for i in range(10):
        a(f"s_load_dwordx2 s[{sP+2*i}:{sP+2*i+1}], s[0:1], {8*i}")
    a(f"v_and_b32 v{vL}, 63, v0", "v_lshrrev_b32 v1, 6, v0", "s_nop 0", f"v_readfirstlane_b32 s{sW}, v1")
    a("s_and_b32 s3, s2, 1", f"s_lshl_b32 s{sMT}, s3, 2", "s_bfe_u32 s3, s2, 0x20003", f"s_add_u32 s{sMT}, s{sMT}, s3",
      "s_bfe_u32 s3, s2, 0x20001", f"s_lshl_b32 s{sIDX}, s3, 2", "s_bfe_u32 s3, s2, 0x20005", f"s_add_u32 s{sIDX}, s{sIDX}, s3",
      f"s_lshr_b32 s{sTH}, s{sW}, 1", f"s_and_b32 s{sNH}, s{sW}, 1")
    a(f"v_lshrrev_b32 v{vT}, 3, v{vL}", f"s_lshl_b32 s3, s{sW}, 6", f"v_add_u32 v{vT}, s3, v{vT}", f"v_lshlrev_b32 v{vT}, 11, v{vT}",
      f"v_lshrrev_b32 v{vT+1}, 4, v{vL}", f"v_and_b32 v{vT+2}, 7, v{vL}", f"v_xor_b32 v{vT+1}, v{vT+1}, v{vT+2}",
      f"v_lshl_add_u32 v{vAoff}, v{vT+1}, 4, v{vT}", f"v_xor_b32 v{vT+3}, 64, v{vAoff}")
    for i in range(1, 8):
        src = vAoff if i % 2 == 0 else vT + 3
        a(f"v_add_u32 v{vAoff+i}, {i*16384-(i&3)*1024}, v{src}")
    a(f"v_and_b32 v{vT}, 15, v{vL}", f"s_lshl_b32 s3, s{sTH}, 7", f"v_add_u32 v{vT}, s3, v{vT}", f"v_lshlrev_b32 v{vT}, 7, v{vT}",
      f"v_lshrrev_b32 v{vT+1}, 4, v{vL}", f"v_bfe_u32 v{vT+2}, v{vL}, 1, 3", f"v_xor_b32 v{vT+1}, v{vT+1}, v{vT+2}",
      f"v_lshl_add_u32 v{vXa}, v{vT+1}, 4, v{vT}", f"v_xor_b32 v{vXa+1}, 64, v{vXa}")
    a(f"v_lshrrev_b32 v{vT}, 4, v{vL}", f"v_mul_u32_u24 v{vWa}, 3072, v{vT}", f"v_and_b32 v{vT}, 1, v{vT}",
      f"v_bfe_u32 v{vT+1}, v{vL}, 3, 1", f"v_lshl_or_b32 v{vT}, v{vT+1}, 1, v{vT}",
      f"s_lshl_b32 s3, s{sNH}, 1", f"v_xor_b32 v{vT}, s3, v{vT}", f"v_lshl_add_u32 v{vWa}, v{vT}, 5, v{vWa}",
      f"v_bfe_u32 v{vT+1}, v{vL}, 2, 2", f"v_lshl_add_u32 v{vWa}, v{vT+1}, 7, v{vWa}",
      f"v_and_b32 v{vT+1}, 3, v{vL}", f"v_lshl_add_u32 v{vWa}, v{vT+1}, 3, v{vWa}",
      f"v_add_u32 v{vWa}, {G2}, v{vWa}", f"v_xor_b32 v{vWa+1}, 32, v{vWa}")
    a("s_waitcnt lgkmcnt(0)")
    stamp_setup(a, 1, sP + 18, sW)
    stamp(a, 0, 1)
    a(f"s_lshl_b32 s3, s{sMT}, 19", f"s_add_u32 s3, s3, {hex(WS_XN)}" if WS_XN else "")
    srd(a, sA, sP + 18, "s3", 256 * 2048)
    srd(a, sHO, sP + 18, WS_HO, HO_SIZE)
    a("s_cmp_ge_u32 s2, 128", "s_cbranch_scc1 L1_ffn")
    k1_qkv(a)
    k1_ffn(a)
    a.label("L1_end")
    a("s_endpgm")
    return a

K2_LDS = 65536 + 16384
def k2():
    a = Asm()
    a.label("gemm2_kernel")
    a("s_cmp_ge_u32 s2, 256", "s_cbranch_scc1 L2_end")
    for i in (0, 3, 6, 7, 9):
        a(f"s_load_dwordx2 s[{sP+2*i}:{sP+2*i+1}], s[0:1], {8*i}")
    sX0, sX1, sSo, sM0, sNT = 31, 32, 33, 34, 41
    sXs, sO = 20, 24
    vDo, vR1, vR2, vXo, vXg, vEw, vEr = 224, 228, 232, 236, 237, 238, 242
    T = 244
    a(f"v_and_b32 v{vL}, 63, v0", "v_lshrrev_b32 v1, 6, v0", "s_nop 0", f"v_readfirstlane_b32 s{sW}, v1")
    a("s_and_b32 s3, s2, 3", f"s_lshl_b32 s{sMT}, s3, 2", "s_bfe_u32 s3, s2, 0x20003", f"s_add_u32 s{sMT}, s{sMT}, s3",
      "s_bfe_u32 s3, s2, 0x10002", f"s_lshl_b32 s{sNT}, s3, 3", "s_bfe_u32 s3, s2, 0x30005", f"s_add_u32 s{sNT}, s{sNT}, s3")
    a(f"v_lshrrev_b32 v{T}, 3, v{vL}", f"s_lshl_b32 s3, s{sW}, 5", f"v_add_u32 v{T}, s3, v{T}", f"v_lshlrev_b32 v{vXg}, 11, v{T}",
      f"v_lshrrev_b32 v{T+1}, 4, v{vL}", f"v_lshlrev_b32 v{T+1}, 1, v{T+1}", f"v_and_b32 v{T+2}, 7, v{vL}", f"v_xor_b32 v{T+1}, v{T+1}, v{T+2}",
      f"v_lshl_add_u32 v{vDo}, v{T+1}, 4, v{vXg}", f"s_lshl_b32 s3, s{sNT}, 7", f"v_add_u32 v{vDo}, s3, v{vDo}",
      f"v_lshl_add_u32 v{vXg}, v{T+2}, 4, v{vXg}", f"s_lshl_b32 s42, s{sMT}, 18", "s_add_u32 s3, s3, s42", f"v_add_u32 v{vXg}, s3, v{vXg}")
    for i in range(1, 4):
        a(f"v_add_u32 v{vDo+i}, {i*16384-i*1024}, v{vDo}")
    a(f"v_bfe_u32 v{T}, v{vL}, 2, 3", f"v_lshlrev_b32 v{vR1}, 7, v{T}", f"v_lshrrev_b32 v{T}, 1, v{T}", f"v_lshl_add_u32 v{vR1}, v{T}, 5, v{vR1}",
      f"v_and_b32 v{T}, 3, v{vL}", f"v_lshl_add_u32 v{vR1}, v{T}, 3, v{vR1}",
      f"v_lshrrev_b32 v{T}, 5, v{vL}", f"v_lshl_add_u32 v{vR2}, v{T}, 11, v{vR1}", f"v_lshl_add_u32 v{vR1}, v{T}, 10, v{vR1}")
    for q in range(1, 4):
        a(f"v_xor_b32 v{vR1+q}, {q*32}, v{vR1}", f"v_xor_b32 v{vR2+q}, {q*32}, v{vR2}")
    a(f"v_lshlrev_b32 v{vXo}, 4, v{vL}")
    a(f"v_and_b32 v{T}, 15, v{vL}", f"v_lshlrev_b32 v{vEw}, 7, v{T}", f"v_and_b32 v{T}, 7, v{vL}", f"v_lshrrev_b32 v{T+1}, 5, v{vL}",
      f"v_xor_b32 v{T}, v{T}, v{T+1}", f"v_lshl_add_u32 v{vEw}, v{T}, 4, v{vEw}", f"v_bfe_u32 v{T}, v{vL}, 4, 1", f"v_lshl_add_u32 v{vEw}, v{T}, 3, v{vEw}",
      f"s_lshl_b32 s3, s{sW}, 12", "s_add_u32 s3, s3, 65536", f"v_add_u32 v{vEw}, s3, v{vEw}",
      f"v_lshrrev_b32 v{T}, 3, v{vL}", f"v_and_b32 v{T+1}, 7, v{vL}", f"v_xor_b32 v{T+1}, v{T}, v{T+1}", f"v_lshlrev_b32 v{vEr}, 7, v{T}",
      f"v_lshl_add_u32 v{vEr}, v{T+1}, 4, v{vEr}", f"v_add_u32 v{vEr}, s3, v{vEr}")
    for q in range(1, 4):
        a(f"v_xor_b32 v{vEw+q}, {q*32}, v{vEw}")
    a("s_waitcnt lgkmcnt(0)")
    stamp_setup(a, 2, sP + 18, sW)
    stamp(a, 0, 2)
    srd(a, sA, sP + 18, WS_HO, HO_SIZE)
    srd(a, sB, sP + 12, 0, 3584 * 2048)
    srd(a, sXs, sP + 0, 0, 2048 * 2048)
    srd(a, sO, sP + 14, 0, 2048 * 2048)
    a(f"s_lshl_b32 s3, s{sMT}, 3", f"s_lshl_b32 s42, s{sW}, 1", "s_add_u32 s3, s3, s42", f"s_mul_i32 s{sX0}, s3, {HO_TB}",
      f"s_add_u32 s{sX1}, s{sX0}, {HO_TB}", f"s_mov_b32 s{sSo}, 0", f"s_lshl_b32 s{sM0}, s{sW}, 12",
      "s_mov_b32 s71, 0x4000", "s_mov_b32 s72, 0x8000", "s_mov_b32 s73, 0xc000")
    OUT, S, XR = 0, 32, 64
    WF = 128
    trace = []
    def xload(t, j):
        return [("vm", f"buffer_load_dwordx4 {ar((t&3)*32+j*8+tb*4,4)}, v{vXo}, s[{sA}:{sA+3}], s{sX0+tb} offen offset:{j*1024}", ("X", t, j)) for tb in range(2)]
    def xadv():
        return [f"s_add_u32 s{sX0}, s{sX0}, 4096", f"s_add_u32 s{sX1}, s{sX1}, 4096"]
    def dma(t, i):
        return ("vm", f"buffer_load_dwordx4 v{vDo+i}, s[{sB}:{sB+3}], s{sSo} offen offset:{i*1024} lds", ("D", t))
    def m0(t):
        return f"s_add_u32 m0, s{sM0}, {(t&3)*16384}"
    def soadv():
        return f"s_add_u32 s{sSo}, s{sSo}, 0x40000"
    def reads(t, j, typ):
        st = WF + (j & 1) * 16
        R = vR1 if typ == 1 else vR2
        return [f"ds_read_b64_tr_b16 {ar(st+q*4+jj*2,2)}, v{R+q} offset:{(t&3)*16384+j*4096+jj*(2048 if typ == 1 else 1024)}"
                for q in range(4) for jj in range(2)]
    def step(t, j):
        typ = 1 if t < 28 else 2
        acc = OUT if t < 28 else S
        st = WF + (j & 1) * 16
        m = [f"v_mfma_f32_16x16x32_bf16 {vr(acc+(tb*4+q)*4,4)}, {ar(st+q*4,4)}, {ar((t&3)*32+j*8+tb*4,4)}, {vr(acc+(tb*4+q)*4,4)}"
             for q in range(4) for tb in range(2)]
        fill = {}
        need = [("X", t, j)]
        lastst = (t == 35 and j == 3)
        if j == 3 and not lastst:
            need.append(("D", t + 1))
        fill[-1] = [("wait", (t if t >= 28 else t & 3, j), need)]
        if j == 3 and not lastst:
            fill[-1].append("s_barrier")
        if not lastst:
            nt, nj = (t, j + 1) if j < 3 else (t + 1, 0)
            spread(reads(nt, nj, typ), list(range(8)), fill)
        td = t + 4 if j == 3 else t + 3
        if td <= 35:
            i = (j + 1) & 3
            if i == 0:
                if t < 28 and (t & 3) == 0:
                    fill.setdefault(0, []).extend([f"s_cmp_eq_u32 s{sCnt}, 6", f"s_cselect_b32 s{sB}, s{sP+6}, s{sB}"])
                    fill.setdefault(1, []).extend([f"s_cselect_b32 s{sB+1}, s{sP+7}, s{sB+1}", f"s_cselect_b32 s{sB+2}, s74, s{sB+2}"])
                    fill.setdefault(2, []).extend([f"s_cselect_b32 s{sSo}, 0, s{sSo}"])
                fill.setdefault(2, []).append(m0(td))
            fill.setdefault(4, []).append(dma(td, i))
            if i == 3:
                fill.setdefault(5, []).append(soadv())
        if t + 4 <= 35:
            fill.setdefault(7, []).extend(xload(t + 4, j))
            if j == 3:
                fill[7].extend(xadv())
        return weave(m, fill)
    pro = []
    for i in range(4):
        so = "0" if i == 0 else f"s{70+i}"
        pro.append(("vm", f"buffer_load_dwordx4 {vr(XR+4*i,4)}, v{vXg}, s[{sXs}:{sXs+3}], {so} offen", ("x",)))
    for t in range(4):
        if t < 3:
            pro += [m0(t), "s_nop 0"] + [dma(t, i) for i in range(4)] + [soadv()]
        for j in range(4):
            pro += xload(t, j)
        pro += xadv()
    pro += [f"v_mov_b32 v{i}, 0" for i in range(64)]
    pro += ["s_mov_b32 s74, 0x200000", ("wait", "pro", [("D", 0)]), "s_barrier"] + reads(0, 0, 1) + [m0(3), "s_nop 0", dma(3, 0)]
    pro += [f"s_mov_b32 s{sCnt}, 0"]
    dyn = list(pro)
    for t in range(36):
        for j in range(4):
            dyn += step(t, j)
    cnt = {}
    issued = []
    for it in dyn:
        if isinstance(it, tuple) and it[0] == "vm":
            issued.append(it[2])
        elif isinstance(it, tuple) and it[0] == "wait":
            last = max(i for i, tg in enumerate(issued) if tg in it[2])
            n = len(issued) - 1 - last
            cnt[it[1]] = min(cnt.get(it[1], 63), n)
    def emit(items):
        for it in items:
            if isinstance(it, tuple):
                if it[0] == "vm":
                    a(it[1])
                else:
                    a(f"s_waitcnt vmcnt({cnt[it[1]]}) lgkmcnt(0)")
            else:
                a(it)
    emit(pro)
    a(".p2align 6")
    a.label("L2_loop")
    for t in range(4):
        for j in range(4):
            emit(step(t, j))
    a(f"s_add_u32 s{sCnt}, s{sCnt}, 1", f"s_cmp_lg_u32 s{sCnt}, 7", "s_cbranch_scc1 L2_loop")
    stamp(a, 2, 2)
    a("s_waitcnt lgkmcnt(0)")
    a(reads(28, 0, 2))
    for t in range(28, 36):
        for j in range(4):
            emit(step(t, j))
    stamp(a, 3, 2)
    a.c("---- epilogue")
    a(f"s_mov_b32 s{sT0+4}, {hex(NLOG2E)}", f"s_mov_b32 s{sT0+5}, {hex(NLOG2E)}", "s_mov_b32 s48, 0xffff0000")
    E = 96
    for i in range(0, 32, 2):
        a(f"v_pk_mul_f32 {vr(E+i,2)}, {vr(OUT+i,2)}, s[{sT0+4}:{sT0+5}]")
    for i in range(32):
        a(f"v_exp_f32 v{E+i}, v{E+i}")
    for i in range(0, 32, 2):
        a(f"v_pk_add_f32 {vr(E+i,2)}, {vr(E+i,2)}, 1.0 op_sel_hi:[1,0]")
    for i in range(32):
        a(f"v_rcp_f32 v{E+i}, v{E+i}")
    for i in range(0, 32, 2):
        a(f"v_pk_mul_f32 {vr(OUT+i,2)}, {vr(OUT+i,2)}, {vr(S+i,2)}")
    for i in range(0, 32, 2):
        a(f"v_pk_mul_f32 {vr(E+i,2)}, {vr(E+i,2)}, {vr(OUT+i,2)}")
    for i in range(16):
        a(f"v_cvt_pk_bf16_f32 v{OUT+i}, v{E+2*i}, v{E+2*i+1}")
    for tb in range(2):
        for q in range(4):
            a(f"ds_write_b64 v{vEw+q}, {vr(OUT+(tb*4+q)*2,2)} offset:{tb*2048}")
    a("s_waitcnt lgkmcnt(0)")
    for i in range(4):
        a(f"ds_read_b128 {vr(S+4*i,4)}, v{vEr} offset:{i*1024}")
    for i in range(16):
        a(f"v_lshlrev_b32 v{E+2*i}, 16, v{XR+i}", f"v_and_b32 v{E+2*i+1}, s48, v{XR+i}")
    if OPT.get("delta"):
        import struct
        dv = struct.unpack("<I", struct.pack("<f", OPT["delta"] * 1e-4))[0]
        for i in range(32):
            a(f"v_add_f32 v{E+i}, {hex(dv)}, v{E+i}")
    a("s_waitcnt lgkmcnt(0)")
    for i in range(4):
        for k in range(4):
            r = 4 * i + k
            a(f"v_lshlrev_b32 v{OUT}, 16, v{S+r}", f"v_and_b32 v{OUT+1}, s48, v{S+r}",
              f"v_pk_add_f32 {vr(E+2*r,2)}, {vr(E+2*r,2)}, {vr(OUT,2)}", f"v_cvt_pk_bf16_f32 v{XR+r}, v{E+2*r}, v{E+2*r+1}")
        so = "0" if i == 0 else f"s{70+i}"
        a(f"buffer_store_dwordx4 {vr(XR+4*i,4)}, v{vXg}, s[{sO}:{sO+3}], {so} offen")
    stamp(a, 4, 2)
    if OPT["stamp"]:
        a("s_waitcnt vmcnt(0)")
        stamp(a, 5, 2)
    a.label("L2_end")
    a("s_endpgm")
    return a

def touch(name, regions):
    a = Asm()
    a.label(name)
    a("s_cmp_ge_u32 s2, 256", f"s_cbranch_scc1 {name}_end")
    for n, (pi, off, size) in enumerate(regions):
        a(f"s_load_dwordx2 s[4:5], s[0:1], {8*pi}", "s_waitcnt lgkmcnt(0)")
        srd(a, 8, 4, off, size)
        per = size // 256
        a(f"s_mul_i32 s3, s2, {per}", "v_lshlrev_b32 v1, 4, v0", "v_add_u32 v1, s3, v1")
        for i in range(-(-per // 4096)):
            a(f"buffer_load_dwordx4 v[4:7], v1, s[8:11], 0 offen", "v_add_u32 v1, 0x1000, v1")
    a("s_waitcnt vmcnt(0)")
    a.label(name + "_end")
    a("s_endpgm")
    return a

def build():
    ks = [("ln_kernel", k0(), 64, 64, 0), ("gemm1_kernel", k1(), 256 + 192, 256, K1_LDS), ("gemm2_kernel", k2(), 256 + 160, 256, K2_LDS)]
    if OPT.get("tw2"):
        ks.insert(2, ("tw2_kernel", touch("tw2_kernel", [(6, 0, 3584*2048), (3, 0, 1024*2048)]), 64, 64, 0))
    if OPT.get("th"):
        ks.insert(2, ("th_kernel", touch("th_kernel", [(9, WS_HO, HO_SIZE)]), 64, 64, 0))
    if OPT.get("tw1"):
        ks.insert(1, ("tw1_kernel", touch("tw1_kernel", [(1, 0, 1024*6144), (5, 0, 1024*7168)]), 64, 64, 0))
    if OPT.get("tho"):
        ks.insert(1, ("tho_kernel", touch("tho_kernel", [(9, WS_HO, HO_SIZE)]), 64, 64, 0))
    out = ["; generated by gen/gen.py: layernorm -> (qkv+hedgehog attention | ffn1+silu) -> (ffn2, wo, gate, residual)"]
    for n, _, _, _, lds in ks:
        out.append(f"; @launch kernel={n} grid=(256,1,1) block=(256,1,1) lds={lds}")
    out.append('.amdgcn_target "amdgcn-amd-amdhsa--gfx950"')
    out.append(".text")
    bad = 0
    for n, a, _, _, _ in ks:
        for p in check_hazards(a.lines):
            print(f"HAZARD {n}: {p}", file=sys.stderr); bad += 1
        out += [f".globl {n}", ".p2align 8", f".type {n},@function", a.text()]
    out += ['.section .rodata,"a"']
    for n, _, v, acc, _ in ks:
        out += [".p2align 6", kernel_desc(n, v, acc)]
    return "\n".join(out), bad

if __name__ == "__main__":
    dst = f"cdna_kernels/{NAME}.s"
    for arg in sys.argv[1:]:
        if "=" in arg:
            k, v = arg.split("=")
            if k == "out": dst = v
            else: OPT[k] = int(v)
    txt, bad = build()
    open(dst, "w").write(txt)
    print("wrote", dst, len(txt), "bytes; hazards:", bad)
```

```python
import sys, os
sys.path.insert(0, os.path.dirname(os.path.abspath(__file__)))
from asmlib import *

NAME = "recurrent_scan__linear_kernel_hedgehog__dense_activation_silu__prompt"
WS_XN = 0
WS_HO = 0x400000
HO_STEPS = 144
HO_TB = HO_STEPS * 1024
HO_SIZE = 128 * HO_TB
WS_KV = 0x1600000
KV_SIZE = 32 * 2 * 8 * 4096
WS_Z = 0x1800000
Z_SIZE = 32 * 2 * 8 * 128
WS_FLAG = 0x1900000
FLAG_SIZE = 0x10000
FL_KV, FL_PART = 0, 0x2000
WS_PART = 0x1A00000
PART_SIZE = 128 * 65536
WS_STAMP = 0x3000000
LOG2E = 0x3fb8aa3b
NLOG2E = 0xbfb8aa3b

OPT = dict(stamp=0, k2map=1)

def srd(a, s, base, off, size):
    if off == 0:
        a(f"s_mov_b32 s{s}, s{base}", f"s_mov_b32 s{s+1}, s{base+1}")
    elif isinstance(off, int) and off < 0:
        a(f"s_sub_u32 s{s}, s{base}, {-off}", f"s_subb_u32 s{s+1}, s{base+1}, 0")
    else:
        o = off if isinstance(off, str) else hex(off)
        a(f"s_add_u32 s{s}, s{base}, {o}", f"s_addc_u32 s{s+1}, s{base+1}, 0")
    a(f"s_mov_b32 s{s+2}, {hex(size)}", f"s_mov_b32 s{s+3}, 0x20000")

def kernel_desc(name, vgpr, accum, sgpr=96):
    return f""".amdhsa_kernel {name}
  .amdhsa_next_free_vgpr {vgpr}
  .amdhsa_next_free_sgpr {sgpr}
  .amdhsa_accum_offset {accum}
  .amdhsa_group_segment_fixed_size 0
  .amdhsa_kernarg_size 80
  .amdhsa_user_sgpr_count 2
  .amdhsa_user_sgpr_kernarg_segment_ptr 1
  .amdhsa_system_sgpr_workgroup_id_x 1
  .amdhsa_float_denorm_mode_32 3
.end_amdhsa_kernel
"""

def stamp(a, idx, kern):
    if not OPT["stamp"]:
        return
    a("s_memrealtime s[90:91]", "s_memtime s[92:93]", "s_waitcnt lgkmcnt(0)", "v_mov_b32 v254, s90",
      f"buffer_store_dword v254, v253, s[84:87], 0 offen offset:{idx*4}", "v_mov_b32 v254, s92",
      f"buffer_store_dword v254, v253, s[84:87], 0 offen offset:{64+idx*4}")

def stamp_setup(a, kern, wsreg, wave_s):
    if not OPT["stamp"]:
        return
    srd(a, 84, wsreg, WS_STAMP + kern * 0x40000, 0x40000)
    a("s_lshl_b32 s90, s2, 2", f"s_add_u32 s90, s90, s{wave_s}", "s_lshl_b32 s90, s90, 7", "v_mov_b32 v253, s90")

def k0():
    a = Asm()
    a.label("ln_kernel")
    a("s_cmp_ge_u32 s2, 256", "s_cbranch_scc1 L0_end")
    a("s_load_dwordx2 s[4:5], s[0:1], 0", "s_load_dwordx2 s[6:7], s[0:1], 72")
    a("v_lshrrev_b32 v1, 6, v0", "v_and_b32 v2, 63, v0")
    a("s_lshl_b32 s3, s2, 14")
    a("v_lshlrev_b32 v1, 12, v1", "v_lshl_add_u32 v1, v2, 4, v1", "v_add_u32 v1, s3, v1")
    a("s_waitcnt lgkmcnt(0)")
    srd(a, 8, 4, 0, 2048 * 2048)
    srd(a, 12, 6, WS_XN, 2048 * 2048)
    for r in range(2):
        for h in range(2):
            a(f"buffer_load_dwordx4 {vr(4+8*r+4*h,4)}, v1, s[8:11], 0 offen offset:{r*2048+h*1024}")
    srd(a, 20, 6, WS_FLAG, FLAG_SIZE)
    a("v_lshrrev_b32 v2, 4, v0", "v_lshlrev_b32 v2, 20, v2", "v_and_b32 v3, 15, v0", "v_lshl_add_u32 v2, v3, 4, v2", "s_lshl_b32 s3, s2, 8")
    for i in range(4):
        a(f"v_mov_b32 v{28+i}, 0")
    a("buffer_store_dwordx4 v[28:31], v2, s[20:23], s3 offen")
    a("s_mov_b32 s16, 0xffff0000", "s_mov_b32 s17, 0x3a800000", "s_mov_b32 s18, 0x3727c5ac")
    F = [32, 48]
    S = [20, 21]; T = [22, 23]
    def allsum():
        for pat in ("quad_perm:[1,0,3,2]", "quad_perm:[2,3,0,1]", "row_half_mirror", "row_mirror"):
            a("s_nop 1")
            for r in range(2):
                a(f"v_add_f32_dpp v{S[r]}, v{S[r]}, v{S[r]} {pat} row_mask:0xf bank_mask:0xf")
        for pl in ("v_permlane16_swap_b32", "v_permlane32_swap_b32"):
            for r in range(2):
                a(f"v_mov_b32 v{T[r]}, v{S[r]}")
            a("s_nop 1")
            for r in range(2):
                a(f"{pl} v{S[r]}, v{T[r]}")
            for r in range(2):
                a(f"v_add_f32 v{S[r]}, v{S[r]}, v{T[r]}")
    def rnd(reg):
        a(f"v_cvt_pk_bf16_f32 v{reg}, v{reg}, v{reg}", f"v_and_b32 v{reg}, s16, v{reg}")
    for r in range(2):
        a(f"s_waitcnt vmcnt({3-2*r})")
        for i in range(8):
            a(f"v_lshlrev_b32 v{F[r]+2*i}, 16, v{4+8*r+i}", f"v_and_b32 v{F[r]+2*i+1}, s16, v{4+8*r+i}")
        a(f"v_add_f32 v{S[r]}, v{F[r]}, v{F[r]+1}")
        for i in range(2, 16):
            a(f"v_add_f32 v{S[r]}, v{S[r]}, v{F[r]+i}")
    allsum()
    M = [24, 25]
    for r in range(2):
        a(f"v_mul_f32 v{M[r]}, s17, v{S[r]}")
    for r in range(2):
        a(f"v_sub_f32 v26, v{F[r]}, v{M[r]}", f"v_mul_f32 v{S[r]}, v26, v26")
        for i in range(1, 16):
            a(f"v_sub_f32 v26, v{F[r]+i}, v{M[r]}", f"v_fmac_f32 v{S[r]}, v26, v26")
    allsum()
    for r in range(2):
        a(f"v_mul_f32 v{S[r]}, s17, v{S[r]}")
        rnd(S[r])
        a(f"v_add_f32 v{S[r]}, s18, v{S[r]}")
        rnd(S[r])
        a(f"v_sqrt_f32 v{S[r]}, v{S[r]}", "s_nop 0")
        rnd(S[r])
        a(f"v_rcp_f32 v{S[r]}, v{S[r]}")
        rnd(M[r])
    for r in range(2):
        for i in range(8):
            x0, x1 = F[r]+2*i, F[r]+2*i+1
            a(f"v_sub_f32 v{x0}, v{x0}, v{M[r]}", f"v_sub_f32 v{x1}, v{x1}, v{M[r]}",
              f"v_cvt_pk_bf16_f32 v26, v{x0}, v{x1}",
              f"v_lshlrev_b32 v{x0}, 16, v26", f"v_and_b32 v{x1}, s16, v26",
              f"v_mul_f32 v{x0}, v{x0}, v{S[r]}", f"v_mul_f32 v{x1}, v{x1}, v{S[r]}",
              f"v_cvt_pk_bf16_f32 v{4+8*r+i}, v{x0}, v{x1}")
        for h in range(2):
            a(f"buffer_store_dwordx4 {vr(4+8*r+4*h,4)}, v1, s[12:15], 0 offen offset:{r*2048+h*1024}")
    a.label("L0_end")
    a("s_endpgm")
    return a

G1_SLOT = 36864
G2 = 3 * G1_SLOT
G2_SLOT = 12288
LDS_WPHI = G2 + 4 * G2_SLOT
K1_LDS = 163840
vAoff, vBoff, vBh, vXa, vWa, vWh = 224, 232, 235, 236, 238, 240
vT = 241
vL = 255
sA, sB, sHO, sKV, sZ = 8, 12, 16, 20, 24
sW, sTH, sNH = 28, 29, 30
sSoffA, sSoffB, sSoffH, sRd, sWr, sDelta, sM0A, sM0B, sCnt, sMT, sIDX = 31, 32, 33, 34, 35, 36, 37, 38, 39, 40, 41
sT0 = 42
sP = 50
SETREG = 60

def k1_mainloop(a, ffn):
    tag = "F" if ffn else "Q"
    RS = 7168 if ffn else 6144
    ngs = 7 if ffn else 6
    def acc(ng, tb):
        if ffn:
            return (tb * 7 + ng) * 4
        return (ng >> 1) * 64 + tb * 8 + (ng & 1) * 4
    def mfmas(s):
        base = (s & 1) * SETREG
        out = []
        for ng in range(ngs):
            for tb in range(8):
                X = ar(base + tb * 4, 4); W = ar(base + 32 + ng * 4, 4); D = vr(acc(ng, tb), 4)
                if (not ffn) and ng >= 4:
                    out.append(f"v_mfma_f32_16x16x32_bf16 {D}, {X}, {W}, {D}")
                else:
                    out.append(f"v_mfma_f32_16x16x32_bf16 {D}, {W}, {X}, {D}")
        return out
    def reads(u):
        base = (u & 1) * SETREG
        j = u & 1; slot = u & 3
        xs = [f"ds_read_b128 {ar(base+tb*4,4)}, v{vXa+j} offset:{tb*2048}" for tb in range(8)]
        ws = []
        for ng in range(ngs):
            for jj in range(2):
                dst = ar(base + 32 + ng * 4 + jj * 2, 2)
                if ng < 6:
                    ws.append(f"ds_read_b64_tr_b16 {dst}, v{vWa+(ng&1)} offset:{slot*G2_SLOT+(ng>>1)*1024+jj*512}")
                else:
                    ws.append(f"ds_read_b64_tr_b16 {dst}, v{vWh} offset:{j*2048+jj*256}")
        return ws[:2] + xs + ws[2:]
    def dma_B(u):
        out = [[f"s_add_u32 m0, s{sM0B}, {(u&3)*G2_SLOT}"]]
        for b in range(3):
            out.append([f"buffer_load_dwordx4 v{vBoff+b}, s[{sB}:{sB+3}], s{sSoffB} offen offset:{b*1024} lds"])
        out[-1].append(f"s_add_u32 s{sSoffB}, s{sSoffB}, {32*RS}")
        return out
    def dma_A(half):
        out = [[f"s_add_u32 m0, s{sM0A}, {half*4096}"]]
        for i in range(4):
            out.append([f"buffer_load_dwordx4 v{vAoff+half*4+i}, s[{sA}:{sA+3}], s{sSoffA} offen offset:{i*1024} lds"])
        if half and ffn:
            out.append([f"s_add_u32 m0, s{sWr}, s{sT0}"])
            out.append([f"buffer_load_dwordx4 v{vBh}, s[{sB}:{sB+3}], s{sSoffH} offen lds",
                        f"s_add_u32 s{sSoffH}, s{sSoffH}, {64*RS}"])
        if half:
            out.append([f"s_add_u32 s{sWr}, s{sWr}, {G1_SLOT}", f"s_cmp_eq_u32 s{sWr}, {G2}"])
            out.append([f"s_cselect_b32 s{sWr}, 0, s{sWr}", f"s_add_u32 s{sSoffA}, s{sSoffA}, 128"])
            out.append([f"s_add_u32 s{sM0A}, s{sWr}, s{sT0+1}"])
        return out
    def window(u):
        return dma_B(u + 3) + dma_A(u & 1)
    def rd_advance():
        o = [[f"s_add_u32 s{sRd}, s{sRd}, {G1_SLOT}", f"s_cmp_eq_u32 s{sRd}, {G2}"],
             [f"s_cselect_b32 s{sDelta}, s{sT0+2}, s{sT0+3}", f"s_cselect_b32 s{sRd}, 0, s{sRd}"],
             [f"v_add_u32 v{vXa}, s{sDelta}, v{vXa}"], [f"v_add_u32 v{vXa+1}, s{sDelta}, v{vXa+1}"]]
        if ffn:
            o.append([f"v_add_u32 v{vWh}, s{sDelta}, v{vWh}"])
        return o
    n_even, n_odd = (15, 19) if ffn else (14, 18)
    nm = ngs * 8
    PF = OPT.get("pf", 1)
    PFL = OPT.get("pfl", 32)
    chunk = PFL * 128
    nown = -(-(928 * RS) // (512 * chunk)) if PFL == 64 else 3
    nw2 = -(-(3584 * 2048) // (1024 * chunk))
    sPF, sPFo, vPF = 20, 24, 250
    def touch_op():
        return [f"buffer_load_dword v{vPF+1}, v{vPF}, s[{sPF}:{sPF+3}], s{sPFo} offen"]
    def touch_next():
        o = [[f"s_add_u32 s{sPFo}, s{sPFo}, s25", f"s_cmp_eq_u32 s{sCnt}, {nown-1}"],
             [f"s_cselect_b32 s{sPF}, s{sP+12}, s{sPF}", f"s_cselect_b32 s{sPF+1}, s{sP+13}, s{sPF+1}"],
             [f"s_cselect_b32 s{sPF+2}, {hex(3584*2048)}, s{sPF+2}", f"s_cselect_b32 s{sPFo}, s26, s{sPFo}"],
             [f"s_cselect_b32 s25, {hex(1024*chunk)}, s25", f"s_cmp_eq_u32 s{sCnt}, {nown+nw2-1}"],
             [f"s_cselect_b32 s{sPF}, s{sP+6}, s{sPF}", f"s_cselect_b32 s{sPF+1}, s{sP+7}, s{sPF+1}"],
             [f"s_cselect_b32 s{sPF+2}, {hex(1024*2048)}, s{sPF+2}", f"s_cselect_b32 s{sPFo}, s26, s{sPFo}"]]
        return o
    def step(s, last=False, dma=True, nvm=None, extra=None):
        u = s + 1
        m = mfmas(s)
        fill = {}
        if last:
            fill[-1] = ["s_waitcnt lgkmcnt(0)"]
            return weave(m, fill)
        n = nvm if nvm is not None else (n_even if u % 2 == 0 else n_odd)
        if PF and (s & 3) != 3 and n > 0:
            n += 1
        fill[-1] = [f"s_waitcnt vmcnt({n}) lgkmcnt(0)", "s_barrier"]
        r = reads(u)
        spread(r, list(range(len(r))), fill)
        rest = []
        if dma:
            rest += window(u)
        if u % 2 == 1:
            rest += rd_advance()
        if extra:
            rest += extra
        g0 = len(r)
        gaps = []
        k = len(rest)
        room = nm - g0
        assert k <= room, (k, room)
        for i in range(k):
            gaps.append(g0 + (i * room) // k)
        spread(rest, gaps, fill)
        return weave(m, fill)

    a(f"s_lshl_b32 s{sT0}, s{sW}, 10", f"s_add_u32 s{sT0}, s{sT0}, 32768",
      f"s_lshl_b32 s{sT0+1}, s{sW}, 13", f"s_mov_b32 s{sT0+2}, {hex((-2*G1_SLOT) & 0xffffffff)}", f"s_mov_b32 s{sT0+3}, {G1_SLOT}",
      f"s_mul_i32 s{sM0B}, s{sW}, 3072", f"s_add_u32 s{sM0B}, s{sM0B}, {G2}",
      f"s_mov_b32 s{sSoffA}, 0", f"s_mov_b32 s{sSoffB}, 0", f"s_mov_b32 s{sSoffH}, 0",
      f"s_mov_b32 s{sRd}, 0", f"s_mov_b32 s{sWr}, 0", f"s_mov_b32 s{sM0A}, s{sT0+1}")
    if PF:
        a(f"s_mov_b32 s{sPF}, s{sB}", f"s_mov_b32 s{sPF+1}, s{sB+1}", f"s_mov_b32 s{sPF+2}, s{sB+2}", f"s_mov_b32 s{sPF+3}, 0x20000",
          f"s_mov_b32 s{sPFo}, {4096+96*RS}", f"s_mov_b32 s25, {hex(512*chunk)}", f"s_mov_b32 s26, {hex(512*chunk if ffn else 0)}",
          "s_and_b32 s3, s2, 127", "s_lshl_b32 s3, s3, 2", f"s_add_u32 s3, s3, s{sW}", f"s_mul_i32 s3, s3, {chunk}",
          f"v_lshlrev_b32 v{vPF}, 7, v{vL}")
        if PFL == 32:
            a(f"v_lshrrev_b32 v{vPF+1}, 5, v{vL}", f"v_lshl_add_u32 v{vPF}, v{vPF+1}, 30, v{vPF}")
        a(f"v_add_u32 v{vPF}, s3, v{vPF}")
    def flat(x):
        o = []
        for it in x:
            o.extend(it)
            if it[0].startswith("s_add_u32 m0"):
                o.append("s_nop 0")
        return o
    a(flat(dma_A(0)))
    for u in (-3, -2, -1):
        a(flat(window(u)))
    a.c("zero accumulators while the first tiles are in flight")
    for i in range(nm * 4):
        a(f"v_mov_b32 v{i}, 0")
    stamp(a, 1, 1)
    a(f"s_waitcnt vmcnt({n_even + (2 if OPT['stamp'] else 0)})", "s_barrier")
    stamp(a, 2, 1)
    a(reads(0))
    if not ffn:
        for s in range(2):
            for jj in range(2):
                a(f"ds_read_b64_tr_b16 {ar(120+s*4+jj*2,2)}, v{vT} offset:{s*1024+jj*256}")
    a(flat(window(0)))
    if PF:
        a(touch_op())
    a(f"s_mov_b32 s{sCnt}, 0")
    a(".p2align 6")
    a.label(f"L1{tag}_loop")
    for s in range(4):
        extra = None
        if s == 2:
            extra = [[f"s_cmp_eq_u32 s{sCnt}, 6", f"s_cselect_b32 s{sA+2}, 0, s{sA+2}"]]
        if s == 1 and PF:
            extra = touch_next()
        if s == 3:
            extra = ([touch_op()] if PF else []) + [[f"s_add_u32 s{sCnt}, s{sCnt}, 1"]]
        body = step(s, extra=extra)
        if s == 3:
            body += [f"s_cmp_lg_u32 s{sCnt}, 7", f"s_cbranch_scc1 L1{tag}_loop"]
        a(body)
    a(step(28, dma=False))
    a(step(29, dma=False, nvm=7))
    a(step(30, dma=False, nvm=0))
    a(step(31, last=True))
    return acc

def silu_block(a, regs, tmp, dst):
    n = len(regs)
    for i in range(0, n, 2):
        a(f"v_pk_mul_f32 {vr(tmp+i,2)}, {vr(regs[i],2)}, s[{sT0+4}:{sT0+5}]")
    for i in range(n):
        a(f"v_exp_f32 v{tmp+i}, v{tmp+i}")
    for i in range(0, n, 2):
        a(f"v_pk_add_f32 {vr(tmp+i,2)}, {vr(tmp+i,2)}, 1.0 op_sel_hi:[1,0]")
    for i in range(n):
        a(f"v_rcp_f32 v{tmp+i}, v{tmp+i}")
    for i in range(0, n, 2):
        a(f"v_pk_mul_f32 {vr(tmp+i,2)}, {vr(tmp+i,2)}, {vr(regs[i],2)}")
    for i in range(0, n, 2):
        a(f"v_cvt_pk_bf16_f32 v{dst[i//2]}, v{tmp+i}, v{tmp+i+1}")

def k1_ffn(a):
    a.label("L1_ffn")
    srd(a, sB, sP + 10, -4096, 1024 * 7168 + 4096)
    a(f"s_mul_i32 s{sT0+4}, s{sIDX}, 448", f"s_and_b32 s{sT0+5}, s{sIDX}, 1",
      f"s_lshl_b32 s{sT0+6}, s{sT0+5}, 6", f"s_add_u32 s{sT0+6}, s{sT0+6}, s{sT0+4}",
      f"s_mul_i32 s{sT0+5}, s{sT0+5}, 384", f"s_sub_u32 s{sT0+7}, s{sT0+4}, s{sT0+5}", f"s_add_u32 s{sT0+7}, s{sT0+7}, 384")
    k1_b_offsets(a, 7168, 128, sT0 + 6)
    a(f"v_lshrrev_b32 v{vT}, 2, v{vL}", f"s_lshl_b32 s3, s{sW}, 4", f"v_add_u32 v{vT}, s3, v{vT}",
      f"s_movk_i32 s3, 7168", f"v_mul_lo_u32 v{vBh}, v{vT}, s3",
      f"v_lshrrev_b32 v{vT}, 5, v{vL}", f"v_lshlrev_b32 v{vT}, 1, v{vT}", f"v_and_b32 v{vT+1}, 3, v{vL}", f"v_xor_b32 v{vT}, v{vT}, v{vT+1}",
      f"v_lshl_add_u32 v{vBh}, v{vT}, 4, v{vBh}", f"s_add_u32 s3, s{sT0+7}, 4096", f"v_add_u32 v{vBh}, s3, v{vBh}")
    a(f"v_lshrrev_b32 v{vT}, 4, v{vL}", f"v_lshlrev_b32 v{vWh}, 9, v{vT}",
      f"v_and_b32 v{vT}, 1, v{vT}", f"v_xor_b32 v{vT}, s{sNH}, v{vT}", f"v_lshl_add_u32 v{vWh}, v{vT}, 5, v{vWh}",
      f"v_bfe_u32 v{vT}, v{vL}, 2, 2", f"v_lshl_add_u32 v{vWh}, v{vT}, 6, v{vWh}",
      f"v_and_b32 v{vT}, 3, v{vL}", f"v_lshl_add_u32 v{vWh}, v{vT}, 3, v{vWh}", f"v_add_u32 v{vWh}, 0x8000, v{vWh}")
    a(f"s_lshr_b32 s70, s{sT0+6}, 6", f"s_add_u32 s70, s70, s{sNH}", "s_lshl_b32 s70, s70, 10",
      f"s_lshr_b32 s71, s{sT0+7}, 6", "s_lshl_b32 s71, s71, 10")
    acc = k1_mainloop(a, True)
    stamp(a, 3, 1)
    a.c("---- FFN epilogue: h = silu(acc) -> fragment-major bf16")
    a(f"s_mov_b32 s{sT0+4}, {hex(NLOG2E)}", f"s_mov_b32 s{sT0+5}, {hex(NLOG2E)}")
    a(f"s_lshl_b32 s3, s{sMT}, 4", f"s_lshl_b32 s72, s{sTH}, 3", "s_add_u32 s3, s3, s72", f"s_mul_i32 s3, s3, {HO_TB}",
      "s_add_u32 s70, s70, s3", "s_add_u32 s71, s71, s3")
    a(f"v_lshlrev_b32 v240, 4, v{vL}", f"s_lshl_b32 s3, s{sNH}, 3", "v_add_u32 v241, s3, v240")
    a("s_nop 3")
    tmp = 224
    for tb in range(8):
        base = tb * 28
        for b in range(3):
            regs = list(range(base + b * 8, base + b * 8 + 8))
            t = tmp + (b & 1) * 8
            silu_block(a, regs, t, [base + b * 8 + i for i in range(4)])
            if b == 2:
                a(f"s_add_u32 s72, s70, 4096")
            so, imm = ("s70", b * 2048) if b < 2 else ("s72", 0)
            a(f"buffer_store_dwordx4 {vr(base+b*8,4)}, v240, s[{sHO}:{sHO+3}], {so} offen offset:{imm}")
        regs = list(range(base + 24, base + 28))
        silu_block(a, regs, tmp + 8, [base + 24, base + 25])
        a(f"buffer_store_dwordx2 {vr(base+24,2)}, v241, s[{sHO}:{sHO+3}], s71 offen")
        if tb < 7:
            a(f"s_add_u32 s70, s70, {HO_TB}", f"s_add_u32 s71, s71, {HO_TB}")
    stamp(a, 4, 1)
    if OPT["stamp"]:
        a("s_waitcnt vmcnt(0)")
        stamp(a, 5, 1)
    a("s_endpgm")

def k1_b_offsets(a, RS, blockstride, scol):
    a(f"v_lshrrev_b32 v{vT}, 3, v{vL}", f"s_lshl_b32 s3, s{sW}, 3", f"v_add_u32 v{vT}, s3, v{vT}",
      f"s_movk_i32 s3, {RS}", f"v_mul_lo_u32 v{vBoff}, v{vT}, s3",
      f"v_bfe_u32 v{vT}, v{vL}, 4, 1", f"v_lshlrev_b32 v{vT}, 2, v{vT}", f"s_lshl_b32 s3, s{sNH}, 1", f"v_or_b32 v{vT}, s3, v{vT}",
      f"v_and_b32 v{vT+1}, 7, v{vL}", f"v_xor_b32 v{vT}, v{vT}, v{vT+1}",
      f"v_lshl_add_u32 v{vBoff}, v{vT}, 4, v{vBoff}", f"s_add_u32 s3, s{scol}, 4096", f"v_add_u32 v{vBoff}, s3, v{vBoff}")
    for b in (1, 2):
        d = b * blockstride - b * 1024
        a(f"v_add_u32 v{vBoff+b}, {hex(d & 0xffffffff)}, v{vBoff}")

def softmax_pair(a, P, E, tmp, dstp, dstm):
    t0, t1, t2, t3 = tmp, tmp + 1, tmp + 2, tmp + 3
    a(f"v_max3_f32 v{t0}, v{P}, v{P+1}, v{P+2}", f"v_max3_f32 v{t1}, -v{P}, -v{P+1}, -v{P+2}")
    for i in range(3, 15, 2):
        a(f"v_max3_f32 v{t0}, v{t0}, v{P+i}, v{P+i+1}", f"v_max3_f32 v{t1}, v{t1}, -v{P+i}, -v{P+i+1}")
    a(f"v_max_f32 v{t0}, v{t0}, v{P+15}", f"v_max_f32_e64 v{t1}, v{t1}, -v{P+15}", "s_nop 1",
      f"v_permlane32_swap_b32 v{t0}, v{t1}", f"v_max_f32 v{t0}, v{t0}, v{t1}",
      f"v_mul_f32 v{t0}, s{sT0+4}, v{t0}", f"v_mov_b32 v{t2}, v{t0}", "s_nop 1",
      f"v_permlane32_swap_b32 v{t0}, v{t2}")
    for i in range(0, 16, 2):
        a(f"v_pk_fma_f32 {vr(E+i,2)}, {vr(P+i,2)}, s[{sT0+4}:{sT0+5}], {vr(t0,2)} op_sel_hi:[1,1,0] neg_lo:[0,0,1] neg_hi:[0,0,1]")
    for i in range(0, 16, 2):
        a(f"v_pk_fma_f32 {vr(P+i,2)}, {vr(P+i,2)}, s[{sT0+4}:{sT0+5}], {vr(t2,2)} op_sel_hi:[1,1,0] neg_lo:[1,0,1] neg_hi:[1,0,1]")
    for i in range(16):
        a(f"v_exp_f32 v{E+i}, v{E+i}")
    for i in range(16):
        a(f"v_exp_f32 v{P+i}, v{P+i}")
    a(f"v_pk_add_f32 {vr(t0,2)}, {vr(E,2)}, {vr(E+2,2)}", f"v_pk_add_f32 {vr(t2,2)}, {vr(P,2)}, {vr(P+2,2)}")
    for i in range(4, 16, 2):
        a(f"v_pk_add_f32 {vr(t0,2)}, {vr(t0,2)}, {vr(E+i,2)}", f"v_pk_add_f32 {vr(t2,2)}, {vr(t2,2)}, {vr(P+i,2)}")
    a(f"v_add_f32 v{t0}, v{t0}, v{t1}", f"v_add_f32 v{t2}, v{t2}, v{t3}", "s_nop 1",
      f"v_permlane32_swap_b32 v{t0}, v{t2}", f"v_add_f32 v{t0}, v{t0}, v{t2}", f"v_rcp_f32 v{t0}, v{t0}", "s_nop 0",
      f"v_mov_b32 v{t2}, v{t0}", "s_nop 1", f"v_permlane32_swap_b32 v{t0}, v{t2}")
    for i in range(0, 16, 2):
        a(f"v_pk_mul_f32 {vr(P+i,2)}, {vr(P+i,2)}, {vr(t2,2)} op_sel_hi:[1,0]")
    for i in range(0, 16, 2):
        a(f"v_pk_mul_f32 {vr(E+i,2)}, {vr(E+i,2)}, {vr(t0,2)} op_sel_hi:[1,0]")
    for i in range(7, -1, -1):
        a(f"v_cvt_pk_bf16_f32 v{dstm+i}, v{P+2*i}, v{P+2*i+1}")
    for i in range(8):
        a(f"v_cvt_pk_bf16_f32 v{dstp+i}, v{E+2*i}, v{E+2*i+1}")

def k1_qkv(a):
    a.label("L1_qkv")
    srd(a, sB, sP + 2, -4096, 1024 * 6144 + 4096)
    a(f"s_lshl_b32 s{sT0+6}, s{sIDX}, 7")
    k1_b_offsets(a, 6144, 2048, sT0 + 6)
    srd(a, sKV, sP + 4, 0, 65536)
    a(f"s_lshl_b32 s3, s{sIDX}, 12", f"s_lshl_b32 s72, s{sW}, 10", "s_add_u32 s3, s3, s72",
      f"s_add_u32 m0, s72, {LDS_WPHI}", f"v_lshlrev_b32 v{vT}, 4, v{vL}",
      f"buffer_load_dwordx4 v{vT}, s[{sKV}:{sKV+3}], s3 offen lds")
    a(f"v_lshrrev_b32 v{vT+1}, 5, v{vL}", f"v_lshlrev_b32 v{vT}, 9, v{vT+1}",
      f"v_bfe_u32 v{vT+1}, v{vL}, 2, 2", f"v_lshl_add_u32 v{vT}, v{vT+1}, 6, v{vT}",
      f"v_bfe_u32 v{vT+1}, v{vL}, 4, 1", f"v_lshl_add_u32 v{vT}, v{vT+1}, 5, v{vT}",
      f"v_and_b32 v{vT+1}, 3, v{vL}", f"v_lshl_add_u32 v{vT}, v{vT+1}, 3, v{vT}",
      f"s_lshl_b32 s3, s{sNH}, 11", f"s_add_u32 s3, s3, {LDS_WPHI}", f"v_add_u32 v{vT}, s3, v{vT}")
    acc = k1_mainloop(a, False)
    stamp(a, 3, 1)
    a.c("---- QKV epilogue")
    srd(a, sKV, sP + 18, WS_KV, KV_SIZE)
    srd(a, sZ, sP + 18, WS_Z, Z_SIZE)
    Q, K, V = 0, 64, 128
    T = 192
    a(f"s_mov_b32 s{sT0+4}, {hex(LOG2E)}", f"s_mov_b32 s{sT0+5}, {hex(LOG2E)}")
    vPW, vPR, vLin, vONE, vZo, tmp = 224, 228, 230, 232, 231, 236
    a(f"v_and_b32 v{tmp}, 31, v{vL}", f"v_lshrrev_b32 v{tmp+1}, 5, v{vL}",
      f"v_bfe_u32 v{tmp+2}, v{vL}, 1, 1", f"v_lshlrev_b32 v{tmp+2}, 2, v{tmp+2}",
      f"v_bfe_u32 v{tmp+3}, v{vL}, 2, 1", f"v_lshl_or_b32 v{tmp+2}, v{tmp+3}, 1, v{tmp+2}",
      f"v_and_b32 v{tmp+3}, 1, v{vL}", f"v_or_b32 v{tmp+2}, v{tmp+3}, v{tmp+2}",
      f"v_xor_b32 v{tmp+2}, v{tmp+2}, v{tmp+1}", f"v_lshlrev_b32 v{tmp+2}, 4, v{tmp+2}",
      f"v_lshl_add_u32 v{vPW}, v{tmp}, 7, v{tmp+2}", f"s_lshl_b32 s3, s{sW}, 14", f"v_add_u32 v{vPW}, s3, v{vPW}")
    for i in range(1, 4):
        a(f"v_xor_b32 v{vPW+i}, {i*32}, v{vPW}")
    a(f"v_bfe_u32 v{tmp}, v{vL}, 2, 2",
      f"v_lshlrev_b32 v{vPR}, 10, v{tmp+1}", f"v_lshl_add_u32 v{vPR}, v{tmp}, 7, v{vPR}",
      f"v_lshrrev_b32 v{tmp+2}, 1, v{tmp}", f"v_lshlrev_b32 v{tmp+2}, 2, v{tmp+2}", f"v_and_b32 v{tmp+3}, 1, v{tmp}", f"v_or_b32 v{tmp+2}, v{tmp+2}, v{tmp+3}",
      f"v_bfe_u32 v{tmp+3}, v{vL}, 4, 1", f"v_lshlrev_b32 v{tmp+3}, 1, v{tmp+3}", f"v_xor_b32 v{tmp+2}, v{tmp+2}, v{tmp+3}",
      f"v_and_b32 v{tmp+3}, 1, v{vL}", f"v_xor_b32 v{tmp+2}, v{tmp+2}, v{tmp+3}",
      f"v_lshl_add_u32 v{vPR}, v{tmp+2}, 4, v{vPR}",
      f"v_bfe_u32 v{tmp+3}, v{vL}, 1, 1", f"v_lshl_add_u32 v{vPR}, v{tmp+3}, 3, v{vPR}", f"v_add_u32 v{vPR}, s3, v{vPR}")
    vPRx = [vPR, 244, 245, 246]
    a(f"v_xor_b32 v244, 32, v{vPR}", f"v_xor_b32 v245, 64, v{vPR}", f"v_xor_b32 v246, 0x60, v{vPR}")
    a(f"v_lshlrev_b32 v{vLin}, 4, v{vL}")
    for i in range(4):
        a(f"v_mov_b32 v{vONE+i}, 0x3f803f80")
    a("s_barrier")
    WP = [ar(120, 4), ar(124, 4)]
    def to_frags(src, T0, what):
        for tbb in range(2):
            for dt in range(2):
                s = src + tbb * 8 + dt * 4
                d = T0 + (dt * 4 + tbb * 2 if what == "qk" else tbb * 4 + dt * 2)
                a(f"v_cvt_pk_bf16_f32 v{d}, v{s}, v{s+1}", f"v_cvt_pk_bf16_f32 v{d+1}, v{s+2}, v{s+3}")
        a("s_nop 0")
        for f in range(2):
            a(f"v_permlane16_swap_b32 v{T0+4*f}, v{T0+4*f+2}", f"v_permlane16_swap_b32 v{T0+4*f+1}, v{T0+4*f+3}")
    n = 0
    for X in (K, Q):
        for p in range(4):
            T0 = T + (n & 1) * 8; n += 1
            src = X + 16 * p
            to_frags(src, T0, "qk")
            a("s_nop 1")
            a(f"v_mfma_f32_32x32x16_bf16 {vr(src,16)}, {WP[0]}, {vr(T0,4)}, 0",
              f"v_mfma_f32_32x32x16_bf16 {vr(src,16)}, {WP[1]}, {vr(T0+4,4)}, {vr(src,16)}")
    for p in range(4):
        src = V + 16 * p
        to_frags(src, T + 16, "v")
        for i in range(8):
            a(f"v_mov_b32 v{src+i}, v{T+16+i}")
    KVa, Za = [128, 144], [160, 176]
    for p in range(4):
        P = K + 16 * p
        softmax_pair(a, P, T, tmp, T + 16, P + 8)
        for sign in range(2):
            for qq in range(2):
                src = (T + 16 if sign == 0 else P + 8) + qq * 4
                a(f"ds_write_b128 v{vPW+sign*2+qq}, {vr(src,4)} offset:{p*4096}")
        a("s_waitcnt lgkmcnt(0)")
        fb = (p & 1) * 16
        for sign in range(2):
            for ks in range(2):
                for jj in range(2):
                    a(f"ds_read_b64_tr_b16 {ar(fb+sign*8+ks*4+jj*2,2)}, v{vPRx[sign*2+jj]} offset:{p*4096+ks*2048+jj*512}")
        a("s_waitcnt lgkmcnt(0)")
        for ks in range(2):
            for sign in range(2):
                A = ar(fb + sign * 8 + ks * 4, 4)
                first = (p == 0 and ks == 0)
                a(f"v_mfma_f32_32x32x16_bf16 {ar(KVa[sign],16)}, {A}, {vr(V+16*p+4*ks,4)}, {'0' if first else ar(KVa[sign],16)}")
                a(f"v_mfma_f32_32x32x16_bf16 {ar(Za[sign],16)}, {A}, {vr(vONE,4)}, {'0' if first else ar(Za[sign],16)}")
    stamp(a, 6, 1)
    a.c("pair reduction through LDS: wave th keeps sign th")
    XR = 65536
    a(f"s_lshl_b32 s3, s{sW}, 13", f"s_add_u32 s3, s3, {XR}", f"v_add_u32 v{tmp}, s3, v{vLin}",
      f"s_xor_b32 s3, s3, 0x4000", f"v_add_u32 v{tmp+1}, s3, v{vLin}")
    a(f"s_cmp_eq_u32 s{sTH}, 0", "s_cbranch_scc1 L1q_th0")
    for th in (1, 0):
        if th == 0:
            a.label("L1q_th0")
        a("s_nop 7", "s_nop 3")
        for i in range(4):
            a(f"ds_write_b128 v{tmp}, {ar(KVa[1-th]+4*i,4)} offset:{i*1024}")
        for i in range(4):
            a(f"ds_write_b128 v{tmp}, {ar(Za[1-th]+4*i,4)} offset:{4096+i*1024}")
        for i in range(16):
            a(f"v_accvgpr_read_b32 v{K+i}, a{KVa[th]+i}")
        for i in range(16):
            a(f"v_accvgpr_read_b32 v{K+16+i}, a{Za[th]+i}")
        if th == 1:
            a("s_branch L1q_thj")
    a.label("L1q_thj")
    a("s_waitcnt lgkmcnt(0)", "s_barrier")
    for i in range(8):
        a(f"ds_read_b128 {vr(K+32+4*i,4)}, v{tmp+1} offset:{i*1024}")
    a(f"s_lshl_b32 s72, s{sIDX}, 2", f"s_lshl_b32 s3, s{sNH}, 1", "s_add_u32 s72, s72, s3", f"s_add_u32 s72, s72, s{sTH}",
      f"s_lshl_b32 s73, s72, 3", f"s_add_u32 s73, s73, s{sMT}",
      "s_lshl_b32 s74, s73, 12", "s_lshl_b32 s75, s73, 7",
      f"v_lshrrev_b32 v{vZo}, 5, v{vL}", f"v_lshlrev_b32 v{vZo}, 6, v{vZo}",
      f"v_and_b32 v{tmp+2}, 31, v{vL}", f"v_lshl_add_u32 v{vZo}, v{tmp+2}, 24, v{vZo}")
    a("s_waitcnt lgkmcnt(0)")
    for i in range(0, 32, 2):
        a(f"v_pk_add_f32 {vr(K+i,2)}, {vr(K+i,2)}, {vr(K+32+i,2)}")
    for i in range(4):
        a(f"buffer_store_dwordx4 {vr(K+4*i,4)}, v{vLin}, s[{sKV}:{sKV+3}], s74 offen offset:{i*1024} sc1")
    for i in range(4):
        a(f"buffer_store_dwordx4 {vr(K+16+4*i,4)}, v{vZo}, s[{sZ}:{sZ+3}], s75 offen offset:{i*16} sc1")
    def qsoft(p):
        P = Q + 16 * p
        softmax_pair(a, P, T, tmp, P, P + 8)
    qsoft(0)
    srd(a, 76, sP + 18, WS_FLAG, FLAG_SIZE)
    a("s_lshl_b32 s3, s72, 7", f"v_lshlrev_b32 v{tmp+5}, 20, v{vL}", f"v_add_u32 v{tmp+5}, s3, v{tmp+5}", f"v_mov_b32 v{tmp+6}, s3", f"v_mov_b32 v{tmp+4}, 1")
    a("s_waitcnt vmcnt(0)")
    a(f"buffer_atomic_add v{tmp+4}, v{tmp+5}, s[76:79], 0 offen sc1")
    stamp(a, 7, 1)
    qsoft(1)
    qsoft(2)
    a("s_mov_b32 s80, 0")
    a.label("L1q_poll")
    a(f"buffer_load_dword v{tmp+4}, v{tmp+6}, s[76:79], 0 offen sc1", "s_waitcnt vmcnt(0)",
      f"v_readfirstlane_b32 s3, v{tmp+4}", "s_add_u32 s80, s80, 1", "s_cmp_ge_u32 s80, 0x40000", "s_cbranch_scc1 L1q_go",
      "s_cmp_lt_u32 s3, 8", "s_cbranch_scc1 L1q_poll")
    a.label("L1q_go")
    stamp(a, 8, 1)
    a("s_lshl_b32 s74, s72, 15", "s_lshl_b32 s75, s72, 10")
    vZ = 248
    a(f"buffer_load_dwordx4 {vr(vZ,4)}, v{vLin}, s[{sZ}:{sZ+3}], s75 offen sc1")
    for m in range(8):
        for i in range(4):
            a(f"buffer_load_dwordx4 {vr(K+16*m+4*i,4)}, v{vLin}, s[{sKV}:{sKV+3}], s74 offen offset:{i*1024} sc1")
        if m < 7:
            a("s_add_u32 s74, s74, 4096")
    qsoft(3)
    X2 = 98304
    a(f"s_mul_i32 s3, s{sNH}, 4352", f"s_add_u32 s3, s3, {X2}", f"s_lshl_b32 s73, s{sTH}, 11", "s_add_u32 s73, s73, s3",
      f"v_add_u32 v{tmp}, s73, v{vLin}",
      f"v_add_u32 v{tmp+1}, s3, v{vLin}",
      f"s_lshl_b32 s73, s{sTH}, 6", "s_add_u32 s73, s73, s3", "s_add_u32 s73, s73, 4096",
      f"v_and_b32 v{tmp+2}, 7, v{vL}", f"v_lshlrev_b32 v{tmp+2}, 3, v{tmp+2}", f"v_add_u32 v{tmp+2}, s73, v{tmp+2}",
      f"v_lshrrev_b32 v{tmp+3}, 5, v{vL}", f"v_lshlrev_b32 v{tmp+3}, 5, v{tmp+3}", "s_add_u32 s3, s3, 4096", f"v_add_u32 v{tmp+3}, s3, v{tmp+3}")
    a("s_waitcnt vmcnt(32)")
    for i in range(4):
        a(f"v_add_f32_dpp v{vZ+i}, v{vZ+i}, v{vZ+i} row_ror:8 row_mask:0xf bank_mask:0xf")
    for pl in ("v_permlane16_swap_b32", "v_permlane32_swap_b32"):
        for i in range(4):
            a(f"v_mov_b32 v{T+i}, v{vZ+i}")
        a("s_nop 0")
        for i in range(4):
            a(f"{pl} v{vZ+i}, v{T+i}")
        for i in range(4):
            a(f"v_add_f32 v{vZ+i}, v{vZ+i}, v{T+i}")
    a(f"v_cvt_pk_bf16_f32 v{vZ}, v{vZ}, v{vZ+1}", f"v_cvt_pk_bf16_f32 v{vZ+1}, v{vZ+2}, v{vZ+3}",
      f"ds_write_b64 v{tmp+2}, {vr(vZ,2)}")
    for m in range(1, 8):
        a(f"s_waitcnt vmcnt({28-4*m})")
        for i in range(0, 16, 2):
            a(f"v_pk_add_f32 {vr(K+i,2)}, {vr(K+i,2)}, {vr(K+16*m+i,2)}")
    for i in range(8):
        a(f"v_cvt_pk_bf16_f32 v{T+i}, v{K+2*i}, v{K+2*i+1}")
    a(f"ds_write_b128 v{tmp}, {vr(T,4)}", f"ds_write_b128 v{tmp}, {vr(T+4,4)} offset:1024")
    a("s_waitcnt lgkmcnt(0)", "s_barrier")
    for sign in range(2):
        for s in range(2):
            a(f"ds_read_b128 {ar(sign*8+s*4,4)}, v{tmp+1} offset:{sign*2048+s*1024}")
            a(f"ds_read_b128 {ar(16+sign*8+s*4,4)}, v{tmp+3} offset:{sign*64+s*16}")
    stamp(a, 9, 1)
    a(f"v_bfe_u32 v{tmp}, v{vL}, 4, 1", f"s_mov_b32 s3, {HO_TB}", f"v_mul_lo_u32 v{tmp}, v{tmp}, s3",
      f"v_lshrrev_b32 v{tmp+1}, 5, v{vL}", f"v_lshl_add_u32 v{tmp}, v{tmp+1}, 8, v{tmp}",
      f"v_and_b32 v{tmp+1}, 15, v{vL}", f"v_lshl_add_u32 v{tmp}, v{tmp+1}, 4, v{tmp}",
      f"s_lshl_b32 s3, s{sMT}, 4", f"s_lshl_b32 s73, s{sTH}, 3", "s_add_u32 s3, s3, s73", f"s_mul_i32 s3, s3, {HO_TB}",
      f"s_lshl_b32 s73, s{sIDX}, 1", f"s_add_u32 s73, s73, s{sNH}", "s_add_u32 s73, s73, 112", "s_lshl_b32 s73, s73, 10", "s_add_u32 s73, s73, s3",
      "s_mov_b32 s74, 0x358637bd")
    a("s_waitcnt lgkmcnt(0)")
    def nd(p):
        N = K + 32 * p; D = N + 16
        k = 0
        for sign in range(2):
            for s in range(2):
                B = vr(Q + 16 * p + sign * 8 + s * 4, 4)
                a(f"v_mfma_f32_32x32x16_bf16 {vr(N,16)}, {ar(sign*8+s*4,4)}, {B}, {'0' if k == 0 else vr(N,16)}")
                a(f"v_mfma_f32_32x32x16_bf16 {vr(D,16)}, {ar(16+sign*8+s*4,4)}, {B}, {'0' if k == 0 else vr(D,16)}")
                k += 1
    def fin(p):
        N = K + 32 * p; D = N + 16
        a(f"v_add_f32 v{D}, s74, v{D}", f"v_rcp_f32 v{D}, v{D}", "s_nop 0")
        for i in range(0, 16, 2):
            a(f"v_pk_mul_f32 {vr(N+i,2)}, {vr(N+i,2)}, {vr(D,2)} op_sel_hi:[1,0]")
        for i in range(8):
            a(f"v_cvt_pk_bf16_f32 v{N+i}, v{N+2*i}, v{N+2*i+1}")
        for s in range(2):
            a(f"buffer_store_dwordx4 {vr(N+4*s,4)}, v{tmp}, s[{sHO}:{sHO+3}], s73 offen offset:{s*512}")
        a(f"s_add_u32 s73, s73, {2*HO_TB}")
    nd(0); nd(1); a("s_nop 3"); fin(0); nd(2); a("s_nop 3"); fin(1); nd(3); a("s_nop 3"); fin(2); a("s_nop 3"); fin(3)
    stamp(a, 4, 1)
    if OPT["stamp"]:
        a("s_waitcnt vmcnt(0)")
        stamp(a, 5, 1)
    a("s_endpgm")

def k1():
    a = Asm()
    a.label("gemm1_kernel")
    a("s_cmp_ge_u32 s2, 256", "s_cbranch_scc1 L1_end")
    a(f"s_load_dwordx16 s[{sP+2}:{sP+17}], s[0:1], 8" if False else "")
    for i in range(10):
        a(f"s_load_dwordx2 s[{sP+2*i}:{sP+2*i+1}], s[0:1], {8*i}")
    a(f"v_and_b32 v{vL}, 63, v0", "v_lshrrev_b32 v1, 6, v0", "s_nop 0", f"v_readfirstlane_b32 s{sW}, v1")
    a("s_and_b32 s3, s2, 1", f"s_lshl_b32 s{sMT}, s3, 2", "s_bfe_u32 s3, s2, 0x20003", f"s_add_u32 s{sMT}, s{sMT}, s3",
      "s_bfe_u32 s3, s2, 0x20001", f"s_lshl_b32 s{sIDX}, s3, 2", "s_bfe_u32 s3, s2, 0x20005", f"s_add_u32 s{sIDX}, s{sIDX}, s3",
      f"s_lshr_b32 s{sTH}, s{sW}, 1", f"s_and_b32 s{sNH}, s{sW}, 1")
    a(f"v_lshrrev_b32 v{vT}, 3, v{vL}", f"s_lshl_b32 s3, s{sW}, 6", f"v_add_u32 v{vT}, s3, v{vT}", f"v_lshlrev_b32 v{vT}, 11, v{vT}",
      f"v_lshrrev_b32 v{vT+1}, 4, v{vL}", f"v_and_b32 v{vT+2}, 7, v{vL}", f"v_xor_b32 v{vT+1}, v{vT+1}, v{vT+2}",
      f"v_lshl_add_u32 v{vAoff}, v{vT+1}, 4, v{vT}", f"v_xor_b32 v{vT+3}, 64, v{vAoff}")
    for i in range(1, 8):
        src = vAoff if i % 2 == 0 else vT + 3
        a(f"v_add_u32 v{vAoff+i}, {i*16384-(i&3)*1024}, v{src}")
    a(f"v_and_b32 v{vT}, 15, v{vL}", f"s_lshl_b32 s3, s{sTH}, 7", f"v_add_u32 v{vT}, s3, v{vT}", f"v_lshlrev_b32 v{vT}, 7, v{vT}",
      f"v_lshrrev_b32 v{vT+1}, 4, v{vL}", f"v_bfe_u32 v{vT+2}, v{vL}, 1, 3", f"v_xor_b32 v{vT+1}, v{vT+1}, v{vT+2}",
      f"v_lshl_add_u32 v{vXa}, v{vT+1}, 4, v{vT}", f"v_xor_b32 v{vXa+1}, 64, v{vXa}")
    a(f"v_lshrrev_b32 v{vT}, 4, v{vL}", f"v_mul_u32_u24 v{vWa}, 3072, v{vT}", f"v_and_b32 v{vT}, 1, v{vT}",
      f"v_bfe_u32 v{vT+1}, v{vL}, 3, 1", f"v_lshl_or_b32 v{vT}, v{vT+1}, 1, v{vT}",
      f"s_lshl_b32 s3, s{sNH}, 1", f"v_xor_b32 v{vT}, s3, v{vT}", f"v_lshl_add_u32 v{vWa}, v{vT}, 5, v{vWa}",
      f"v_bfe_u32 v{vT+1}, v{vL}, 2, 2", f"v_lshl_add_u32 v{vWa}, v{vT+1}, 7, v{vWa}",
      f"v_and_b32 v{vT+1}, 3, v{vL}", f"v_lshl_add_u32 v{vWa}, v{vT+1}, 3, v{vWa}",
      f"v_add_u32 v{vWa}, {G2}, v{vWa}", f"v_xor_b32 v{vWa+1}, 32, v{vWa}")
    a("s_waitcnt lgkmcnt(0)")
    stamp_setup(a, 1, sP + 18, sW)
    stamp(a, 0, 1)
    a(f"s_lshl_b32 s3, s{sMT}, 19", f"s_add_u32 s3, s3, {hex(WS_XN)}" if WS_XN else "")
    srd(a, sA, sP + 18, "s3", 256 * 2048)
    srd(a, sHO, sP + 18, WS_HO, HO_SIZE)
    a("s_cmp_ge_u32 s2, 128", "s_cbranch_scc1 L1_ffn")
    k1_qkv(a)
    k1_ffn(a)
    a.label("L1_end")
    a("s_endpgm")
    return a

K2_LDS = 163840
sTY = 81
def resolve(traces):
    cnt = {}
    for dyn in traces:
        issued = []
        for it in dyn:
            if isinstance(it, tuple) and it[0] == "vm":
                issued.append(it[2])
            elif isinstance(it, tuple) and it[0] == "wait":
                last = max(i for i, tg in enumerate(issued) if tg in it[2])
                cnt[it[1]] = min(cnt.get(it[1], 63), len(issued) - 1 - last)
    return cnt

def phase2(a, sMT2, sNT2):
    KA = OPT.get("ka", 64)
    NITA, NITB = KA // 16, (112 - KA) // 16
    sX0, sX1, sSo, sM0, sLast, sNx = 31, 32, 33, 34, 35, 36
    sXs, sO, sPT, sFL = 20, 24, 16, 76
    sRow = 70
    vDo, vR1, vR2, vXo, vXg, vEw, vEr = 224, 228, 232, 236, 237, 238, 246
    T = 250
    OUT, S, XR, P = 0, 64, 128, 160
    WF = 128
    a(f"v_lshrrev_b32 v{T}, 3, v{vL}", f"s_lshl_b32 s3, s{sW}, 4", f"v_add_u32 v{T}, s3, v{T}", f"v_lshlrev_b32 v{vDo}, 11, v{T}",
      f"v_lshrrev_b32 v{T+1}, 4, v{vL}", f"v_lshlrev_b32 v{T+1}, 1, v{T+1}", f"v_and_b32 v{T+2}, 7, v{vL}", f"v_xor_b32 v{T+1}, v{T+1}, v{T+2}",
      f"v_lshl_add_u32 v{vDo}, v{T+1}, 4, v{vDo}", f"s_lshl_b32 s3, s{sNT2}, 8", "s_add_u32 s42, s3, 4096", f"v_add_u32 v{vDo}, s42, v{vDo}")
    for i in range(1, 4):
        d = (i >> 1) * 16384 + (i & 1) * 128 - i * 1024
        a(f"v_add_u32 v{vDo+i}, {hex(d & 0xffffffff)}, v{vDo}")
    a(f"v_lshrrev_b32 v{T}, 4, v{vL}", f"v_lshlrev_b32 v{vXg}, 11, v{T}", f"v_and_b32 v{T+1}, 15, v{vL}", f"v_lshl_add_u32 v{vXg}, v{T+1}, 4, v{vXg}",
      f"s_lshl_b32 s42, s{sMT2}, 18", "s_add_u32 s3, s3, s42", f"s_lshl_b32 s42, s{sW}, 16", "s_add_u32 s3, s3, s42", f"v_add_u32 v{vXg}, s3, v{vXg}")
    a(f"v_xor_b32 v{T+2}, v{T}, v{T+1}", f"v_lshlrev_b32 v{vEr}, 8, v{T}", f"v_lshl_add_u32 v{vEr}, v{T+2}, 4, v{vEr}",
      f"s_lshl_b32 s3, s{sW}, 13", "s_add_u32 s3, s3, 0x20000", f"v_add_u32 v{vEr}, s3, v{vEr}",
      f"v_lshrrev_b32 v{T}, 5, v{vL}", f"v_xor_b32 v{T}, v{T}, v{T+1}", f"v_lshlrev_b32 v{vEw}, 8, v{T+1}", f"v_lshl_add_u32 v{vEw}, v{T}, 4, v{vEw}",
      f"v_bfe_u32 v{T}, v{vL}, 4, 1", f"v_lshl_add_u32 v{vEw}, v{T}, 3, v{vEw}", f"v_add_u32 v{vEw}, s3, v{vEw}")
    for q in range(1, 8):
        a(f"v_xor_b32 v{vEw+q}, {q*32}, v{vEw}")
    for q in range(1, 4):
        a(f"v_xor_b32 v{vEr+q}, {q*64}, v{vEr}")
    a(f"v_bfe_u32 v{T}, v{vL}, 2, 3", f"v_lshlrev_b32 v{vR1}, 7, v{T}", f"v_lshrrev_b32 v{T}, 1, v{T}", f"v_lshl_add_u32 v{vR1}, v{T}, 5, v{vR1}",
      f"v_and_b32 v{T}, 3, v{vL}", f"v_lshl_add_u32 v{vR1}, v{T}, 3, v{vR1}",
      f"v_lshrrev_b32 v{T}, 5, v{vL}", f"v_lshl_add_u32 v{vR2}, v{T}, 12, v{vR1}", f"v_lshl_add_u32 v{vR1}, v{T}, 11, v{vR1}")
    for q in range(1, 4):
        a(f"v_xor_b32 v{vR1+q}, {q*32}, v{vR1}", f"v_xor_b32 v{vR2+q}, {q*32}, v{vR2}")
    a(f"v_lshlrev_b32 v{vXo}, 4, v{vL}")
    srd(a, sA, sP + 18, WS_HO, HO_SIZE)
    srd(a, sB, sP + 12, -4096, 3584 * 2048 + 4096)
    srd(a, sXs, sP + 0, 0, 2048 * 2048)
    srd(a, sO, sP + 14, 0, 2048 * 2048)
    srd(a, sPT, sP + 18, WS_PART, PART_SIZE)
    srd(a, sFL, sP + 18, WS_FLAG, FLAG_SIZE)
    a(f"s_lshl_b32 s3, s{sMT2}, 3", f"s_lshl_b32 s42, s{sW}, 1", "s_add_u32 s3, s3, s42", f"s_mul_i32 s{sX0}, s3, {HO_TB}",
      f"s_mul_i32 s42, s{sTY}, {KA*1024}", f"s_add_u32 s{sX0}, s{sX0}, s42", f"s_add_u32 s{sX1}, s{sX0}, {HO_TB}",
      f"s_mul_i32 s{sSo}, s{sTY}, {KA*32*2048}", f"s_lshl_b32 s{sM0}, s{sW}, 12",
      f"s_sub_u32 s{sNx}, s{sP+6}, 4096", f"s_subb_u32 s{sNx+1}, s{sP+7}, 0",
      f"s_cmp_eq_u32 s{sTY}, 0", f"s_cselect_b32 s{sLast}, {NITA-1}, {NITB-1}",
      f"s_cselect_b32 s{sNx+2}, 0, {hex(1024*2048+4096)}", f"s_cselect_b32 s45, 0, s{sA+2}",
      f"s_lshl_b32 s3, s{sMT2}, 3", f"s_add_u32 s3, s3, s{sNT2}", "s_lshl_b32 s43, s3, 16", f"s_lshl_b32 s42, s{sW}, 14", "s_add_u32 s43, s43, s42",
      "s_lshl_b32 s44, s3, 7", f"s_lshl_b32 s42, s{sW}, 2", "s_add_u32 s44, s44, s42", f"s_add_u32 s44, s44, {FL_PART}")
    def xload(S_):
        s = S_ & 15
        return [("vm", f"buffer_load_dwordx4 {ar(s*8+tb*4,4)}, v{vXo}, s[{sA}:{sA+3}], s{sX0+tb} offen offset:{(s&3)*1024}", ("X", S_, tb)) for tb in range(2)]
    def xadv():
        return [f"s_add_u32 s{sX0}, s{sX0}, 4096", f"s_add_u32 s{sX1}, s{sX1}, 4096"]
    def dma(t, i):
        return ("vm", f"buffer_load_dwordx4 v{vDo+i}, s[{sB}:{sB+3}], s{sSo} offen offset:{i*1024} lds", ("D", t))
    def m0(t):
        return f"s_add_u32 m0, s{sM0}, {(t&7)*16384}"
    def soadv():
        return f"s_add_u32 s{sSo}, s{sSo}, 0x20000"
    def reads(S_, typ):
        t, j = (S_ >> 1) & 3, S_ & 1
        st = WF + j * 32
        R = vR1 if typ == 1 else vR2
        return [f"ds_read_b64_tr_b16 {ar(st+q8*4+jj*2,2)}, v{R+(q8&3)} offset:{t*16384+j*8192+jj*(4096 if typ == 1 else 2048)+(q8>>2)*1024}"
                for q8 in range(8) for jj in range(2)]
    def step(S_, typ, site, final=False, extra=None):
        s = S_ & 15; Tt = S_ >> 1; j = S_ & 1
        acc = OUT if typ == 1 else S
        st = WF + j * 32
        m = [f"v_mfma_f32_16x16x32_bf16 {vr(acc+(tb*8+q)*4,4)}, {ar(st+q*4,4)}, {ar(s*8+tb*4,4)}, {vr(acc+(tb*8+q)*4,4)}"
             for tb in range(2) for q in range(8)]
        fill = {}
        need = [("X", S_, 0), ("X", S_, 1)]
        lastst = final and s == 15
        if j == 1 and not lastst:
            need.append(("D", Tt + 1))
        fill[-1] = [("wait", (site, s), need)]
        if j == 1 and not lastst:
            fill[-1].append("s_barrier")
        if not lastst:
            r = reads(S_ + 1, typ)
            spread(r, [0, 0, 1, 1, 2, 2, 3, 3, 4, 5, 6, 7, 8, 9, 10, 11], fill)
        R = vR1 if typ == 1 else vR2
        if s in (6, 14):
            spread([f"v_xor_b32 v{R+q}, 0x10000, v{R+q}" for q in range(4)], [12, 13, 14, 15], fill)
        if s == 0 and typ == 1:
            spread([[f"s_cmp_eq_u32 s{sCnt}, s{sLast}", f"s_cselect_b32 s{sA+2}, s45, s{sA+2}"]], [4], fill)
        if j == 1 and not final:
            if s == 1 and typ == 1:
                spread([[f"s_cmp_eq_u32 s{sCnt}, s{sLast}", f"s_cselect_b32 s{sB}, s{sNx}, s{sB}"],
                        [f"s_cselect_b32 s{sB+1}, s{sNx+1}, s{sB+1}", f"s_cselect_b32 s{sB+2}, s{sNx+2}, s{sB+2}"],
                        [f"s_cselect_b32 s{sSo}, 0, s{sSo}"]], [4, 5, 6], fill)
            spread([m0(Tt + 8), dma(Tt + 8, 0), dma(Tt + 8, 1)], [7, 10, 13], fill)
        if j == 0 and (not final or s == 0):
            spread([dma(Tt + 7, 2), dma(Tt + 7, 3), soadv()], [10, 13, 14], fill)
        if not final:
            x = xload(S_ + 16)
            spread(x, [8, 15], fill)
            if (s & 3) == 3:
                fill[15].extend(xadv())
        if extra:
            for g, its in extra.items():
                fill.setdefault(g, []).extend(its)
        return weave(m, fill)
    pro = []
    for t in range(8):
        pro += [m0(t), "s_nop 0"] + [dma(t, i) for i in range(4 if t < 7 else 2)] + ([soadv()] if t < 7 else [])
        pro += xload(2 * t) + xload(2 * t + 1)
        if t & 1:
            pro += xadv()
    pro += [f"v_mov_b32 v{i}, 0" for i in range(128)]
    pro += [("wait", "pro", [("D", 0)]), "s_barrier"] + reads(0, 1) + [f"s_mov_b32 s{sCnt}, 0"]
    rows = [70, 71, 72, 73, 74, 75, 82]
    def fin_extra(s):
        ex = {}
        if s == 0:
            ex[12] = [f"v_mov_b32 v{T}, s44", ]
            ex[15] = [("vm", f"buffer_load_dword v{T+1}, v{T}, s[{sFL}:{sFL+3}], 0 offen sc1", ("F",))]
        if s == 1:
            ex = {g: [f"s_mov_b32 s{rows[g]}, {(g+1)*8192}"] for g in range(7)}
        if s == 2:
            ex = {2*i: [("vm", f"buffer_load_dwordx4 {vr(XR+4*i,4)}, v{vXg}, s[{sXs}:{sXs+3}], {'0' if i == 0 else 's%d' % rows[i-1]} offen", ("x",))] for i in range(2, 8)}
            ex[1] = [("vm", f"buffer_load_dwordx4 {vr(XR,4)}, v{vXg}, s[{sXs}:{sXs+3}], 0 offen", ("x",))]
            ex[3] = [("vm", f"buffer_load_dwordx4 {vr(XR+4,4)}, v{vXg}, s[{sXs}:{sXs+3}], s{rows[0]} offen", ("x",))]
        PS = OPT.get("pstep", 7)
        if s == PS:
            ex[15] = [("wait", "flag", [("F",)]), f"v_readfirstlane_b32 s3, v{T+1}", "s_nop 0", "s_cmp_lg_u32 s3, 0", "s_cbranch_scc1 L2_flag_ok",
                      "s_mov_b32 s80, 0", "L2_poll:", f"buffer_load_dword v{T+1}, v{T}, s[{sFL}:{sFL+3}], 0 offen sc1", "s_waitcnt vmcnt(0)",
                      f"v_readfirstlane_b32 s3, v{T+1}", "s_add_u32 s80, s80, 1", "s_cmp_ge_u32 s80, 0x40000", "s_cbranch_scc1 L2_flag_ok",
                      "s_cmp_eq_u32 s3, 0", "s_cbranch_scc1 L2_poll", "L2_flag_ok:"]
        if PS < s <= PS + 4:
            k = s - PS - 1
            ex = {4*i+1: [("vm", f"buffer_load_dwordx4 {vr(P+16*k+4*i,4)}, v{vXo}, s[{sPT}:{sPT+3}], s43 offen offset:{i*1024} sc1", ("P",))] for i in range(4)}
            ex[15] = ["s_add_u32 s43, s43, 4096"]
        return ex
    trA = list(pro); trB = list(pro)
    for S_ in range(KA):
        trA += step(S_, 1, "h")
    nb = 112 - KA
    for S_ in range(nb):
        trB += step(S_, 1, "h")
    for S_ in range(nb, nb + 16):
        trB += step(S_, 2, "o0")
    for S_ in range(nb + 16, nb + 32):
        trB += step(S_, 2, "o1", True, fin_extra(S_ & 15))
    cnt = resolve([trA, trB])
    def emit(items):
        for it in items:
            if isinstance(it, tuple):
                if it[0] == "vm":
                    a(it[1])
                elif it[1] == "flag":
                    a(f"s_waitcnt vmcnt({cnt[it[1]]})")
                else:
                    a(f"s_waitcnt vmcnt({cnt[it[1]]}) lgkmcnt(0)")
            elif it.endswith(":"):
                a.label(it[:-1])
            else:
                a(it)
    emit(pro)
    stamp(a, 1, 2)
    a(".p2align 6")
    a.label("L2_loop")
    for s in range(16):
        emit(step(s, 1, "h"))
    a(f"s_add_u32 s{sCnt}, s{sCnt}, 1", f"s_cmp_le_u32 s{sCnt}, s{sLast}", "s_cbranch_scc1 L2_loop")
    stamp(a, 2, 2)
    a(f"s_cmp_eq_u32 s{sTY}, 1", "s_cbranch_scc1 L2_B")
    a.c("---- role A: publish the partial tile")
    a("s_nop 7")
    for i in range(16):
        a(f"buffer_store_dwordx4 {vr(OUT+4*i,4)}, v{vXo}, s[{sPT}:{sPT+3}], s43 offen offset:{(i&3)*1024} sc1")
        if (i & 3) == 3 and i < 15:
            a("s_add_u32 s43, s43, 4096")
    a(f"v_lshlrev_b32 v{T}, 20, v{vL}", f"v_add_u32 v{T}, s44, v{T}", f"v_mov_b32 v{T+1}, 1", "s_waitcnt vmcnt(0)")
    a(f"buffer_store_dword v{T+1}, v{T}, s[{sFL}:{sFL+3}], 0 offen sc1")
    stamp(a, 4, 2)
    a("s_endpgm")
    a.label("L2_B")
    a("s_waitcnt lgkmcnt(0)")
    a(reads(nb, 2))
    for S_ in range(nb, nb + 16):
        emit(step(S_, 2, "o0"))
    for S_ in range(nb + 16, nb + 32):
        emit(step(S_, 2, "o1", True, fin_extra(S_ & 15)))
    stamp(a, 3, 2)
    a.c("---- role B epilogue")
    a(f"s_mov_b32 s{sT0+4}, {hex(NLOG2E)}", f"s_mov_b32 s{sT0+5}, {hex(NLOG2E)}", "s_mov_b32 s48, 0xffff0000")
    a("s_waitcnt vmcnt(0)")
    for i in range(0, 64, 2):
        a(f"v_pk_add_f32 {vr(OUT+i,2)}, {vr(OUT+i,2)}, {vr(P+i,2)}")
    E = P
    for i in range(0, 64, 2):
        a(f"v_pk_mul_f32 {vr(E+i,2)}, {vr(OUT+i,2)}, s[{sT0+4}:{sT0+5}]")
    for i in range(64):
        a(f"v_exp_f32 v{E+i}, v{E+i}")
    for i in range(0, 64, 2):
        a(f"v_pk_add_f32 {vr(E+i,2)}, {vr(E+i,2)}, 1.0 op_sel_hi:[1,0]")
    for i in range(0, 64, 2):
        a(f"v_pk_mul_f32 {vr(OUT+i,2)}, {vr(OUT+i,2)}, {vr(S+i,2)}")
    for k in range(16):
        for i in range(4 * k, 4 * k + 4):
            a(f"v_rcp_f32 v{E+i}, v{E+i}")
        if k > 0:
            p = k - 1
            a(f"v_pk_mul_f32 {vr(E+4*p,2)}, {vr(E+4*p,2)}, {vr(OUT+4*p,2)}", f"v_pk_mul_f32 {vr(E+4*p+2,2)}, {vr(E+4*p+2,2)}, {vr(OUT+4*p+2,2)}",
              f"v_cvt_pk_bf16_f32 v{E+4*p}, v{E+4*p}, v{E+4*p+1}", f"v_cvt_pk_bf16_f32 v{E+4*p+1}, v{E+4*p+2}, v{E+4*p+3}",
              f"ds_write_b64 v{vEw+(p&7)}, {vr(E+4*p,2)} offset:{(p>>3)*4096}")
    p = 15
    a("s_nop 0", f"v_pk_mul_f32 {vr(E+4*p,2)}, {vr(E+4*p,2)}, {vr(OUT+4*p,2)}", f"v_pk_mul_f32 {vr(E+4*p+2,2)}, {vr(E+4*p+2,2)}, {vr(OUT+4*p+2,2)}",
      f"v_cvt_pk_bf16_f32 v{E+4*p}, v{E+4*p}, v{E+4*p+1}", f"v_cvt_pk_bf16_f32 v{E+4*p+1}, v{E+4*p+2}, v{E+4*p+3}",
      f"ds_write_b64 v{vEw+(p&7)}, {vr(E+4*p,2)} offset:{(p>>3)*4096}")
    for i in range(32):
        a(f"v_lshlrev_b32 v{OUT+2*i}, 16, v{XR+i}", f"v_and_b32 v{OUT+2*i+1}, s48, v{XR+i}")
        if i == 3:
            a("s_waitcnt lgkmcnt(0)")
            for k in range(8):
                a(f"ds_read_b128 {vr(S+4*k,4)}, v{vEr+(k&3)} offset:{k*1024}")
    for i in range(8):
        a(f"s_waitcnt lgkmcnt({7-i})")
        for k in range(4):
            r = 4 * i + k
            a(f"v_lshlrev_b32 v{E+2*k}, 16, v{S+r}", f"v_and_b32 v{E+2*k+1}, s48, v{S+r}")
        for k in range(4):
            r = 4 * i + k
            a(f"v_pk_add_f32 {vr(OUT+2*r,2)}, {vr(OUT+2*r,2)}, {vr(E+2*k,2)}")
        for k in range(4):
            r = 4 * i + k
            a(f"v_cvt_pk_bf16_f32 v{XR+r}, v{OUT+2*r}, v{OUT+2*r+1}")
        a(f"buffer_store_dwordx4 {vr(XR+4*i,4)}, v{vXg}, s[{sO}:{sO+3}], {'0' if i == 0 else 's%d' % rows[i-1]} offen")
    stamp(a, 4, 2)
    if OPT["stamp"]:
        a("s_waitcnt vmcnt(0)")
        stamp(a, 5, 2)
    a("s_endpgm")

def k2():
    a = Asm()
    a.label("gemm2_kernel")
    a("s_cmp_ge_u32 s2, 256", "s_cbranch_scc1 L2_end")
    for i in (0, 3, 6, 7, 9):
        a(f"s_load_dwordx2 s[{sP+2*i}:{sP+2*i+1}], s[0:1], {8*i}")
    a(f"v_and_b32 v{vL}, 63, v0", "v_lshrrev_b32 v1, 6, v0", "s_nop 0", f"v_readfirstlane_b32 s{sW}, v1")
    if OPT.get("k2map", 0) == 0:
        a(f"s_bfe_u32 s{sTY}, s2, 0x10002", "s_and_b32 s3, s2, 1", f"s_lshl_b32 s{sMT}, s3, 3", "s_bfe_u32 s3, s2, 0x30003", f"s_add_u32 s{sMT}, s{sMT}, s3",
          "s_bfe_u32 s3, s2, 0x10001", f"s_lshl_b32 s{sIDX}, s3, 2", "s_bfe_u32 s3, s2, 0x20006", f"s_add_u32 s{sIDX}, s{sIDX}, s3")
    else:
        a(f"s_bfe_u32 s{sTY}, s2, 0x10007", "s_and_b32 s3, s2, 3", f"s_lshl_b32 s{sMT}, s3, 2", "s_bfe_u32 s3, s2, 0x20003", f"s_add_u32 s{sMT}, s{sMT}, s3",
          "s_bfe_u32 s3, s2, 0x10002", f"s_lshl_b32 s{sIDX}, s3, 2", "s_bfe_u32 s3, s2, 0x20005", f"s_add_u32 s{sIDX}, s{sIDX}, s3")
    a("s_waitcnt lgkmcnt(0)")
    stamp_setup(a, 2, sP + 18, sW)
    stamp(a, 0, 2)
    phase2(a, sMT, sIDX)
    a.label("L2_end")
    a("s_endpgm")
    return a

def touch(name, regions):
    a = Asm()
    a.label(name)
    a("s_cmp_ge_u32 s2, 256", f"s_cbranch_scc1 {name}_end")
    for n, (pi, off, size) in enumerate(regions):
        a(f"s_load_dwordx2 s[4:5], s[0:1], {8*pi}", "s_waitcnt lgkmcnt(0)")
        srd(a, 8, 4, off, size)
        per = size // 256
        sh = OPT.get("tsh", 4)
        a(f"s_mul_i32 s3, s2, {per}", f"v_lshlrev_b32 v1, {sh}, v0", "v_add_u32 v1, s3, v1")
        for i in range(-(-per // (256 << sh))):
            a(f"buffer_load_dword{'x4 v[4:7]' if sh == 4 else ' v4'}, v1, s[8:11], 0 offen", f"v_add_u32 v1, {hex(256 << sh)}, v1")
    a("s_waitcnt vmcnt(0)")
    a.label(name + "_end")
    a("s_endpgm")
    return a

def build():
    ks = [("ln_kernel", k0(), 64, 64, 0), ("gemm1_kernel", k1(), 256 + 192, 256, K1_LDS), ("gemm2_kernel", k2(), 256 + 192, 256, K2_LDS)]
    if OPT.get("tw2"):
        ks.insert(2, ("tw2_kernel", touch("tw2_kernel", [(6, 0, 3584*2048), (3, 0, 1024*2048)]), 64, 64, 0))
    if OPT.get("th"):
        ks.insert(2, ("th_kernel", touch("th_kernel", [(9, WS_HO, HO_SIZE)]), 64, 64, 0))
    if OPT.get("tw1"):
        ks.insert(1, ("tw1_kernel", touch("tw1_kernel", [(1, 0, 1024*6144), (5, 0, 1024*7168)]), 64, 64, 0))
    if OPT.get("tho"):
        ks.insert(1, ("tho_kernel", touch("tho_kernel", [(9, WS_HO, HO_SIZE)]), 64, 64, 0))
    out = ["; generated by gen/gen.py: layernorm -> (qkv+hedgehog attention | ffn1+silu) -> (ffn2, wo, gate, residual)"]
    for n, _, _, _, lds in ks:
        out.append(f"; @launch kernel={n} grid=(256,1,1) block=(256,1,1) lds={lds}")
    out.append('.amdgcn_target "amdgcn-amd-amdhsa--gfx950"')
    out.append(".text")
    bad = 0
    for n, a, _, _, _ in ks:
        for p in check_hazards(a.lines):
            print(f"HAZARD {n}: {p}", file=sys.stderr); bad += 1
        out += [f".globl {n}", ".p2align 8", f".type {n},@function", a.text()]
    out += ['.section .rodata,"a"']
    for n, _, v, acc, _ in ks:
        out += [".p2align 6", kernel_desc(n, v, acc)]
    return "\n".join(out), bad

if __name__ == "__main__":
    dst = f"cdna_kernels/{NAME}.s"
    for arg in sys.argv[1:]:
        if "=" in arg:
            k, v = arg.split("=")
            if k == "out": dst = v
            else: OPT[k] = int(v)
    txt, bad = build()
    open(dst, "w").write(txt)
    print("wrote", dst, len(txt), "bytes; hazards:", bad)
```

```python
import re

def vr(a, n=1):
    return f"v{a}" if n == 1 else f"v[{a}:{a+n-1}]"
def ar(a, n=1):
    return f"a{a}" if n == 1 else f"a[{a}:{a+n-1}]"
def sr(a, n=1):
    return f"s{a}" if n == 1 else f"s[{a}:{a+n-1}]"

class Asm:
    def __init__(self):
        self.lines = []
    def __call__(self, *ls):
        for l in ls:
            if isinstance(l, (list, tuple)):
                self(*l)
            else:
                for x in l.split("\n"):
                    x = x.strip()
                    if x:
                        self.lines.append(x)
    def label(self, name):
        self.lines.append(name + ":")
    def c(self, text):
        self.lines.append("; " + text)
    def text(self):
        out = []
        for l in self.lines:
            out.append(l if (l.endswith(":") or l.startswith(".") or l.startswith(";")) else " " + l.replace(" offset:0", ""))
        return "\n".join(out) + "\n"

def weave(main, fill):
    out = list(fill.get(-1, []))
    for i, m in enumerate(main):
        out.append(m)
        out.extend(fill.get(i, []))
    for g in fill:
        assert g < len(main), g
    return out

def spread(items, gaps, fill=None):
    fill = {} if fill is None else fill
    assert len(items) <= len(gaps), (len(items), len(gaps))
    for it, g in zip(items, gaps):
        fill.setdefault(g, [])
        fill[g].extend(it if isinstance(it, list) else [it])
    return fill

_REG = re.compile(r"(?<![\w.])(-?)(?:abs\()?([vas])(\d+|\[(\d+):(\d+)\])")
def _regs(op):
    out = set()
    for m in _REG.finditer(op):
        k = m.group(2)
        if m.group(4) is not None:
            out |= {(k, i) for i in range(int(m.group(4)), int(m.group(5)) + 1)}
        else:
            out.add((k, int(m.group(3))))
    if re.search(r"\bvcc\b", op): out |= {("s", 106), ("s", 107)}
    if re.search(r"\bm0\b", op): out.add(("s", 124))
    if re.search(r"\bexec\b", op): out |= {("s", 126), ("s", 127)}
    return out

TRANS = ("v_exp_f32", "v_log_f32", "v_rcp_f32", "v_rsq_f32", "v_sqrt_f32")
def classify(line):
    t = line.split(";")[0].strip()
    if not t or t.endswith(":") or t.startswith("."):
        return None
    parts = t.split(None, 1)
    op = parts[0]
    ops = [x.strip() for x in parts[1].split(",")] if len(parts) > 1 else []
    d = dict(op=op, text=t, w=set(), r=set(), kind="other", passes=0, states=1)
    base = op.replace("_e32", "").replace("_e64", "").replace("_dpp", "")
    if op == "s_nop":
        d["states"] = int(ops[0], 0) + 1
    elif op.startswith("v_mfma"):
        d["kind"] = "mfma"; d["passes"] = 8 if "32x32" in op else 4
        d["w"] = _regs(ops[0]); d["ra"] = _regs(ops[1]) | _regs(ops[2]); d["rc"] = _regs(ops[3]); d["r"] = d["ra"] | d["rc"]
    elif op.startswith("v_permlane"):
        d["kind"] = "valu"; d["perm"] = True
        d["w"] = _regs(ops[0]) | _regs(ops[1]); d["r"] = set(d["w"])
    elif op.startswith("v_readfirstlane") or op.startswith("v_readlane"):
        d["kind"] = "valu"; d["rl"] = True
        d["w"] = _regs(ops[0]); d["r"] = set().union(*[_regs(o) for o in ops[1:]])
    elif op.startswith("v_cmp"):
        d["kind"] = "valu"; d["w"] = _regs(ops[0]); d["r"] = set().union(*[_regs(o) for o in ops[1:]])
    elif op.startswith("v_"):
        d["kind"] = "valu"; d["w"] = _regs(ops[0]); d["r"] = set().union(*[_regs(o) for o in ops[1:]]) if len(ops) > 1 else set()
        if base in ("v_fmac_f32", "v_dot2c_f32_bf16"): d["r"] |= d["w"]
        if "_co_" in op: d["w"] |= _regs(ops[1])
        if base in TRANS: d["trans"] = True
        if "_dpp" in op or "row_" in t or "quad_perm" in t: d["dpp"] = True
        m = re.search(r"op_sel:\[([0-9,]+)\]", t)
        if op.startswith("v_pk_") and m and "1" in m.group(1): d["opsel"] = True
    elif op.startswith("ds_read"):
        d["kind"] = "ds"; d["w"] = _regs(ops[0]); d["r"] = _regs(ops[1])
    elif op.startswith("ds_write"):
        d["kind"] = "ds"; d["r"] = set().union(*[_regs(o) for o in ops])
    elif op.startswith("buffer_load") or op.startswith("global_load"):
        d["kind"] = "vmem"
        if re.search(r"\blds\b", t):
            d["r"] = set().union(*[_regs(o) for o in ops]) | {("s", 124)}; d["dma"] = True
        else:
            d["w"] = _regs(ops[0]); d["r"] = set().union(*[_regs(o) for o in ops[1:]])
    elif op.startswith("buffer_store") or op.startswith("global_store") or "atomic" in op:
        d["kind"] = "vmem"; d["r"] = set().union(*[_regs(o) for o in ops])
        if "x4" in op or "x3" in op:
            d["wide"] = _regs(ops[0] if op.startswith("buffer") else ops[1])
    elif op.startswith("s_"):
        d["kind"] = "salu"
        if op.startswith(("s_cmp", "s_bitcmp", "s_cbranch", "s_branch", "s_waitcnt", "s_barrier", "s_sleep", "s_setprio", "s_endpgm")):
            d["r"] = set().union(*[_regs(o) for o in ops]) if ops else set()
        else:
            d["w"] = _regs(ops[0]); d["r"] = set().union(*[_regs(o) for o in ops[1:]]) if len(ops) > 1 else set()
    return d

def need(p, c):
    n = 0
    vw = {x for x in p["w"] if x[0] in "va"}
    sw = {x for x in p["w"] if x[0] == "s"}
    if p["kind"] == "valu":
        if p.get("opsel") and c["kind"] == "mfma": n = max(n, 1)
        if c["kind"] == "mfma" and vw & c["r"]: n = max(n, 2)
        if c.get("perm") and vw & c["r"]: n = max(n, 2)
        if c.get("dpp") and vw & c["r"]: n = max(n, 2)
        if c.get("rl") and vw & c["r"]: n = max(n, 1)
        if p.get("trans") and c["kind"] in ("valu",) and not c.get("trans") and vw & c["r"]: n = max(n, 1)
        if p.get("trans") and c["kind"] in ("ds", "vmem", "mfma") and vw & c["r"]: n = max(n, 2)
        if sw and c["kind"] == "vmem" and sw & c["r"]: n = max(n, 5)
        if sw and c["kind"] == "valu" and sw & c["r"]: n = max(n, 4 if c.get("rl") else 2)
        if sw and c["kind"] == "salu" and sw & c["r"]: n = max(n, 1)
    if p["op"].startswith("v_dot") and c["kind"] in ("valu", "mfma", "ds", "vmem") and vw & (c["r"] | c["w"]):
        n = max(n, 0 if (c["op"] == p["op"] and vw == c["w"]) else 3)
    if p["kind"] == "salu" and ("s", 124) in sw and c.get("dma"): n = max(n, 1)
    if p["kind"] == "mfma":
        P = p["passes"]
        full = {4: 8, 8: 12}[P]; part = {4: 6, 8: 10}[P]; war = {4: 3, 8: 7}[P]
        if c["kind"] == "mfma":
            if vw & c["ra"]: n = max(n, full)
            if vw & c["rc"]:
                if not (c["rc"] == vw and c["passes"] == P): n = max(n, part)
            elif vw & c["w"]: n = max(n, part)
        elif c["kind"] in ("valu", "ds", "vmem"):
            if vw & (c["r"] | c["w"]): n = max(n, full)
        if c["kind"] == "valu" and p["rc"] & c["w"]: n = max(n, war)
    if p.get("wide") and c["kind"] == "valu" and p["wide"] & c["w"]: n = max(n, 2)
    if p.get("wide") and c["kind"] in ("ds", "vmem", "mfma") and p["wide"] & c["w"]: n = max(n, 1)
    return n

def check_hazards(lines, window=24):
    ins = [(i, classify(l)) for i, l in enumerate(lines)]
    ins = [(i, d) for i, d in ins if d]
    probs = []
    for k, (i, c) in enumerate(ins):
        dist = 0
        for j in range(k - 1, max(-1, k - window), -1):
            p = ins[j][1]
            if p["op"] in ("s_endpgm", "s_branch"): break
            n = need(p, c)
            if n > dist:
                probs.append(f"line {i}: '{c['text']}' needs {n} states after '{p['text']}' (has {dist})")
            dist += p["states"]
            if dist > 20: break
    return probs

def text_of(it):
    return it[1] if isinstance(it, tuple) and it[0] == "vm" else it

def autonop(lines, window=24):
    out = []; hist = []
    for l in lines:
        c = classify(l)
        if c is None:
            out.append(l); continue
        short = 0; dist = 0
        for p in reversed(hist[-window:]):
            if p["op"] in ("s_endpgm", "s_branch"): break
            short = max(short, need(p, c) - dist)
            dist += p["states"]
            if dist > 20: break
        while short > 0:
            k = min(short, 8)
            out.append(f"s_nop {k-1}"); hist.append(classify(f"s_nop {k-1}")); short -= k
        out.append(l); hist.append(c)
    return out

def zipper(*streams):
    streams = [list(s) for s in streams if s]
    n = [len(s) for s in streams]; pos = [0] * len(streams); out = []
    while any(p < k for p, k in zip(pos, n)):
        i = min((j for j in range(len(streams)) if pos[j] < n[j]), key=lambda j: (pos[j] + 0.5) / n[j])
        out.append(streams[i][pos[i]]); pos[i] += 1
    return out

def sprinkle(base, items, start=0, every=None, end=None):
    base = list(base); end = len(base) if end is None else end
    k = len(items)
    if k == 0: return base
    out = []; j = 0
    for i, b in enumerate(base):
        out.append(b)
        while j < k and i >= start and i >= start + (j * (end - start)) // k:
            it = items[j]; out.extend(it if isinstance(it, list) else [it]); j += 1
    while j < k:
        it = items[j]; out.extend(it if isinstance(it, list) else [it]); j += 1
    return out
```

```python
import sys, os
sys.path.insert(0, os.path.dirname(os.path.abspath(__file__)))
from asmlib import *

NAME = "recurrent_scan__linear_kernel_hedgehog__dense_activation_silu__prompt"
KNAME = NAME + "_kernel"
WS_HO = 0x400000
HO_TB = 144 * 1024
HO_SIZE = 128 * HO_TB
WS_KV = 0x1600000; KV_SIZE = 32 * 2 * 8 * 4096
WS_SM = 0x1800000; SM_SIZE = 0x72000; SM_Z = 0; SM_ST = 0x52000; SM_CS = 0x12000
WS_FLAG = 0x1900000; FLAG_SIZE = 0x8000
FL_KV, FL_PART, FL_H, FL_O = 0, 0x2000, 0x6000, 0x6400
WS_PART = 0x1A00000; PART_SIZE = 128 * 65536
WS_STAMP = 0x3000000
LOG2E, NLOG2E, NLN2 = 0x3fb8aa3b, 0xbfb8aa3b, 0xbf317218
OPT = dict(stamp=0, pf=1, pfl=32, kw2=3, ka=56, rot=1, ctouch=1)

G1_SLOT = 36864; G2 = 3 * G1_SLOT; G2_SLOT = 12288
LDS_TOP = G2 + 4 * G2_SLOT
L_CS, L_M, L_R, L_D = LDS_TOP, LDS_TOP + 1024, LDS_TOP + 2048, LDS_TOP + 3072
LDS_SIZE = 163840
sA, sB, sHO, sU, sV = 8, 12, 16, 20, 24
sW, sTH, sNH = 28, 29, 30
sSoffA, sSoffB, sSoffH, sRd, sWr, sDelta, sM0A, sM0B, sCnt, sMT, sIDX = 31, 32, 33, 34, 35, 36, 37, 38, 39, 40, 41
sT0 = 42; sK = 46
sP = 48
sE = 68
sFL, sPoll, sTY, sMT2, sNT2 = 76, 80, 81, 82, 83
sDI, sDI1 = 88, 89
sSM, sDBG = 92, 96
sST = 100
vAoff, vBoff, vBh, vXa, vWa, vWh = 224, 232, 235, 236, 238, 240
vT = 241
vXb, vWhb = 241, 243
vPF = 250
vL = 255
F0 = 192
SETREG = 60
aWP, aCS, aONE, aX = 120, 156, 128, 160

def srd(s, base, off, size):
    o = []
    if isinstance(off, str):
        o += [f"s_add_u32 s{s}, s{base}, {off}", f"s_addc_u32 s{s+1}, s{base+1}, 0"]
    elif off == 0:
        o += [f"s_mov_b32 s{s}, s{base}", f"s_mov_b32 s{s+1}, s{base+1}"]
    elif off < 0:
        o += [f"s_sub_u32 s{s}, s{base}, {-off}", f"s_subb_u32 s{s+1}, s{base+1}, 0"]
    else:
        o += [f"s_add_u32 s{s}, s{base}, {hex(off)}", f"s_addc_u32 s{s+1}, s{base+1}, 0"]
    return o + [f"s_mov_b32 s{s+2}, {hex(size)}", f"s_mov_b32 s{s+3}, 0x20000"]

def stamp(idx):
    if not OPT["stamp"]:
        return []
    return [f"s_memrealtime s[{sST}:{sST+1}]", "s_waitcnt lgkmcnt(0)", f"v_mov_b32 v254, s{sST}",
            f"buffer_store_dword v254, v253, s[84:87], 0 offen offset:{idx*4}",
            f"s_memtime s[{sST}:{sST+1}]", "s_waitcnt lgkmcnt(0)", f"v_mov_b32 v254, s{sST}",
            f"buffer_store_dword v254, v253, s[84:87], 0 offen offset:{64+idx*4}"]

def resolve(traces):
    cnt = {}
    for dyn in traces:
        issued = []
        for it in dyn:
            if isinstance(it, tuple) and it[0] == "vm":
                issued.append(it[2])
            elif isinstance(it, tuple) and it[0] == "wait":
                idx = [i for i, tg in enumerate(issued) if tg in it[2]]
                for tg in it[2]:
                    assert tg in issued, (it, tg)
                cnt[it[1]] = min(cnt.get(it[1], 63), len(issued) - 1 - max(idx))
    return cnt

def render(items, cnt):
    out = []
    for it in items:
        if isinstance(it, tuple):
            if it[0] == "vm":
                out.append(it[1])
            else:
                out.append(f"s_waitcnt vmcnt({cnt[it[1]]})" + (" lgkmcnt(0)" if len(it) < 4 else ""))
        else:
            out.append(it)
    return out

def flat(x):
    o = []
    for it in x:
        o.extend(it if isinstance(it, list) else [it])
    return o

def poll(label, dst, addr, srdreg, target, cmp="lt"):
    return [f"s_mov_b32 s{sPoll}, 0", f"{label}:", f"buffer_load_dword v{dst}, v{addr}, s[{srdreg}:{srdreg+3}], 0 offen sc1", "s_waitcnt vmcnt(0)",
            f"v_readfirstlane_b32 s3, v{dst}", f"s_add_u32 s{sPoll}, s{sPoll}, 1", f"s_cmp_ge_u32 s{sPoll}, 0x40000", f"s_cbranch_scc1 {label}_ok",
            f"s_cmp_lt_u32 s3, {target}", f"s_cbranch_scc1 {label}", f"{label}_ok:"]

def acc_reg(ffn, ng, tb):
    if ffn:
        return ("v", (tb * 6 + ng) * 4) if ng < 6 else ("a", aX + tb * 4)
    return ("v", (ng >> 1) * 64 + tb * 8 + (ng & 1) * 4)

def xrows():
    return [f"buffer_load_dwordx4 {vr(200+8*r+4*h,4)}, v199, s[{sA}:{sA+3}], 0 offen offset:{r*2048+h*1024}" for r in range(2) for h in range(2)]

def place(nm, reads, main, side):
    fill = {}
    nr = len(reads)
    spread(reads, list(range(nr)), fill)
    load = [1 if g < nr else 0 for g in range(nm)]
    k = len(main)
    lo = nr if k <= nm - nr else max(0, nm - k)
    for i, it in enumerate(main):
        g = lo + (i * (nm - lo)) // k
        fill.setdefault(g, []).extend(it if isinstance(it, list) else [it]); load[g] += 2
    k = len(side)
    if k:
        order = sorted(range(1, nm), key=lambda g: (load[g], -g))
        gaps = []
        while len(gaps) < k:
            gaps += order[:k - len(gaps)]
        free = [g for g in range(1, nm) if load[g] == 0]
        if k <= len(free):
            gaps = [free[(i * len(free)) // k] for i in range(k)]
        for it, g in zip(side, sorted(gaps)):
            fill.setdefault(g, []).extend(it if isinstance(it, list) else [it])
    return fill

def phase1(a, ffn, tail_side):
    tag = "F" if ffn else "Q"
    RS = 7168 if ffn else 6144
    ngs = 7 if ffn else 6
    nm = ngs * 8
    PF, PFL = OPT["pf"], OPT["pfl"]
    chunk = PFL * 128
    nown = OPT.get("nown", 0)
    nw2 = -(-(3584 * 2048) // (1024 * chunk))
    def R(k, n): return vr(k[1], n) if k[0] == "v" else ar(k[1], n)
    def mfmas(s):
        base = (s & 1) * SETREG
        out = []
        for ng in range(ngs):
            for tb in range(8):
                X = ar(base + tb * 4, 4); W = ar(base + 32 + ng * 4, 4); D = R(acc_reg(ffn, ng, tb), 4)
                C = "0" if s == 0 else D
                if (not ffn) and ng >= 4:
                    out.append(f"v_mfma_f32_16x16x32_bf16 {D}, {X}, {W}, {C}")
                else:
                    out.append(f"v_mfma_f32_16x16x32_bf16 {D}, {W}, {X}, {C}")
        return out
    def reads(u):
        base = (u & 1) * SETREG
        j = u & 1; slot = u & 3; g1 = (u >> 1) % 3
        xa, wh, o1 = (vXa + j, vWh, g1 * G1_SLOT) if g1 < 2 else (vXb + j, vWhb, 0)
        xs = [f"ds_read_b128 {ar(base+tb*4,4)}, v{xa} offset:{o1+tb*2048}" for tb in range(8)]
        ws = []
        for ng in range(ngs):
            for jj in range(2):
                dst = ar(base + 32 + ng * 4 + jj * 2, 2)
                if ng < 6:
                    ws.append(f"ds_read_b64_tr_b16 {dst}, v{vWa+(ng&1)} offset:{slot*G2_SLOT+(ng>>1)*1024+jj*512}")
                else:
                    ws.append(f"ds_read_b64_tr_b16 {dst}, v{wh} offset:{o1+j*2048+jj*256}")
        return ws[:2] + xs + ws[2:]
    def dma_B(u):
        out = [f"s_add_u32 m0, s{sM0B}, {(u&3)*G2_SLOT}"]
        out += [("vm", f"buffer_load_dwordx4 v{vBoff+b}, s[{sB}:{sB+3}], s{sSoffB} offen offset:{b*1024} lds", ("B", u)) for b in range(3)]
        if u < 31:
            out.append(f"s_mov_b32 s{sSoffB}, s{sT0+3}" if u == 15 else f"s_add_u32 s{sSoffB}, s{sSoffB}, {32*RS}")
        return out
    def dma_A(t, half):
        out = [f"s_add_u32 m0, s{sM0A}, {(t%3)*G1_SLOT+half*4096}"]
        out += [("vm", f"buffer_load_dwordx4 v{vAoff+half*4+i}, s[{sA}:{sA+3}], s{sSoffA} offen offset:{i*1024} lds", ("A", t)) for i in range(4)]
        if half and ffn:
            out += [f"s_add_u32 m0, s{sT0}, {(t%3)*G1_SLOT}", ("vm", f"buffer_load_dwordx4 v{vBh}, s[{sB}:{sB+3}], s{sSoffH} offen lds", ("A", t))]
            if t < 15:
                out.append(f"s_mov_b32 s{sSoffH}, s{sT0+3}" if t == 7 else f"s_add_u32 s{sSoffH}, s{sSoffH}, {64*RS}")
        if half and t < 15:
            out.append(f"s_mov_b32 s{sSoffA}, s{sT0+2}" if t == 7 else f"s_add_u32 s{sSoffA}, s{sSoffA}, 128")
        return out
    def window(u):
        o = dma_B(u + 3) if 0 <= u + 3 < 32 else []
        t = (u >> 1) + 2
        return o + (dma_A(t, u & 1) if t < 16 else [])
    def touch(k):
        o = []
        if 0 < k < nown: o = [f"s_add_u32 s{sV}, s{sV}, {256*chunk}"]
        if k == nown: o = [f"s_mov_b32 s{sU}, s{sP+12}", f"s_mov_b32 s{sU+1}, s{sP+13}", f"s_mov_b32 s{sU+2}, {hex(3584*2048)}", f"s_mov_b32 s{sV}, s{sV+2}"]
        if nown < k < nown + nw2: o = [f"s_add_u32 s{sV}, s{sV}, {1024*chunk}"]
        if k == nown + nw2: o = [f"s_mov_b32 s{sU}, s{sP+6}", f"s_mov_b32 s{sU+1}, s{sP+7}", f"s_mov_b32 s{sU+2}, {hex(1024*2048)}", f"s_mov_b32 s{sV}, s{sV+2}"]
        return o + [("vm", f"buffer_load_dword v{vPF+1}, v{vPF}, s[{sU}:{sU+3}], s{sV} offen", ("pf", k))]
    tsteps = [OPT.get("t0", 1) + OPT.get("town", 4) * k for k in range(nown)] + [OPT.get("tw0", 9) + OPT.get("tw", 4) * k for k in range(nw2 + 1)]
    vCSo, vSig, vOne, vSig2, vG, vF = F0, F0 + 1, F0 + 2, F0 + 3, F0 + 4, F0 + 3
    ool = []
    def needs(u):
        return [("B", u)] + ([("A", u >> 1)] if u % 2 == 0 else [])
    def cond(name, val, body):
        ool.extend([f"L1{tag}_{name}:"] + body + [f"s_branch L1{tag}_{name}_r"])
        return [f"s_cmp_eq_u32 s{sDI}, {val}", f"s_cbranch_scc1 L1{tag}_{name}", f"L1{tag}_{name}_r:"]
    RAW = [200, 208]; HI = 216; s0, t0 = 244, 245; M = 246; RES = 248
    def row_stats(r):
        raw = RAW[r]
        def allsum():
            o = [f"v_add_f32 v{s0}, v{s0}, v{t0}"]
            for pat in ("quad_perm:[1,0,3,2]", "quad_perm:[2,3,0,1]", "row_half_mirror", "row_mirror"):
                o.append(f"v_add_f32_dpp v{s0}, v{s0}, v{s0} {pat} row_mask:0xf bank_mask:0xf")
            for pl in ("v_permlane16_swap_b32", "v_permlane32_swap_b32"):
                o += [f"v_mov_b32 v{t0}, v{s0}", f"{pl} v{s0}, v{t0}", f"v_add_f32 v{s0}, v{s0}, v{t0}"]
            return o
        rnd = [f"v_cvt_pk_bf16_f32 v{s0}, v{s0}, v{s0}", f"v_and_b32 v{s0}, 0xffff0000, v{s0}"]
        o = []
        for i in range(8):
            o += [f"v_and_b32 v{HI+i}, 0xffff0000, v{raw+i}", f"v_lshlrev_b32 v{raw+i}, 16, v{raw+i}"]
        o += [f"v_add_f32 v{s0}, v{raw}, v{raw+1}", f"v_add_f32 v{t0}, v{HI}, v{HI+1}"]
        for i in range(2, 8):
            o += [f"v_add_f32 v{s0}, v{s0}, v{raw+i}", f"v_add_f32 v{t0}, v{t0}, v{HI+i}"]
        o += allsum() + [f"v_mul_f32 v{M}, 0x3a800000, v{s0}"]
        for i in range(8):
            o += [f"v_sub_f32 v{raw+i}, v{raw+i}, v{M}", f"v_sub_f32 v{HI+i}, v{HI+i}, v{M}"]
        o += [f"v_mul_f32 v{s0}, v{raw}, v{raw}", f"v_mul_f32 v{t0}, v{HI}, v{HI}"]
        for i in range(1, 8):
            o += [f"v_fmac_f32 v{s0}, v{raw+i}, v{raw+i}", f"v_fmac_f32 v{t0}, v{HI+i}, v{HI+i}"]
        o += allsum() + [f"v_mul_f32 v{s0}, 0x3a800000, v{s0}"] + rnd + [f"v_add_f32 v{s0}, 0x3727c5ac, v{s0}"] + rnd
        return o + [f"v_sqrt_f32 v{s0}, v{s0}", f"v_lshrrev_b32 v{t0}, 3, v{vL}", f"v_cvt_pk_bf16_f32 v{RES+r}, v{M}, v{s0}"]
    stats = row_stats(0) + row_stats(1) + [f"v_lshlrev_b32 v{t0}, 20, v{t0}", f"v_lshl_add_u32 v{t0}, v{vL}, 4, v{t0}",
             ("vm", f"buffer_store_dwordx4 {vr(RES,4)}, v{t0}, s[{sSM}:{sSM+3}], s{sE+6} offen sc1", ("st",))]
    XS = OPT.get("xs", 1); ST0 = OPT.get("st0", 4); ST1 = OPT.get("st1", 10); SG = OPT.get("sg", 2)
    nst = ST1 - ST0 + 1
    def step(s):
        u = s + 1
        front, side, more = [], [], []
        main = window(-1) + window(0) if s == 0 else window(1) + window(2) if s == 1 else window(u) if s < 31 else []
        if PF and s in tsteps:
            t = touch(tsteps.index(s)); side += t[:-1]; main += t[-1:]
        if s < 16:
            base = (s & 1) * SETREG
            side.append(cond(f"d{s}", s >> 2, [f"v_mfma_f32_16x16x32_bf16 {ar(aCS,4)}, {ar(base+32+ng*4,4)}, {ar(aONE+4*ng,4)}, {'0' if s & 3 == 0 and ng == 0 else ar(aCS,4)}" for ng in range(ngs)]))
        if XS <= s < XS + 2:
            main += [("vm", x, ("xr", s - XS)) for x in xrows()[2 * (s - XS):2 * (s - XS) + 2]]
        if s == ST0:
            more.append(("xr", 0))
        if s == ST0 + nst // 2 - 1:
            more.append(("xr", 1))
        if ST0 <= s <= ST1:
            side += stats[((s - ST0) * len(stats)) // nst:((s - ST0 + 1) * len(stats)) // nst]
        if s in (4, 8, 12, 16):
            main = [cond(f"p{s}", s // 4 - 1, [f"buffer_store_dwordx4 {ar(aCS,4)}, v{vCSo}, s[{sSM}:{sSM+3}], s{sE+7} offen sc1"])] + main
        if s in (8, 12, 16, 20):
            main.append(cond(f"g{s}", s // 4 - 2, [f"buffer_atomic_add v{vOne}, v{vSig2}, s[{sDBG}:{sDBG+3}], 0 offen sc1"]))
        if ST1 + SG <= s <= ST1 + SG + 3:
            if s == ST1 + SG:
                more.append(("st",))
            main.append(cond(f"h{s}", s - ST1 - SG, [f"buffer_atomic_add v{vOne}, v{vSig}, s[{sDBG}:{sDBG+3}], 0 offen sc1"]))
        if s == 23:
            side += [f"v_min_u32 v{vG}, 8, v{vL}", f"s_lshl_b32 s3, s{sTY}, 4", f"s_add_u32 s3, s3, s{sIDX}", "s_add_u32 s3, s3, 24", f"v_lshrrev_b32 v{vG+1}, 3, v{vG}",
                     f"v_mad_u32_u24 v{vG}, v{vG+1}, s3, v{vG}", f"v_mul_u32_u24 v{vG+1}, 24, v{vG+1}", f"v_lshlrev_b32 v{vG}, 2, v{vG}", f"v_sub_u32 v{vG+1}, 32, v{vG+1}"]
        if s == 24:
            main.append(("vm", f"buffer_load_dword v{vF}, v{vG}, s[{sDBG}:{sDBG+3}], 0 offen sc1", ("F",)))
        if s == 27:
            more.append(("F",))
            ool.extend([f"L1{tag}_sp0:", f"s_mov_b32 s{sPoll}, 0", f"L1{tag}_sp:",
                        f"buffer_load_dword v{vF}, v{vG}, s[{sDBG}:{sDBG+3}], 0 offen sc1", "s_waitcnt vmcnt(0)", f"v_cmp_ne_u32 vcc, v{vG+1}, v{vF}",
                        f"s_add_u32 s{sPoll}, s{sPoll}, 1", f"s_cmp_ge_u32 s{sPoll}, 0x40000", f"s_cbranch_scc1 L1{tag}_sok",
                        "s_nop 2", f"s_cbranch_vccz L1{tag}_sok", "s_sleep 8", f"s_branch L1{tag}_sp"])
            front = [[f"v_cmp_ne_u32 vcc, v{vG+1}, v{vF}"], [f"s_lshl_b32 s{sE+6}, s{sW}, 8"], ["s_nop 0"],
                     [f"s_cbranch_vccnz L1{tag}_sp0", f"L1{tag}_sok:"], [f"v_lshl_add_u32 v{vF}, v{vL}, 2, s{sE+6}"]]
            main += [f"v_and_b32 v{vG+8}, 4, v{vF}", f"v_and_b32 v{vG+7}, -8, v{vF}", f"v_lshl_add_u32 v{vG+8}, v{vG+7}, 4, v{vG+8}"]
            main.append(("vm", f"buffer_load_dword v{vG+8}, v{vG+8}, s[{sSM}:{sSM+3}], s{sE+4} offen sc1", ("G",)))
            for m_ in range(8):
                main.append(("vm", f"buffer_load_dword v{vG+m_}, v{vF}, s[{sSM}:{sSM+3}], s{sE+5} offen offset:{(m_&3)*1024} sc1", ("G",)))
                if m_ == 3: main.append(f"s_add_u32 s{sE+5}, s{sE+5}, 4096")
        if s == 29:
            main += [[("wait", "G", [("G",)], 0), f"v_add_f32 v{vG}, v{vG}, v{vG+1}"], f"v_add_f32 v{vG+2}, v{vG+2}, v{vG+3}",
                     f"v_add_f32 v{vG+4}, v{vG+4}, v{vG+5}", f"v_add_f32 v{vG+6}, v{vG+6}, v{vG+7}",
                     f"v_add_f32 v{vG}, v{vG}, v{vG+2}", f"v_add_f32 v{vG+4}, v{vG+4}, v{vG+6}",
                     f"v_and_b32 v{vG+2}, 0xffff0000, v{vG+8}", f"v_add_f32 v{vG}, v{vG}, v{vG+4}",
                     f"v_rcp_f32 v{vG+2}, v{vG+2}", f"v_lshlrev_b32 v{vG+1}, 16, v{vG+8}",
                     f"v_add_u32 v{vF}, {LDS_TOP}, v{vF}", f"ds_write_b32 v{vF}, v{vG}", f"ds_write_b32 v{vF}, v{vG+1} offset:1024",
                     f"ds_write_b32 v{vF}, v{vG+2} offset:2048", f"v_lshrrev_b32 v{vF}, 1, v{vF}",
                     f"v_add_u32 v{vF}, {L_D - LDS_TOP // 2}, v{vF}", f"ds_write_b16_d16_hi v{vF}, v{vG+8}"]
        if s >= 28:
            main += tail_side(s)
        fill = place(nm, front + (reads(u) if s < 31 else []), main, side)
        fill[-1] = ["s_waitcnt lgkmcnt(0)", "s_barrier"] if s == 31 else [("wait", s, needs(u) + more), "s_barrier"]
        if OPT.get("sstamp"):
            fill[-1] += ([f"v_writelane_b32 v254, s{sST}, {s-1}"] if s else []) + [f"s_memtime s[{sST}:{sST+1}]"]
        return weave(mfmas(s), fill)

    a(f"s_lshl_b32 s{sT0}, s{sW}, 10", f"s_add_u32 s{sT0}, s{sT0}, 32768", f"s_lshl_b32 s{sM0A}, s{sW}, 13",
      f"s_mul_i32 s{sM0B}, s{sW}, 3072", f"s_add_u32 s{sM0B}, s{sM0B}, {G2}", f"s_lshr_b32 s3, s{sMT}, 2",
      f"s_lshl_b32 s{sSoffA}, s3, 10", f"s_mul_i32 s{sSoffB}, s3, {512*RS}", f"s_mov_b32 s{sSoffH}, s{sSoffB}",
      f"s_xor_b32 s{sT0+2}, s{sSoffA}, 1024", f"s_sub_u32 s{sT0+3}, {512*RS}, s{sSoffB}")
    pro = window(-4) + window(-3) + window(-2)
    pro += [f"v_add_u32 v{vXb}, {2*G1_SLOT}, v{vXa}", f"v_add_u32 v{vXb+1}, {2*G1_SLOT}, v{vXa+1}"] + ([f"v_add_u32 v{vWhb}, {2*G1_SLOT}, v{vWh}"] if ffn else [])
    pro += [f"v_mov_b32 v{28+i}, 0" for i in range(4)]
    pro += [f"v_lshrrev_b32 v2, 3, v0", "v_lshlrev_b32 v2, 20, v2", "v_and_b32 v3, 7, v0", "v_lshl_add_u32 v2, v3, 4, v2", "s_lshl_b32 s3, s2, 7",
            ("vm", f"buffer_store_dwordx4 v[28:31], v2, s[{sFL}:{sFL+3}], s3 offen sc1", ("z",))]
    pro += [f"s_lshl_b32 s3, s{sTY}, 4", f"s_add_u32 s3, s3, s{sIDX}", f"s_lshl_b32 s{sE+5}, s3, 13", f"s_add_u32 s{sE+5}, s{sE+5}, {SM_CS}",
            f"s_lshl_b32 s{sE+7}, s{sMT}, 10", f"s_add_u32 s{sE+7}, s{sE+7}, s{sE+5}", f"s_lshl_b32 s{sE+4}, s{sMT}, 14", f"s_add_u32 s{sE+4}, s{sE+4}, {SM_ST}", f"s_and_b32 s{sDI}, s{sMT}, 3",
            "s_lshl_b32 s3, s3, 9", f"s_add_u32 s3, s3, s{sE+4}", f"s_lshl_b32 s{sE+6}, s{sW}, 7", f"s_add_u32 s{sE+6}, s{sE+6}, s3"]
    if OPT.get("pretouch", 0):
        pro += [f"v_lshlrev_b32 v2, 7, v{vL}", f"v_add_u32 v2, s{sE+7}, v2", f"v_mov_b32 v3, s{sE+6}", f"v_cmp_gt_u32 vcc, 8, v{vL}", "v_cndmask_b32 v2, v3, v2, vcc"]
        if not ffn:
            pro += [f"s_lshl_b32 s3, s{sIDX}, 2", f"s_lshl_b32 s4, s{sNH}, 1", "s_add_u32 s3, s3, s4", f"s_add_u32 s3, s3, s{sTH}", "s_lshl_b32 s3, s3, 3",
                    f"s_add_u32 s3, s3, s{sMT}", "s_lshl_b32 s3, s3, 7", f"s_add_u32 s3, s3, {SM_Z}", "v_mov_b32 v3, s3", f"v_cmp_gt_u32 vcc, 32, v{vL}", "v_cndmask_b32 v2, v3, v2, vcc"]
        pro += [("vm", f"buffer_load_dword v{vPF+1}, v2, s[{sSM}:{sSM+3}], 0 offen", ("pt",))]
    if PF:
        pro += [f"s_mov_b32 s{sU}, s{sB}", f"s_mov_b32 s{sU+1}, s{sB+1}", f"s_mov_b32 s{sU+2}, s{sB+2}", f"s_mov_b32 s{sU+3}, 0x20000",
                f"s_lshr_b32 s3, s{sMT}, 2", f"s_mul_i32 s{sV}, s3, {512*RS}", f"s_add_u32 s{sV}, s{sV}, {4096+128*RS}",
                f"s_add_u32 s3, s3, {2 if ffn else 0}", f"s_mul_i32 s{sV+2}, s3, {256*chunk}",
                f"s_lshl_b32 s3, s{sIDX}, 2", f"s_add_u32 s3, s3, s{sDI}",
                "s_lshl_b32 s3, s3, 2", f"s_add_u32 s3, s3, s{sW}", f"s_mul_i32 s3, s3, {chunk}", f"v_lshlrev_b32 v{vPF}, 7, v{vL}"]
        if PFL < 64:
            pro += [f"v_lshrrev_b32 v3, {PFL.bit_length()-1}, v{vL}", f"v_lshl_add_u32 v{vPF}, v3, 28, v{vPF}"]
        pro += [f"v_add_u32 v{vPF}, s3, v{vPF}"]
    pro += [f"v_and_b32 v3, 15, v{vL}", "v_mov_b32 v4, 0x3f803f80"]
    for ng in range(ngs):
        pro += [f"v_cmp_eq_u32 vcc, {ng}, v3", f"v_cndmask_b32 v{8+ng}, 0, v4, vcc"]
    for ng in range(ngs):
        pro += [f"v_accvgpr_write_b32 a{aONE+4*ng+i}, v{8+ng}" for i in range(4)]
    pro += ["v_lshrrev_b32 v4, 1, v3", f"v_lshlrev_b32 v{vCSo}, 8, v4", "v_and_b32 v4, 1, v3", f"v_lshl_add_u32 v{vCSo}, v4, 6, v{vCSo}",
            f"v_lshrrev_b32 v4, 4, v{vL}", f"v_lshl_add_u32 v{vCSo}, v4, 4, v{vCSo}", f"s_lshl_b32 s3, s{sNH}, 7", f"s_lshl_b32 s4, s{sTH}, 24", "s_add_u32 s3, s3, s4",
            f"v_add_u32 v{vCSo}, s3, v{vCSo}", f"v_add_u32 v4, {16-ngs-(ngs&1)}, v3", "v_lshrrev_b32 v4, 4, v4", f"v_lshl_add_u32 v{vCSo}, v4, 20, v{vCSo}",
            f"v_lshlrev_b32 v{vSig}, 12, v0", f"s_lshl_b32 s3, s{sTY}, 4", f"s_add_u32 s3, s3, s{sIDX}", "s_add_u32 s3, s3, 32", "s_lshl_b32 s3, s3, 2",
            f"v_add_u32 v{vSig2}, s3, v{vSig}", f"s_lshl_b32 s3, s{sMT}, 2", f"v_add_u32 v{vSig}, s3, v{vSig}", f"v_mov_b32 v{vOne}, 1"]
    pro += stamp(1)
    pro += [("wait", "pro", needs(0), 0), "s_barrier"] + stamp(2) + reads(0)
    if not ffn:
        pro += [f"ds_read_b64_tr_b16 {ar(aWP+s*4+jj*2,2)}, v{vWh} offset:{s*1024+jj*256}" for s in range(2) for jj in range(2)]
    for s in range(32):
        if ffn and OPT.get("lstamp") and s in (3, 8, 16, 24):
            pro += stamp({3: 6, 8: 7, 16: 8, 24: 9}[s])
        pro += step(s)
    if OPT.get("sstamp"):
        pro += ["s_waitcnt lgkmcnt(0)", f"v_writelane_b32 v254, s{sST}, 31", f"s_memtime s[{sST}:{sST+1}]", "s_waitcnt lgkmcnt(0)", f"v_writelane_b32 v254, s{sST}, 32",
                f"v_lshlrev_b32 v241, 1, v253", f"v_lshl_add_u32 v241, v{vL}, 2, v241", "v_add_u32 v241, 0x20000, v241", "buffer_store_dword v254, v241, s[84:87], 0 offen"]
    a(render(pro, resolve([pro])))
    a(stamp(3))
    return ool

def b_offsets(RS, blockstride, scol, ffn):
    o = [f"v_lshrrev_b32 v{vT}, 3, v{vL}", f"s_lshl_b32 s3, s{sW}, 3", f"v_add_u32 v{vT}, s3, v{vT}",
         f"s_movk_i32 s3, {RS}", f"v_mul_lo_u32 v{vBoff}, v{vT}, s3",
         f"v_bfe_u32 v{vT}, v{vL}, 4, 1", f"v_lshlrev_b32 v{vT}, 2, v{vT}", f"s_lshl_b32 s3, s{sNH}, {0 if ffn else 1}", f"v_or_b32 v{vT}, s3, v{vT}",
         f"v_and_b32 v{vT+1}, 7, v{vL}", f"v_xor_b32 v{vT}, v{vT}, v{vT+1}",
         f"v_lshl_add_u32 v{vBoff}, v{vT}, 4, v{vBoff}", f"s_add_u32 s3, s{scol}, 4096", f"v_add_u32 v{vBoff}, s3, v{vBoff}"]
    for b in (1, 2):
        o.append(f"v_add_u32 v{vBoff+b}, {hex((b*blockstride-b*1024) & 0xffffffff)}, v{vBoff}")
    o += [f"v_lshrrev_b32 v{vT}, 4, v{vL}", f"v_mul_u32_u24 v{vWa}, 3072, v{vT}", f"v_and_b32 v{vT}, 1, v{vT}", f"v_bfe_u32 v{vT+1}, v{vL}, 3, 1"]
    if ffn:
        o += [f"v_lshl_or_b32 v{vT}, v{vT+1}, 2, v{vT}", f"s_lshl_b32 s3, s{sNH}, 2", f"v_xor_b32 v{vT}, s3, v{vT}",
              f"v_and_b32 v{vT+1}, 2, v{vL}", f"v_xor_b32 v{vT}, v{vT}, v{vT+1}", f"v_lshl_add_u32 v{vWa}, v{vT}, 4, v{vWa}",
              f"v_and_b32 v{vT+1}, 1, v{vL}", f"v_lshl_add_u32 v{vWa}, v{vT+1}, 3, v{vWa}"]
    else:
        o += [f"v_lshl_or_b32 v{vT}, v{vT+1}, 1, v{vT}", f"s_lshl_b32 s3, s{sNH}, 1", f"v_xor_b32 v{vT}, s3, v{vT}", f"v_lshl_add_u32 v{vWa}, v{vT}, 5, v{vWa}",
              f"v_and_b32 v{vT+1}, 3, v{vL}", f"v_lshl_add_u32 v{vWa}, v{vT+1}, 3, v{vWa}"]
    o += [f"v_bfe_u32 v{vT+1}, v{vL}, 2, 2", f"v_lshl_add_u32 v{vWa}, v{vT+1}, 7, v{vWa}",
          f"v_add_u32 v{vWa}, {G2}, v{vWa}", f"v_xor_b32 v{vWa+1}, {16 if ffn else 32}, v{vWa}"]
    return o

vDo = 244
sX0, sX1, sSo, sM0, sLast, sNx, sChk = 31, 32, 33, 34, 35, 36, 45
def p2_dma_setup(t0, t1):
    KA = OPT["ka"]
    o = srd(sB, sP + 12, -4096, 3584 * 2048 + 4096)
    o += [f"v_lshrrev_b32 v{t0}, 3, v{vL}", f"s_lshl_b32 s3, s{sW}, 4", f"v_add_u32 v{t0}, s3, v{t0}", f"v_lshlrev_b32 v{vDo}, 11, v{t0}",
          f"v_lshrrev_b32 v{t0}, 4, v{vL}", f"v_lshlrev_b32 v{t0}, 1, v{t0}", f"v_and_b32 v{t1}, 7, v{vL}", f"v_xor_b32 v{t0}, v{t0}, v{t1}",
          f"v_lshl_add_u32 v{vDo}, v{t0}, 4, v{vDo}", f"s_lshl_b32 s3, s{sNT2}, 8", "s_add_u32 s3, s3, 4096", f"v_add_u32 v{vDo}, s3, v{vDo}"]
    for i in range(1, 4):
        o.append(f"v_add_u32 v{vDo+i}, {hex(((i>>1)*16384+(i&1)*128-i*1024) & 0xffffffff)}, v{vDo}")
    o += [f"s_mul_i32 s{sSo}, s{sTY}, {KA*32*2048}", f"s_lshl_b32 s{sM0}, s{sW}, 12"]
    return o
def p2_dma(i):
    return f"buffer_load_dwordx4 v{vDo+i}, s[{sB}:{sB+3}], s{sSo} offen offset:{i*1024} lds"
def p2_dma_prologue(slots):
    o = []
    for t in slots:
        for i in range(4 if t < 7 else 2):
            it = [f"s_add_u32 m0, s{sM0}, {t*16384}", f"s_add_u32 s{sLast}, s{sSo}, {t*0x20000}"] if i == 0 else []
            o.append(it + [p2_dma(i).replace(f"s{sSo} offen", f"s{sLast} offen")])
    return o
vFo, vFv = 242, 243
def wg_signal(base, sidx, t0):
    return [f"s_lshl_b32 s3, s{sidx}, 7", f"s_add_u32 s3, s3, {base}", f"v_lshlrev_b32 v{t0}, 20, v{vL}", f"s_lshl_b32 s{sE+6}, s{sW}, 26",
            f"s_add_u32 s3, s3, s{sE+6}", f"v_add_u32 v{t0}, s3, v{t0}", f"v_mov_b32 v{t0+1}, 1",
            "s_waitcnt vmcnt(0)", "s_barrier", f"buffer_atomic_add v{t0+1}, v{t0}, s[{sFL}:{sFL+3}], 0 offen sc1"]

def role_ffn(a):
    a.label("L1_ffn")
    a(srd(sB, sP + 10, -4096, 1024 * 7168 + 4096))
    a(f"s_mul_i32 s{sE}, s{sIDX}, 448", f"s_and_b32 s{sE+1}, s{sIDX}, 1",
      f"s_lshl_b32 s{sE+2}, s{sE+1}, 6", f"s_add_u32 s{sE+2}, s{sE+2}, s{sE}",
      f"s_mul_i32 s{sE+1}, s{sE+1}, 384", f"s_sub_u32 s{sE+3}, s{sE}, s{sE+1}", f"s_add_u32 s{sE+3}, s{sE+3}, 384")
    a(b_offsets(7168, 128, sE + 2, True))
    a(f"v_lshrrev_b32 v{vT}, 2, v{vL}", f"s_lshl_b32 s3, s{sW}, 4", f"v_add_u32 v{vT}, s3, v{vT}",
      f"s_movk_i32 s3, 7168", f"v_mul_lo_u32 v{vBh}, v{vT}, s3",
      f"v_lshrrev_b32 v{vT}, 5, v{vL}", f"v_lshlrev_b32 v{vT}, 1, v{vT}", f"v_and_b32 v{vT+1}, 3, v{vL}", f"v_xor_b32 v{vT}, v{vT}, v{vT+1}",
      f"v_lshl_add_u32 v{vBh}, v{vT}, 4, v{vBh}", f"s_add_u32 s3, s{sE+3}, 4096", f"v_add_u32 v{vBh}, s3, v{vBh}")
    a(f"v_lshrrev_b32 v{vT}, 4, v{vL}", f"v_lshlrev_b32 v{vWh}, 9, v{vT}",
      f"v_and_b32 v{vT}, 1, v{vT}", f"v_xor_b32 v{vT}, s{sNH}, v{vT}", f"v_lshl_add_u32 v{vWh}, v{vT}, 5, v{vWh}",
      f"v_bfe_u32 v{vT}, v{vL}, 2, 2", f"v_lshl_add_u32 v{vWh}, v{vT}, 6, v{vWh}",
      f"v_and_b32 v{vT}, 3, v{vL}", f"v_lshl_add_u32 v{vWh}, v{vT}, 3, v{vWh}", f"v_add_u32 v{vWh}, 0x8000, v{vWh}")
    a(f"s_lshr_b32 s{sE}, s{sE+2}, 6", f"s_add_u32 s{sE}, s{sE}, s{sNH}", f"s_lshl_b32 s{sE}, s{sE}, 10",
      f"s_lshr_b32 s{sE+1}, s{sE+3}, 6", f"s_lshl_b32 s{sE+1}, s{sE+1}, 10", f"s_lshl_b32 s3, s{sNH}, 9", f"s_add_u32 s{sE+1}, s{sE+1}, s3",
      f"s_lshl_b32 s3, s{sMT}, 4", f"s_lshl_b32 s{sE+2}, s{sTH}, 3", f"s_add_u32 s3, s3, s{sE+2}", f"s_mul_i32 s3, s3, {HO_TB}",
      f"s_add_u32 s{sE}, s{sE}, s3", f"s_add_u32 s{sE+1}, s{sE+1}, s3")
    vM, vR, vC, tmp, vSt = 192, 200, 208, 236, 252
    def tail_reads(s):
        if s == 28:
            return [f"v_and_b32 v248, 15, v{vL}", f"s_lshl_b32 s3, s{sTH}, 9", f"s_add_u32 s3, s3, {L_M}", "v_lshl_add_u32 v248, v248, 2, s3",
                    f"v_lshrrev_b32 v249, 4, v{vL}", f"s_lshl_b32 s3, s{sNH}, 7", f"s_add_u32 s3, s3, {L_CS}", "v_lshl_add_u32 v249, v249, 4, s3",
                    f"v_lshlrev_b32 v{vSt}, 4, v{vL}"]
        if s == 30:
            return [f"ds_read_b32 v{vR+tb}, v248 offset:{1024+tb*64}" for tb in range(8)] + [f"ds_read_b32 v{vM+tb}, v248 offset:{tb*64}" for tb in range(8)] + \
                   [f"ds_read_b128 {vr(vC+4*ng,4)}, v249 offset:{(ng>>1)*256+(ng&1)*64}" for ng in range(7)]
        if s == 31:
            return [f"v_mul_f32 v{vR+tb}, {hex(NLOG2E)}, v{vR+tb}" for tb in range(8)] + p2_dma_setup(vT, vT + 1)
        return []
    ool = phase1(a, True, tail_reads)
    a.c("---- FFN epilogue: h' = -log2e * silu(LN(x) w1) -> fragment-major bf16")
    def bc(reg):
        return (vr(reg, 2), 0) if reg % 2 == 0 else (vr(reg - 1, 2), 1)
    def silu(regs, c, tb, t, dst):
        n = len(regs); o = []
        mp, ms = bc(vM + tb); rp, rs = bc(vR + tb)
        for i in range(0, n, 2):
            o.append(f"v_pk_fma_f32 {vr(regs[i],2)}, {vr(c+i,2)}, {mp}, {vr(regs[i],2)} op_sel:[0,{ms},0] op_sel_hi:[1,{ms},1] neg_lo:[1,0,0] neg_hi:[1,0,0]")
        for i in range(0, n, 2):
            o.append(f"v_pk_mul_f32 {vr(regs[i],2)}, {vr(regs[i],2)}, {rp} op_sel:[0,{rs}] op_sel_hi:[1,{rs}]")
        o += [f"v_exp_f32 v{t+i}, v{regs[i]}" for i in range(n)]
        o += [f"v_pk_add_f32 {vr(t+i,2)}, {vr(t+i,2)}, 1.0 op_sel_hi:[1,0]" for i in range(0, n, 2)]
        o += [f"v_rcp_f32 v{t+i}, v{t+i}" for i in range(n)]
        o += [f"v_pk_mul_f32 {vr(t+i,2)}, {vr(t+i,2)}, {vr(regs[i],2)}" for i in range(0, n, 2)]
        o += [f"v_cvt_pk_bf16_f32 v{dst+i//2}, v{t+i}, v{t+i+1}" for i in range(0, n, 2)]
        return o
    e = []
    for tb in range(8):
        base = tb * 24
        e += [f"v_accvgpr_read_b32 v{248+i}, a{aX+tb*4+i}" for i in range(4)]
        for b in range(3):
            e += silu(list(range(base + b * 8, base + b * 8 + 8)), vC + 8 * b, tb, tmp, base + b * 8)
            if b == 2:
                e.append(f"s_add_u32 s{sE+2}, s{sE}, 4096")
            so, imm = (sE, b * 2048) if b < 2 else (sE + 2, 0)
            e.append(f"buffer_store_dwordx4 {vr(base+b*8,4)}, v{vSt}, s[{sHO}:{sHO+3}], s{so} offen offset:{imm} sc1")
        hb = (tb & 6) * 24 + 4
        e += silu([248, 249, 250, 251], vC + 24, tb, tmp, hb + 2 * (tb & 1))
        if tb == 0:
            e += [f"v_lshrrev_b32 v13, 5, v{vL}", f"s_mov_b32 s3, {HO_TB}", "v_mul_lo_u32 v12, v13, s3", f"v_and_b32 v13, 31, v{vL}", "v_lshl_add_u32 v12, v13, 4, v12"]
        if tb & 1:
            e += [f"v_permlane32_swap_b32 v{hb}, v{hb+2}", f"v_permlane32_swap_b32 v{hb+1}, v{hb+3}",
                  f"buffer_store_dwordx4 {vr(hb,4)}, v12, s[{sHO}:{sHO+3}], s{sE+1} offen sc1", f"s_add_u32 s{sE+1}, s{sE+1}, {2*HO_TB}"]
        if tb < 7:
            e += [f"s_add_u32 s{sE}, s{sE}, {HO_TB}"]
    a(sprinkle(e, p2_dma_prologue(range(8)), start=4, end=int(len(e) * 0.8)))
    a(stamp(4))
    a([f"v_mov_b32 v{i}, 0" for i in range(64)], f"v_mov_b32 v{vFv}, 0")
    a(wg_signal(FL_H, sMT, 236))
    a(stamp(5))
    a("s_branch L_P2")
    a(ool)

def softmax_pair(P, E, t, rreg, dstp, dstm, kscale):
    t0, t1, t2, t3, c0 = t, t + 1, t + 2, t + 3, t + 4
    o = [f"v_max3_f32 v{t0}, v{P}, v{P+1}, v{P+2}", f"v_max3_f32 v{t1}, -v{P}, -v{P+1}, -v{P+2}"]
    for i in range(3, 15, 2):
        o += [f"v_max3_f32 v{t0}, v{t0}, v{P+i}, v{P+i+1}", f"v_max3_f32 v{t1}, v{t1}, -v{P+i}, -v{P+i+1}"]
    o += [f"v_max_f32 v{t0}, v{t0}, v{P+15}", f"v_max_f32_e64 v{t1}, v{t1}, -v{P+15}", f"v_mul_f32 v{c0}, {hex(LOG2E)}, v{rreg}",
          f"v_permlane32_swap_b32 v{t0}, v{t1}", f"v_max_f32 v{t0}, v{t0}, v{t1}",
          f"v_mul_f32 v{t0}, v{c0}, v{t0}", f"v_mov_b32 v{t2}, v{t0}", f"v_permlane32_swap_b32 v{t0}, v{t2}"]
    o += [f"v_pk_fma_f32 {vr(E[i],2)}, {vr(P+i,2)}, {vr(c0,2)}, {vr(t0,2)} op_sel_hi:[1,0,0] neg_lo:[0,0,1] neg_hi:[0,0,1]" for i in range(0, 16, 2)]
    o += [f"v_pk_fma_f32 {vr(P+i,2)}, {vr(P+i,2)}, {vr(c0,2)}, {vr(t2,2)} op_sel_hi:[1,0,0] neg_lo:[1,0,1] neg_hi:[1,0,1]" for i in range(0, 16, 2)]
    o += [f"v_exp_f32 v{E[i]}, v{E[i]}" for i in range(16)] + [f"v_exp_f32 v{P+i}, v{P+i}" for i in range(16)]
    o += [f"v_pk_add_f32 {vr(t0,2)}, {vr(E[0],2)}, {vr(E[2],2)}", f"v_pk_add_f32 {vr(t2,2)}, {vr(P,2)}, {vr(P+2,2)}"]
    for i in range(4, 16, 2):
        o += [f"v_pk_add_f32 {vr(t0,2)}, {vr(t0,2)}, {vr(E[i],2)}", f"v_pk_add_f32 {vr(t2,2)}, {vr(t2,2)}, {vr(P+i,2)}"]
    o += [f"v_add_f32 v{t0}, v{t0}, v{t1}", f"v_add_f32 v{t2}, v{t2}, v{t3}",
          f"v_permlane32_swap_b32 v{t0}, v{t2}", f"v_add_f32 v{t0}, v{t0}, v{t2}", f"v_rcp_f32 v{t0}, v{t0}"]
    if kscale:
        o += [f"v_mul_f32 v{t0}, v{t0}, v{rreg}"]
    o += [f"v_mov_b32 v{t2}, v{t0}", f"v_permlane32_swap_b32 v{t0}, v{t2}"]
    o += [f"v_pk_mul_f32 {vr(P+i,2)}, {vr(P+i,2)}, {vr(t2,2)} op_sel_hi:[1,0]" for i in range(0, 16, 2)]
    o += [f"v_pk_mul_f32 {vr(E[i],2)}, {vr(E[i],2)}, {vr(t0,2)} op_sel_hi:[1,0]" for i in range(0, 16, 2)]
    o += [f"v_cvt_pk_bf16_f32 v{dstm+i}, v{P+2*i}, v{P+2*i+1}" for i in range(7, -1, -1)]
    o += [f"v_cvt_pk_bf16_f32 v{dstp+i}, v{E[2*i]}, v{E[2*i+1]}" for i in range(8)]
    return o

def role_qkv(a):
    a.label("L1_qkv")
    a(srd(sB, sP + 2, -4096, 1024 * 6144 + 4096))
    a(f"s_lshl_b32 s{sE}, s{sIDX}, 7")
    a(b_offsets(6144, 2048, sE, False))
    a(srd(sU, sP + 4, 0, 65536))
    a(f"s_lshl_b32 s3, s{sIDX}, 12", f"s_lshl_b32 s{sE}, s{sW}, 10", f"s_add_u32 s3, s3, s{sE}",
      f"s_add_u32 m0, s{sE}, {LDS_TOP}", f"v_lshlrev_b32 v{vT}, 4, v{vL}",
      f"buffer_load_dwordx4 v{vT}, s[{sU}:{sU+3}], s3 offen lds")
    a(f"v_lshrrev_b32 v{vT+1}, 5, v{vL}", f"v_lshlrev_b32 v{vWh}, 9, v{vT+1}",
      f"v_bfe_u32 v{vT+1}, v{vL}, 2, 2", f"v_lshl_add_u32 v{vWh}, v{vT+1}, 6, v{vWh}",
      f"v_bfe_u32 v{vT+1}, v{vL}, 4, 1", f"v_lshl_add_u32 v{vWh}, v{vT+1}, 5, v{vWh}",
      f"v_and_b32 v{vT+1}, 3, v{vL}", f"v_lshl_add_u32 v{vWh}, v{vT+1}, 3, v{vWh}",
      f"s_lshl_b32 s3, s{sNH}, 11", f"s_add_u32 s3, s3, {LDS_TOP}", f"v_add_u32 v{vWh}, s3, v{vWh}")
    Q, K, V = 0, 64, 128
    vM, vCK, vCQ, vCV, vMV, vRr = 192, 200, 208, 216, 218, 248
    vPW, vPR, vLin, vZo = 236, 240, 238, 239
    aD = aX
    p1, p2, p3, pV, pR, pD = 244, 245, 246, 247, 252, 243
    def tail_reads(s):
        if s == 28:
            return [f"v_and_b32 v{p1}, 15, v{vL}", f"s_lshl_b32 s3, s{sTH}, 9", f"s_add_u32 s3, s3, {L_M}", f"v_lshl_add_u32 v{p1}, v{p1}, 2, s3",
                    f"v_lshrrev_b32 v{p2}, 4, v{vL}", f"v_lshl_add_u32 v{p3}, v{p2}, 4, s3",
                    f"s_lshl_b32 s3, s{sNH}, 7", f"s_add_u32 s3, s3, {L_CS}", f"v_lshl_add_u32 v{p2}, v{p2}, 4, s3",
                    f"v_and_b32 v{pV}, 15, v{vL}", f"v_lshl_add_u32 v{pV}, v{pV}, 2, s3",
                    f"v_and_b32 v{pR}, 31, v{vL}", f"s_lshl_b32 s3, s{sTH}, 9", f"s_add_u32 s3, s3, {L_R}", f"v_lshl_add_u32 v{pR}, v{pR}, 2, s3",
                    f"v_lshrrev_b32 v{pD}, 5, v{vL}", f"s_lshl_b32 s3, s{sTH}, 8", f"s_add_u32 s3, s3, {L_D}", f"v_lshl_add_u32 v{pD}, v{pD}, 4, s3"]
        if s == 30:
            return [f"ds_read_b32 v{vM+tb}, v{p1} offset:{tb*64}" for tb in range(8)] + \
                   [f"ds_read_b128 {vr(vCK+4*dt,4)}, v{p2} offset:{256+dt*64}" for dt in range(2)] + \
                   [f"ds_read_b128 {vr(vCQ+4*dt,4)}, v{p2} offset:{dt*64}" for dt in range(2)] + \
                   [f"ds_read_b32 v{vCV+dt}, v{pV} offset:{512+dt*64}" for dt in range(2)] + \
                   [f"ds_read_b128 {vr(vMV+4*tb,4)}, v{p3} offset:{tb*64}" for tb in range(4)] + \
                   [f"ds_read_b32 v{vRr+p}, v{pR} offset:{p*128}" for p in range(4)]
        if s == 31:
            return [f"ds_read_b128 {ar(aD+4*f,4)}, v{pD} offset:{f*32}" for f in range(8)] + srd(sU, sP + 18, WS_KV, KV_SIZE)
        return []
    ool = phase1(a, False, tail_reads)
    a.c("---- QKV epilogue")
    def bc(reg):
        return (vr(reg, 2), 0) if reg % 2 == 0 else (vr(reg - 1, 2), 1)
    def corr_qk(X, c, p):
        o = []
        for tbb in range(2):
            mp, ms = bc(vM + 2 * p + tbb)
            for i in range(0, 8, 2):
                r = X + 16 * p + 8 * tbb + i
                o.append(f"v_pk_fma_f32 {vr(r,2)}, {vr(c+i,2)}, {mp}, {vr(r,2)} op_sel:[0,{ms},0] op_sel_hi:[1,{ms},1] neg_lo:[1,0,0] neg_hi:[1,0,0]")
        return o
    def corr_v(tb, m):
        o = []
        for dt in range(2):
            for i in range(0, 4, 2):
                r = V + 8 * tb + 4 * dt + i
                o.append(f"v_pk_fma_f32 {vr(r,2)}, {vr(m+i,2)}, {vr(vCV,2)}, {vr(r,2)} op_sel:[0,{dt},0] op_sel_hi:[1,{dt},1] neg_lo:[1,0,0] neg_hi:[1,0,0]")
        return o
    def frags_qk(src, T0):
        o = []
        for tbb in range(2):
            for dt in range(2):
                s = src + tbb * 8 + dt * 4; d = T0 + dt * 4 + tbb * 2
                o += [f"v_cvt_pk_bf16_f32 v{d}, v{s}, v{s+1}", f"v_cvt_pk_bf16_f32 v{d+1}, v{s+2}, v{s+3}"]
        for f in range(2):
            o += [f"v_permlane16_swap_b32 v{T0+4*f}, v{T0+4*f+2}", f"v_permlane16_swap_b32 v{T0+4*f+1}, v{T0+4*f+3}"]
        o += [f"v_mfma_f32_32x32x16_bf16 {vr(src,16)}, {ar(aWP,4)}, {vr(T0,4)}, 0",
              f"v_mfma_f32_32x32x16_bf16 {vr(src,16)}, {ar(aWP+4,4)}, {vr(T0+4,4)}, {vr(src,16)}"]
        return o
    def frags_v(p):
        src = V + 16 * p; o = []
        for i in range(8):
            o.append(f"v_cvt_pk_bf16_f32 v{src+i}, v{src+2*i}, v{src+2*i+1}")
        for f in range(2):
            o += [f"v_permlane16_swap_b32 v{src+4*f}, v{src+4*f+2}", f"v_permlane16_swap_b32 v{src+4*f+1}, v{src+4*f+3}"]
        return o
    e = []
    TA, TB = 236, 200
    e += corr_qk(K, vCK, 0) + corr_qk(K, vCK, 1) + corr_qk(K, vCK, 2) + corr_qk(K, vCK, 3)
    e += flat([corr_v(tb, vMV + 4 * tb) for tb in range(4)])
    e += [f"ds_read_b128 {vr(vMV+4*tb,4)}, v{p3} offset:{(tb+4)*64}" for tb in range(4)]
    e += frags_qk(K, TB) + frags_qk(K + 16, TA) + frags_v(0) + frags_qk(K + 32, TB) + frags_v(1) + frags_qk(K + 48, TA)
    e += ["s_waitcnt lgkmcnt(0)"] + flat([corr_v(tb + 4, vMV + 4 * tb) for tb in range(4)]) + frags_v(2) + frags_v(3)
    t = 218
    ad = [f"v_and_b32 v{t}, 31, v{vL}", f"v_lshrrev_b32 v{t+1}, 5, v{vL}",
          f"v_bfe_u32 v{t+2}, v{vL}, 1, 1", f"v_lshlrev_b32 v{t+2}, 2, v{t+2}",
          f"v_bfe_u32 v{t+3}, v{vL}, 2, 1", f"v_lshl_or_b32 v{t+2}, v{t+3}, 1, v{t+2}",
          f"v_and_b32 v{t+3}, 1, v{vL}", f"v_or_b32 v{t+2}, v{t+3}, v{t+2}",
          f"v_xor_b32 v{t+2}, v{t+2}, v{t+1}", f"v_lshlrev_b32 v{t+2}, 4, v{t+2}",
          f"v_lshl_add_u32 v{vPW}, v{t}, 7, v{t+2}", f"s_lshl_b32 s3, s{sW}, 14", f"v_add_u32 v{vPW}, s3, v{vPW}"]
    ad += [f"v_xor_b32 v{vPW+i}, {i*32}, v{vPW}" for i in range(1, 4)]
    ad += [f"v_bfe_u32 v{t}, v{vL}, 2, 2", f"v_lshlrev_b32 v{vPR}, 10, v{t+1}", f"v_lshl_add_u32 v{vPR}, v{t}, 7, v{vPR}",
           f"v_lshrrev_b32 v{t+2}, 1, v{t}", f"v_lshlrev_b32 v{t+2}, 2, v{t+2}", f"v_and_b32 v{t+3}, 1, v{t}", f"v_or_b32 v{t+2}, v{t+2}, v{t+3}",
           f"v_bfe_u32 v{t+3}, v{vL}, 4, 1", f"v_lshlrev_b32 v{t+3}, 1, v{t+3}", f"v_xor_b32 v{t+2}, v{t+2}, v{t+3}",
           f"v_and_b32 v{t+3}, 1, v{vL}", f"v_xor_b32 v{t+2}, v{t+2}, v{t+3}", f"v_lshl_add_u32 v{vPR}, v{t+2}, 4, v{vPR}",
           f"v_bfe_u32 v{t+3}, v{vL}, 1, 1", f"v_lshl_add_u32 v{vPR}, v{t+3}, 3, v{vPR}", f"v_add_u32 v{vPR}, s3, v{vPR}"]
    ad += [f"v_xor_b32 v{vPR+i}, {i*32}, v{vPR}" for i in range(1, 4)]
    e += ad + p2_dma_setup(218, 219)
    EA = list(range(V + 8, V + 16)) + list(range(V + 24, V + 32))
    EB = list(range(V + 40, V + 48)) + list(range(V + 56, V + 64))
    tA, tB = 218, 224
    KVa, Za = [128, 144], [192, 208]
    def ksoft(p):
        E = EA if p % 2 == 0 else EB
        P = K + 16 * p
        o = softmax_pair(P, E, tA if p % 2 == 0 else tB, vRr + p, E[0], P + 8, True)
        for sign in range(2):
            for qq in range(2):
                o.append(f"ds_write_b128 v{vPW+sign*2+qq}, {vr((E[0] if sign == 0 else P + 8) + qq*4, 4)} offset:{p*4096}")
        return o
    def kreads(p):
        fb = (p & 1) * 16
        return [f"ds_read_b64_tr_b16 {ar(fb+sign*8+ks*4+jj*2,2)}, v{vPR+sign*2+jj} offset:{p*4096+ks*2048+jj*512}"
                for sign in range(2) for ks in range(2) for jj in range(2)]
    def kmfma(p):
        fb = (p & 1) * 16; o = []
        for ks in range(2):
            for sign in range(2):
                A = ar(fb + sign * 8 + ks * 4, 4); first = (p == 0 and ks == 0)
                o.append(f"v_mfma_f32_32x32x16_bf16 {ar(KVa[sign],16)}, {A}, {vr(V+16*p+4*ks,4)}, {'0' if first else ar(KVa[sign],16)}")
                o.append(f"v_mfma_f32_32x32x16_bf16 {ar(Za[sign],16)}, {A}, {ar(aD+8*p+4*ks,4)}, {'0' if first else ar(Za[sign],16)}")
        return o
    e += sprinkle(zipper(ksoft(0), ksoft(1)), p2_dma_prologue(range(4, 8)), start=4)
    s23 = zipper(ksoft(2), ksoft(3))
    mid = [["s_waitcnt lgkmcnt(0)"] + kreads(0) + kreads(1), ["s_waitcnt lgkmcnt(0)"]] + kmfma(0) + kmfma(1)
    e += sprinkle(s23, mid, start=30, end=len(s23) - 40)
    qpre = flat([corr_qk(Q, vCQ, p) for p in range(4)]) + frags_qk(Q, TB) + frags_qk(Q + 16, 218) + frags_qk(Q + 32, TB) + frags_qk(Q + 48, 218)
    mid = [["s_waitcnt lgkmcnt(0)"] + kreads(2) + kreads(3), ["s_waitcnt lgkmcnt(0)"]] + kmfma(2) + kmfma(3)
    e += sprinkle(qpre, mid, start=OPT.get("qs", 12), end=len(qpre) - 8)
    e += stamp(6)
    XR = 131072; X2 = XR + 4 * 4352
    t = 226
    e += [f"v_lshlrev_b32 v{vLin}, 4, v{vL}", f"s_mul_i32 s3, s{sW}, 4352", f"s_add_u32 s3, s3, {XR}", f"v_add_u32 v{t}, s3, v{vLin}",
          f"v_lshrrev_b32 v{vZo}, 5, v{vL}", f"v_lshlrev_b32 v{vZo}, 6, v{vZo}", f"v_add_u32 v{t+2}, s3, v{vZo}",
          f"s_xor_b32 s3, s{sW}, 2", "s_mul_i32 s3, s3, 4352", f"s_add_u32 s3, s3, {XR}", f"v_add_u32 v{t+1}, s3, v{vLin}", f"v_add_u32 v{t+3}, s3, v{vZo}",
          f"s_lshl_b32 s{sE}, s{sIDX}, 2", f"s_lshl_b32 s3, s{sNH}, 1", f"s_add_u32 s{sE}, s{sE}, s3", f"s_add_u32 s{sE}, s{sE}, s{sTH}",
          f"s_lshl_b32 s{sE+1}, s{sE}, 3", f"s_add_u32 s{sE+1}, s{sE+1}, s{sMT}", f"s_lshl_b32 s{sE+2}, s{sE+1}, 11", f"s_lshl_b32 s{sE+3}, s{sE+1}, 7",
          f"v_bfe_u32 v{t+4}, v{vL}, 2, 3", f"v_lshl_add_u32 v{vZo}, v{t+4}, 24, v{vZo}", f"v_and_b32 v{t+4}, 3, v{vL}", f"v_lshl_add_u32 v{vZo}, v{t+4}, 4, v{vZo}",
          f"s_cmp_eq_u32 s{sTH}, 0", "s_cbranch_scc1 L1q_th0"]
    for th in (1, 0):
        if th == 0:
            e += ["L1q_th0:", "s_nop 7"]
        e += [f"ds_write_b128 v{t}, {ar(KVa[1-th]+4*i,4)} offset:{i*1024}" for i in range(4)]
        e += [f"ds_write_b128 v{t+2}, {ar(Za[1-th]+4*i,4)} offset:{4096+i*16}" for i in range(4)]
        e += [f"v_accvgpr_read_b32 v{K+i}, a{KVa[th]+i}" for i in range(16)] + [f"v_accvgpr_read_b32 v{K+16+i}, a{Za[th]+i}" for i in range(16)]
        if th == 1:
            e += ["s_branch L1q_thj"]
    e += ["L1q_thj:", "s_waitcnt lgkmcnt(0)", "s_barrier"]
    e += [f"ds_read_b128 {vr(K+32+4*i,4)}, v{t+1} offset:{i*1024}" for i in range(4)] + [f"ds_read_b128 {vr(K+48+4*i,4)}, v{t+3} offset:{4096+i*16}" for i in range(4)]
    vAt, vPo, vDat = 236, 237, 252
    e += [f"s_lshl_b32 s3, s{sE}, 7", f"v_lshlrev_b32 v{vAt}, 20, v{vL}", f"v_add_u32 v{vAt}, s3, v{vAt}", f"v_mov_b32 v{vPo}, s3", f"v_mov_b32 v{vDat}, 1"]
    for i in range(8):
        e += [f"s_waitcnt lgkmcnt({7-i})", f"v_pk_add_f32 {vr(K+4*i,2)}, {vr(K+4*i,2)}, {vr(K+32+4*i,2)}", f"v_pk_add_f32 {vr(K+4*i+2,2)}, {vr(K+4*i+2,2)}, {vr(K+32+4*i+2,2)}"]
        if i < 4:
            e += [f"v_cvt_pk_bf16_f32 v{K+2*i}, v{K+4*i}, v{K+4*i+1}", f"v_cvt_pk_bf16_f32 v{K+2*i+1}, v{K+4*i+2}, v{K+4*i+3}"]
            if i & 1:
                e.append(f"buffer_store_dwordx4 {vr(K+2*i-2,4)}, v{vLin}, s[{sU}:{sU+3}], s{sE+2} offen offset:{(i>>1)*1024} sc1")
        elif i > 4:
            e += [f"v_cmp_eq_u32 vcc, {i-4}, v{t+4}"] + [f"v_cndmask_b32 v{K+16+j}, v{K+16+j}, v{K+4*i+j}, vcc" for j in range(4)]
    e.append(f"buffer_store_dwordx4 {vr(K+16,4)}, v{vZo}, s[{sSM}:{sSM+3}], s{sE+3} offen sc1")
    E0 = list(range(192, 208)); E1 = list(range(208, 224))
    def qsoft(p):
        P = Q + 16 * p
        return softmax_pair(P, E0 if p % 2 == 0 else E1, 224 if p % 2 == 0 else 230, vRr + p, P, P + 8, False)
    q01 = zipper(qsoft(0), qsoft(1))
    k = int(len(q01) * OPT.get("atpos", 55) / 100)
    e += q01[:k] + ["s_waitcnt vmcnt(0)", f"buffer_atomic_add v{vDat}, v{vAt}, s[{sFL}:{sFL+3}], 0 offen sc1"] + stamp(7) + sprinkle(q01[k:], p2_dma_prologue(range(4)))
    q23 = zipper(qsoft(2), qsoft(3))
    k = int(len(q23) * OPT.get("popos", 30) / 100)
    e += q23[:k] + poll("L1q_poll", vDat, vPo, sFL, 8) + stamp(8)
    vZ = 240
    g = [f"s_lshl_b32 s{sE+2}, s{sE}, 14", f"s_lshl_b32 s{sE+3}, s{sE}, 10",
         f"buffer_load_dwordx4 {vr(vZ,4)}, v{vLin}, s[{sSM}:{sSM+3}], s{sE+3} offen sc1"]
    for m in range(8):
        g += [f"buffer_load_dwordx4 {vr(V+8*m+4*i,4)}, v{vLin}, s[{sU}:{sU+3}], s{sE+2} offen offset:{(m&1)*2048+i*1024} sc1" for i in range(2)]
        if m & 1 and m < 7:
            g.append(f"s_add_u32 s{sE+2}, s{sE+2}, 4096")
    e += sprinkle(q23[k:], g, start=0, end=int((len(q23) - k) * 0.4))
    t = 224; T = 192
    e += [f"s_mul_i32 s3, s{sNH}, 4352", f"s_add_u32 s3, s3, {X2}", f"s_lshl_b32 s{sE+1}, s{sTH}, 11", f"s_add_u32 s{sE+1}, s{sE+1}, s3",
          f"v_add_u32 v{t}, s{sE+1}, v{vLin}", f"v_add_u32 v{t+1}, s3, v{vLin}",
          f"s_lshl_b32 s{sE+1}, s{sTH}, 6", f"s_add_u32 s{sE+1}, s{sE+1}, s3", f"s_add_u32 s{sE+1}, s{sE+1}, 4096",
          f"v_and_b32 v{t+2}, 7, v{vL}", f"v_lshlrev_b32 v{t+2}, 3, v{t+2}", f"v_add_u32 v{t+2}, s{sE+1}, v{t+2}",
          f"v_lshrrev_b32 v{t+3}, 5, v{vL}", f"v_lshlrev_b32 v{t+3}, 5, v{t+3}", "s_add_u32 s3, s3, 4096", f"v_add_u32 v{t+3}, s3, v{t+3}",
          "s_mov_b32 s46, 0x3f80", "s_mov_b32 s47, 0x3f800000"]
    e += ["s_waitcnt vmcnt(16)"] + [f"v_add_f32_dpp v{vZ+i}, v{vZ+i}, v{vZ+i} row_ror:8 row_mask:0xf bank_mask:0xf" for i in range(4)]
    for pl in ("v_permlane16_swap_b32", "v_permlane32_swap_b32"):
        e += [f"v_mov_b32 v{T+i}, v{vZ+i}" for i in range(4)] + [f"{pl} v{vZ+i}, v{T+i}" for i in range(4)] + [f"v_add_f32 v{vZ+i}, v{vZ+i}, v{T+i}" for i in range(4)]
    e += [f"v_cvt_pk_bf16_f32 v{vZ}, v{vZ}, v{vZ+1}", f"v_cvt_pk_bf16_f32 v{vZ+1}, v{vZ+2}, v{vZ+3}", f"ds_write_b64 v{t+2}, {vr(vZ,2)}"]
    e += ["s_waitcnt vmcnt(14)"] + flat([[f"v_lshlrev_b32 v{K+2*i}, 16, v{V+i}", f"v_and_b32 v{K+2*i+1}, 0xffff0000, v{V+i}"] for i in range(8)])
    for m in range(1, 8):
        e += [f"s_waitcnt vmcnt({14-2*m})"] + flat([[f"v_dot2c_f32_bf16 v{K+2*i}, s46, v{V+8*m+i}", f"v_dot2c_f32_bf16 v{K+2*i+1}, s47, v{V+8*m+i}"] for i in range(8)])
    e += [f"s_lshr_b32 s3, s{sMT2}, 1", "s_lshl_b32 s3, s3, 7", f"s_add_u32 s3, s3, {FL_H}", f"v_mov_b32 v{vFo}, s3"]
    e += [f"v_cvt_pk_bf16_f32 v{T+i}, v{K+2*i}, v{K+2*i+1}" for i in range(8)]
    e += [f"ds_write_b128 v{t}, {vr(T,4)}", f"ds_write_b128 v{t}, {vr(T+4,4)} offset:1024",
          f"buffer_load_dword v{vFv}, v{vFo}, s[{sFL}:{sFL+3}], 0 offen sc1", "s_waitcnt lgkmcnt(0)", "s_barrier"]
    for sign in range(2):
        for s in range(2):
            e += [f"ds_read_b128 {ar(sign*8+s*4,4)}, v{t+1} offset:{sign*2048+s*1024}", f"ds_read_b128 {ar(16+sign*8+s*4,4)}, v{t+3} offset:{sign*64+s*16}"]
    e += stamp(9)
    t = 228
    e += [f"v_bfe_u32 v{t}, v{vL}, 4, 1", f"s_mov_b32 s3, {HO_TB}", f"v_mul_lo_u32 v{t}, v{t}, s3",
          f"v_lshrrev_b32 v{t+1}, 5, v{vL}", f"v_lshl_add_u32 v{t}, v{t+1}, 8, v{t}",
          f"v_and_b32 v{t+1}, 15, v{vL}", f"v_lshl_add_u32 v{t}, v{t+1}, 4, v{t}",
          f"s_lshl_b32 s3, s{sMT}, 4", f"s_lshl_b32 s{sE+1}, s{sTH}, 3", f"s_add_u32 s3, s3, s{sE+1}", f"s_mul_i32 s3, s3, {HO_TB}",
          f"s_lshl_b32 s{sE+1}, s{sIDX}, 1", f"s_add_u32 s{sE+1}, s{sE+1}, s{sNH}", f"s_add_u32 s{sE+1}, s{sE+1}, 112", f"s_lshl_b32 s{sE+1}, s{sE+1}, 10",
          f"s_add_u32 s{sE+1}, s{sE+1}, s3", f"s_mov_b32 s{sE+2}, 0x358637bd"]
    e += ["s_waitcnt lgkmcnt(0)"]
    def nd(p):
        N = K + 32 * p; D = N + 16; o = []; k = 0
        for sign in range(2):
            for s in range(2):
                B = vr(Q + 16 * p + sign * 8 + s * 4, 4)
                o.append(f"v_mfma_f32_32x32x16_bf16 {vr(N,16)}, {ar(sign*8+s*4,4)}, {B}, {'0' if k == 0 else vr(N,16)}")
                o.append(f"v_mfma_f32_32x32x16_bf16 {vr(D,16)}, {ar(16+sign*8+s*4,4)}, {B}, {'0' if k == 0 else vr(D,16)}")
                k += 1
        return o
    def fin(p):
        N = K + 32 * p; D = N + 16
        o = [f"v_add_f32 v{D}, s{sE+2}, v{D}", f"v_rcp_f32 v{D}, v{D}", f"v_mul_f32 v{D}, {hex(NLN2)}, v{D}"]
        o += [f"v_pk_mul_f32 {vr(N+i,2)}, {vr(N+i,2)}, {vr(D,2)} op_sel_hi:[1,0]" for i in range(0, 16, 2)]
        o += [f"v_cvt_pk_bf16_f32 v{N+i}, v{N+2*i}, v{N+2*i+1}" for i in range(8)]
        o += [f"buffer_store_dwordx4 {vr(N+4*s,4)}, v{t}, s[{sHO}:{sHO+3}], s{sE+1} offen offset:{s*512} sc1" for s in range(2)]
        return o + [f"s_add_u32 s{sE+1}, s{sE+1}, {2*HO_TB}"]
    e += nd(0) + nd(1) + zipper(fin(0), nd(2)) + zipper(fin(1), nd(3)) + fin(2) + [f"v_mov_b32 v{i}, 0" for i in range(32)] + fin(3) + [f"v_mov_b32 v{i}, 0" for i in range(32, 64)]
    a(e)
    a(stamp(4))
    a("s_waitcnt vmcnt(8)")
    a(stamp(5))
    return ool

def phase2(a):
    KA = OPT["ka"]; nb = 112 - KA
    NITA, NITB = KA // 8, nb // 8
    sXs, sO, sPT = sU, sV, sHO
    vR1, vOs, vXo, vXg, vEw, vEr = 224, 228, 232, 233, 234, 248
    T = 252
    OUT, S, XR, P = 0, 64, 128, 160
    WF = 64
    a.label("L_P2")
    a(f"v_bfe_u32 v{T}, v{vL}, 2, 3", f"v_lshlrev_b32 v{vR1}, 7, v{T}", f"v_lshrrev_b32 v{T}, 1, v{T}", f"v_lshl_add_u32 v{vR1}, v{T}, 5, v{vR1}",
      f"v_and_b32 v{T}, 3, v{vL}", f"v_lshl_add_u32 v{vR1}, v{T}, 3, v{vR1}",
      f"v_lshrrev_b32 v{T}, 5, v{vL}", f"v_lshl_add_u32 v{vR1}, v{T}, 12, v{vR1}")
    for q in range(1, 4):
        a(f"v_xor_b32 v{vR1+q}, {q*32}, v{vR1}")
    def xload(S_):
        s = S_ & 7
        return [("vm", f"buffer_load_dwordx4 {ar(s*8+tb*4,4)}, v{vXo}, s[{sA}:{sA+3}], s{sX0+tb} offen offset:{(s&3)*1024}{' sc1' if OPT.get('xsc1', 1) else ''}", ("X", S_, tb)) for tb in range(2)]
    def xadv():
        return [f"s_add_u32 s{sX0}, s{sX0}, 4096", f"s_add_u32 s{sX1}, s{sX1}, 4096"]
    def dma(t, i):
        return ("vm", p2_dma(i), ("D", t))
    def reads(S_, typ):
        t, j = (S_ >> 1) & 3, S_ & 1
        st = WF + j * 32
        R = vR1
        return [f"ds_read_b64_tr_b16 {ar(st+q8*4+jj*2,2)}, v{R+(q8&3)} offset:{t*16384+j*8192+jj*2048+(q8>>2)*1024}"
                for q8 in range(8) for jj in range(2)]
    a(reads(0, 1))
    a(f"v_lshlrev_b32 v{vXo}, 4, v{vL}", f"s_lshr_b32 s3, s{sMT2}, 1", "s_lshl_b32 s3, s3, 7", f"s_add_u32 s{sE}, s3, {FL_O}", f"s_add_u32 s3, s3, {FL_H}", f"v_mov_b32 v{vFo}, s3")
    a(srd(sA, sP + 18, WS_HO, HO_SIZE))
    a(f"s_lshl_b32 s3, s{sMT2}, 3", f"s_lshl_b32 s{sE+1}, s{sW}, 1", f"s_add_u32 s3, s3, s{sE+1}", f"s_mul_i32 s{sX0}, s3, {HO_TB}",
      f"s_mul_i32 s{sE+1}, s{sTY}, {KA*1024}", f"s_add_u32 s{sX0}, s{sX0}, s{sE+1}", f"s_add_u32 s{sX1}, s{sX0}, {HO_TB}")
    a(f"v_readfirstlane_b32 s3, v{vFv}", "s_cmp_ge_u32 s3, 16", "s_cbranch_scc1 L2_hpoll_ok")
    a(poll("L2_hpoll", vFv, vFo, sFL, 16))
    a(stamp(10))
    pro = []
    for s in range(8):
        pro += xload(s)
        if (s & 3) == 3: pro += xadv()
    rows = [sE + 1, sE + 2, sE + 3, sE + 4, sE + 5, sE + 6, sE + 7]
    sPo, sFo = 42, 43
    pro += [f"v_mov_b32 v{vFo}, s{sE}", f"s_add_u32 m0, s{sM0}, {7*16384}", f"s_add_u32 s{sSo}, s{sSo}, {7*0x20000}", f"s_mov_b32 s{sCnt}, 0",
            f"s_lshl_b32 s3, s{sMT}, 7", f"s_add_u32 s3, s3, {FL_O}", f"v_add_u32 v{vOs}, s{sW}, v{vL}", f"v_lshlrev_b32 v{vOs}, 20, v{vOs}",
            f"v_add_u32 v{vOs}, s3, v{vOs}", f"v_mov_b32 v{vOs+1}, 1", f"s_sub_u32 s{sDI}, 0, s{sTY}"]
    pro += srd(sXs, sP + 0, 0, 2048 * 2048) + srd(sO, sP + 14, 0, 2048 * 2048) + srd(sPT, sP + 18, WS_PART, PART_SIZE)
    pro += [f"s_sub_u32 s{sNx}, s{sP+6}, 4096", f"s_subb_u32 s{sNx+1}, s{sP+7}, 0",
            f"s_cmp_eq_u32 s{sTY}, 0", f"s_cselect_b32 s{sLast}, {NITA-1}, {NITB-1}",
            f"s_cselect_b32 s{sNx+2}, 0, {hex(1024*2048+4096)}", f"s_cselect_b32 s44, 0, s{sA+2}", f"s_cselect_b32 s{sChk}, -1, {NITB-1}",
            f"s_sub_u32 s46, s{sLast}, 1",
            f"s_lshl_b32 s3, s{sMT2}, 3", f"s_add_u32 s3, s3, s{sNT2}", f"s_lshl_b32 s{sPo}, s3, 16", f"s_lshl_b32 s47, s{sW}, 14", f"s_add_u32 s{sPo}, s{sPo}, s47",
            f"s_lshl_b32 s{sFo}, s3, 7", f"s_lshl_b32 s47, s{sW}, 2", f"s_add_u32 s{sFo}, s{sFo}, s47", f"s_add_u32 s{sFo}, s{sFo}, {FL_PART}"]
    pro += [f"v_lshrrev_b32 v{T}, 4, v{vL}", f"v_lshlrev_b32 v{vXg}, 11, v{T}", f"v_and_b32 v{P}, 15, v{vL}", f"v_lshl_add_u32 v{vXg}, v{P}, 4, v{vXg}",
            f"s_lshl_b32 s3, s{sNT2}, 8", f"s_lshl_b32 s47, s{sMT2}, 18", "s_add_u32 s3, s3, s47", f"s_lshl_b32 s47, s{sW}, 16", "s_add_u32 s3, s3, s47",
            f"v_add_u32 v{vXg}, s3, v{vXg}",
            f"v_xor_b32 v{P+1}, v{T}, v{P}", f"v_lshlrev_b32 v{vEr}, 8, v{T}", f"v_lshl_add_u32 v{vEr}, v{P+1}, 4, v{vEr}",
            f"s_lshl_b32 s3, s{sW}, 13", "s_add_u32 s3, s3, 0x20000", f"v_add_u32 v{vEr}, s3, v{vEr}",
            f"v_lshrrev_b32 v{T}, 5, v{vL}", f"v_xor_b32 v{T}, v{T}, v{P}", f"v_lshlrev_b32 v{vEw}, 8, v{P}", f"v_lshl_add_u32 v{vEw}, v{T}, 4, v{vEw}",
            f"v_bfe_u32 v{T}, v{vL}, 4, 1", f"v_lshl_add_u32 v{vEw}, v{T}, 3, v{vEw}", f"v_add_u32 v{vEw}, s3, v{vEw}"]
    pro += [f"v_xor_b32 v{vEw+q}, {q*32}, v{vEw}" for q in range(1, 8)] + [f"v_xor_b32 v{vEr+q}, {q*64}, v{vEr}" for q in range(1, 4)]
    pro += [f"s_mov_b32 s{rows[g]}, {(g+1)*8192}" for g in range(7)]
    def step(S_, typ, site, k=None):
        s = S_ & 7; Tt = S_ >> 1; j = S_ & 1
        acc = OUT if typ == 1 else S
        st = WF + j * 32
        m = [f"v_mfma_f32_16x16x32_bf16 {vr(acc+(tb*8+q)*4,4)}, {ar(st+q*4,4)}, {ar(s*8+tb*4,4)}, {'0' if k == 0 and s == 0 else vr(acc+(tb*8+q)*4,4)}"
             for tb in range(2) for q in range(8)]
        fill = {}
        need = [("X", S_, 0), ("X", S_, 1)]
        lastst = (k == 3 and s == 7)
        if j == 1 and not lastst and Tt + 1 >= 7:
            need.append(("D", Tt + 1))
        if k == 3 and s == 0:
            need.append(("F",))
        if k is None and s == 0 and S_ > 0:
            need.append(("O", S_ - 8))
        fill[-1] = [("wait", (site, s), need)]
        if j == 1 and not lastst:
            fill[-1].append("s_barrier")
        if not lastst:
            spread(reads(S_ + 1, typ), [0, 0, 1, 1, 2, 2, 3, 3, 4, 5, 6, 7, 8, 9, 10, 11], fill)
        R = vR1
        if s == 6:
            spread([f"v_xor_b32 v{R+q}, 0x10000, v{R+q}" for q in range(4)], [12, 13, 14, 15], fill)
        if k is None and s == 0:
            spread([[f"s_cmp_eq_u32 s{sCnt}, s{sChk}", "s_cbranch_scc1 L2_chk", "L2_nochk:"],
                    [("vm", f"buffer_load_dword v{vFv}, v{vFo}, s[{sFL}:{sFL+3}], 0 offen sc1", ("O", S_))],
                    [f"s_cmp_eq_u32 s{sCnt}, s{sLast}", f"s_cselect_b32 s{sA+2}, s44, s{sA+2}"]], [4, 5, 6], fill)
        if k is None and s == 3:
            spread([[f"s_cmp_eq_u32 s{sCnt}, s{sDI}", "s_cbranch_scc1 L2_osig", "L2_osig_r:"]], [5], fill)
        dma_on = k is None or k < 2
        if j == 1 and dma_on:
            if s == 1 and k is None:
                spread([[f"s_cmp_eq_u32 s{sCnt}, s46", f"s_cselect_b32 s{sB}, s{sNx}, s{sB}"],
                        [f"s_cselect_b32 s{sB+1}, s{sNx+1}, s{sB+1}", f"s_cselect_b32 s{sB+2}, s{sNx+2}, s{sB+2}"],
                        [f"s_cselect_b32 s{sSo}, 0, s{sSo}"]], [4, 5, 6], fill)
            spread([f"s_add_u32 m0, s{sM0}, {(Tt&3)*16384}", dma(Tt + 8, 0), dma(Tt + 8, 1)], [7, 10, 13], fill)
            if s == 7:
                spread([f"s_xor_b32 s{sM0}, s{sM0}, 0x10000"], [9], fill)
        if j == 0 and (dma_on or (k == 2 and s == 0)):
            spread([dma(Tt + 7, 2), dma(Tt + 7, 3), f"s_add_u32 s{sSo}, s{sSo}, 0x20000"], [10, 13, 14], fill)
        if k == 2 and s == 0:
            spread([f"v_mov_b32 v{vFo}, s{sFo}", ("vm", f"buffer_load_dword v{vFv}, v{vFo}, s[{sFL}:{sFL+3}], 0 offen sc1", ("F",))], [4, 6], fill)
        if k != 3:
            spread(xload(S_ + 8), [8, 15], fill)
            if (s & 3) == 3:
                fill[15].extend(xadv())
        if k == 2 and s >= 1:
            ids = [s - 1] if s < 7 else [6, 7]
            spread([("vm", f"buffer_load_dwordx4 {vr(XR+4*i,4)}, v{vXg}, s[{sXs}:{sXs+3}], {'0' if i == 0 else 's%d' % rows[i-1]} offen", ("x",)) for i in ids], [11, 13], fill)
        if k == 3 and s == 0:
            spread([[f"v_readfirstlane_b32 s3, v{vFv}", "s_nop 0", "s_cmp_lg_u32 s3, 0", "s_cbranch_scc1 L2_ppoll_ok"] + poll("L2_ppoll", vFv, vFo, sFL, 1)], [4], fill)
        if k == 3 and s < 4:
            spread([("vm", f"buffer_load_dwordx4 {vr(P+16*s+4*i,4)}, v{vXo}, s[{sPT}:{sPT+3}], s{sPo} offen offset:{i*1024} sc1", ("P",)) for i in range(4)] +
                   [f"s_add_u32 s{sPo}, s{sPo}, 4096"], [6, 9, 12, 14, 15], fill)
        return weave(m, fill)
    trA = list(pro); trB = list(pro)
    for S_ in range(KA): trA += step(S_, 1, "h")
    for S_ in range(nb): trB += step(S_, 1, "h")
    for S_ in range(nb, nb + 32): trB += step(S_, 2, ("o", (S_ - nb) // 8), (S_ - nb) // 8)
    cnt = resolve([[("vm", "", ("D", 7))] + trA, [("vm", "", ("D", 7))] + trB])
    a(render(pro, cnt))
    a(stamp(11))
    a(".p2align 6")
    a.label("L2_loop")
    for s in range(8, 16):
        a(render(step(s, 1, "h"), cnt))
    a(f"s_add_u32 s{sCnt}, s{sCnt}, 1", f"s_cmp_le_u32 s{sCnt}, s{sLast}", "s_cbranch_scc1 L2_loop")
    a(stamp(12))
    a(f"s_cmp_eq_u32 s{sTY}, 1", "s_cbranch_scc1 L2_B", "s_nop 7")
    a.c("---- role A: publish the partial tile")
    for i in range(16):
        a(f"buffer_store_dwordx4 {vr(OUT+4*i,4)}, v{vXo}, s[{sPT}:{sPT+3}], s{sPo} offen offset:{(i&3)*1024} sc1")
        if (i & 3) == 3 and i < 15:
            a(f"s_add_u32 s{sPo}, s{sPo}, 4096")
    a(f"v_lshlrev_b32 v{vFo}, 20, v{vL}", f"v_add_u32 v{vFo}, s{sFo}, v{vFo}", f"v_mov_b32 v{vFv}, 1", "s_waitcnt vmcnt(0)")
    a(f"buffer_atomic_add v{vFv}, v{vFo}, s[{sFL}:{sFL+3}], 0 offen sc1")
    a(stamp(14))
    a("s_endpgm")
    a("L2_chk:", f"v_readfirstlane_b32 s3, v{vFv}", "s_nop 0", "s_cmp_ge_u32 s3, 16", "s_cbranch_scc1 L2_nochk", poll("L2_opoll", vFv, vFo, sFL, 16), "s_branch L2_nochk")
    a("L2_osig:", f"buffer_atomic_add v{vOs+1}, v{vOs}, s[{sFL}:{sFL+3}], 0 offen sc1", "s_branch L2_osig_r")
    a.label("L2_B")
    for S_ in range(nb, nb + 32):
        a(render(step(S_, 2, ("o", (S_ - nb) // 8), (S_ - nb) // 8), cnt))
    a(stamp(13))
    a.c("---- role B epilogue: out = x + S' * acc / (1 + 2^acc)")
    e = ["s_mov_b32 s46, 0xffff0000"]
    E = P
    for k in range(4):
        e += [f"s_waitcnt vmcnt({12-4*k})"] + [f"v_pk_add_f32 {vr(OUT+i,2)}, {vr(OUT+i,2)}, {vr(P+i,2)}" for i in range(16 * k, 16 * k + 16, 2)]
        e += [f"v_exp_f32 v{E+i}, v{OUT+i}" for i in range(16 * k, 16 * k + 16)]
        e += [f"v_pk_mul_f32 {vr(OUT+i,2)}, {vr(OUT+i,2)}, {vr(S+i,2)}" for i in range(16 * k, 16 * k + 16, 2)]
        e += [f"v_pk_add_f32 {vr(E+i,2)}, {vr(E+i,2)}, 1.0 op_sel_hi:[1,0]" for i in range(16 * k, 16 * k + 16, 2)]
        e += [f"v_rcp_f32 v{E+i}, v{E+i}" for i in range(16 * k, 16 * k + 16)]
        for p in range(4 * k, 4 * k + 4):
            e += [f"v_pk_mul_f32 {vr(E+4*p,2)}, {vr(E+4*p,2)}, {vr(OUT+4*p,2)}", f"v_pk_mul_f32 {vr(E+4*p+2,2)}, {vr(E+4*p+2,2)}, {vr(OUT+4*p+2,2)}",
                  f"v_cvt_pk_bf16_f32 v{E+4*p}, v{E+4*p}, v{E+4*p+1}", f"v_cvt_pk_bf16_f32 v{E+4*p+1}, v{E+4*p+2}, v{E+4*p+3}",
                  f"ds_write_b64 v{vEw+(p&7)}, {vr(E+4*p,2)} offset:{(p>>3)*4096}"]
    for i in range(32):
        e += [f"v_lshlrev_b32 v{OUT+2*i}, 16, v{XR+i}", f"v_and_b32 v{OUT+2*i+1}, s46, v{XR+i}"]
        if i == 3:
            e += ["s_waitcnt lgkmcnt(0)"] + [f"ds_read_b128 {vr(S+4*k,4)}, v{vEr+(k&3)} offset:{k*1024}" for k in range(8)]
    for i in range(8):
        e += [f"s_waitcnt lgkmcnt({7-i})"]
        for k in range(4):
            e += [f"v_lshlrev_b32 v{E+2*k}, 16, v{S+4*i+k}", f"v_and_b32 v{E+2*k+1}, s46, v{S+4*i+k}"]
        e += [f"v_pk_add_f32 {vr(OUT+2*(4*i+k),2)}, {vr(OUT+2*(4*i+k),2)}, {vr(E+2*k,2)}" for k in range(4)]
        e += [f"v_cvt_pk_bf16_f32 v{XR+4*i+k}, v{OUT+2*(4*i+k)}, v{OUT+2*(4*i+k)+1}" for k in range(4)]
        e += [f"buffer_store_dwordx4 {vr(XR+4*i,4)}, v{vXg}, s[{sO}:{sO+3}], {'0' if i == 0 else 's%d' % rows[i-1]} offen"]
    a(e)
    a(stamp(14))
    a("s_endpgm")

def kernel():
    a = Asm()
    a.label(KNAME)
    a("s_cmp_ge_u32 s2, 256", "s_cbranch_scc1 L_end")
    a(f"s_load_dwordx16 s[{sP}:{sP+15}], s[0:1], 0", f"s_load_dwordx4 s[{sP+16}:{sP+19}], s[0:1], 64")
    a(f"v_and_b32 v{vL}, 63, v0", "v_lshrrev_b32 v1, 6, v0", f"v_readfirstlane_b32 s{sW}, v1")
    if OPT["ctouch"]:
        a("s_getpc_b64 s[4:5]", "L_pc:", f"s_sub_u32 s4, s4, L_pc-{KNAME}", "s_subb_u32 s5, s5, 0",
          "s_lshr_b32 s3, s2, 3", "s_lshl_b32 s3, s3, 2", f"s_add_u32 s3, s3, s{sW}", "s_and_b32 s3, s3, 15", "s_lshl_b32 s3, s3, 13",
          f"v_lshlrev_b32 v1, 7, v{vL}", "v_add_u32 v1, s3, v1", f"v_min_u32 v1, L_end-{KNAME}, v1", f"global_load_dword v{vPF+1}, v1, s[4:5]")
    a("s_and_b32 s3, s2, 1", f"s_lshl_b32 s{sMT}, s3, 2", "s_bfe_u32 s3, s2, 0x20003", f"s_add_u32 s{sMT}, s{sMT}, s3",
      "s_bfe_u32 s3, s2, 0x20001", f"s_lshl_b32 s{sIDX}, s3, 2", "s_bfe_u32 s3, s2, 0x20005", f"s_add_u32 s{sIDX}, s{sIDX}, s3",
      f"s_lshr_b32 s{sTH}, s{sW}, 1", f"s_and_b32 s{sNH}, s{sW}, 1", f"s_bfe_u32 s{sTY}, s2, 0x10007")
    a("s_and_b32 s3, s2, 3", f"s_lshl_b32 s{sMT2}, s3, 2", "s_bfe_u32 s3, s2, 0x20003", f"s_add_u32 s{sMT2}, s{sMT2}, s3",
      "s_bfe_u32 s3, s2, 0x10002", f"s_lshl_b32 s{sNT2}, s3, 2", "s_bfe_u32 s3, s2, 0x20005", f"s_add_u32 s{sNT2}, s{sNT2}, s3")
    a(f"s_lshl_b32 s3, s{sTY}, 4", f"s_add_u32 s3, s3, s{sIDX}", "s_lshl_b32 s3, s3, 14", f"s_lshl_b32 s4, s{sW}, 12", "s_add_u32 s3, s3, s4",
      f"v_lshl_add_u32 v199, v{vL}, 4, s3")
    a(f"v_lshrrev_b32 v{vT}, 3, v{vL}", f"s_lshl_b32 s3, s{sW}, 6", f"v_add_u32 v{vT}, s3, v{vT}", f"v_lshlrev_b32 v{vT}, 11, v{vT}",
      f"v_lshrrev_b32 v{vT+1}, 4, v{vL}", f"v_and_b32 v{vT+2}, 7, v{vL}", f"v_xor_b32 v{vT+1}, v{vT+1}, v{vT+2}",
      f"v_lshl_add_u32 v{vAoff}, v{vT+1}, 4, v{vT}", f"v_xor_b32 v{vT+3}, 64, v{vAoff}")
    for i in range(1, 8):
        a(f"v_add_u32 v{vAoff+i}, {i*16384-(i&3)*1024}, v{vAoff if i % 2 == 0 else vT+3}")
    a(f"v_and_b32 v{vT}, 15, v{vL}", f"s_lshl_b32 s3, s{sTH}, 7", f"v_add_u32 v{vT}, s3, v{vT}", f"v_lshlrev_b32 v{vT}, 7, v{vT}",
      f"v_lshrrev_b32 v{vT+1}, 4, v{vL}", f"v_bfe_u32 v{vT+2}, v{vL}, 1, 3", f"v_xor_b32 v{vT+1}, v{vT+1}, v{vT+2}",
      f"v_lshl_add_u32 v{vXa}, v{vT+1}, 4, v{vT}", f"v_xor_b32 v{vXa+1}, 64, v{vXa}")
    a("s_waitcnt lgkmcnt(0)")
    a(f"s_lshl_b32 s3, s{sMT}, 19")
    a(srd(sA, sP + 0, "s3", 256 * 2048))
    a(srd(sHO, sP + 18, WS_HO, HO_SIZE), srd(sFL, sP + 18, WS_FLAG, FLAG_SIZE), srd(sSM, sP + 18, WS_SM, SM_SIZE), srd(sDBG, sP + 16, 0, 256))
    if OPT["stamp"]:
        a(srd(84, sP + 18, WS_STAMP + 0x40000, 0x60000))
        a("s_lshl_b32 s3, s2, 2", f"s_add_u32 s3, s3, s{sW}", "s_lshl_b32 s3, s3, 7", "v_mov_b32 v253, s3")
        a(stamp(0))
    a(f"s_cmp_eq_u32 s{sTY}, 1", "s_cbranch_scc1 L1_ffn")
    ool = role_qkv(a)
    phase2(a)
    a(ool)
    role_ffn(a)
    a.label("L_end")
    a("s_endpgm")
    return a

def build():
    a = kernel()
    a.lines = autonop(a.lines)
    bad = check_hazards(a.lines)
    for p in bad:
        print("HAZARD", p, file=sys.stderr)
    out = ["; generated by gen/gen3.py: one persistent kernel, 256 workgroups (one per CU)",
           f"; @launch grid=(256,1,1) block=(256,1,1) lds={LDS_SIZE}",
           '.amdgcn_target "amdgcn-amd-amdhsa--gfx950"', ".text", f".globl {KNAME}", ".p2align 8", f".type {KNAME},@function", a.text(),
           '.section .rodata,"a"', ".p2align 6", f""".amdhsa_kernel {KNAME}
  .amdhsa_next_free_vgpr 480
  .amdhsa_next_free_sgpr 102
  .amdhsa_accum_offset 256
  .amdhsa_group_segment_fixed_size 0
  .amdhsa_kernarg_size 80
  .amdhsa_user_sgpr_count 2
  .amdhsa_user_sgpr_kernarg_segment_ptr 1
  .amdhsa_system_sgpr_workgroup_id_x 1
  .amdhsa_float_denorm_mode_32 3
.end_amdhsa_kernel
"""]
    return "\n".join(out), len(bad)

if __name__ == "__main__":
    dst = f"cdna_kernels/{NAME}.s"
    for arg in sys.argv[1:]:
        k, v = arg.split("=")
        if k == "out": dst = v
        else: OPT[k] = int(v)
    txt, bad = build()
    open(dst, "w").write(txt)
    print("wrote", dst, len(txt), "bytes; hazards:", bad)
```

```python
import sys, os
sys.path.insert(0, os.path.dirname(os.path.abspath(__file__)))
from asmlib import *

NAME = "recurrent_scan__linear_kernel_hedgehog__dense_activation_silu__prompt"
KNAME = NAME + "_kernel"
WS_HO = 0x400000
HO_TB = 144 * 1024
HO_SIZE = 128 * HO_TB
WS_KV = 0x1600000; KV_SIZE = 32 * 2 * 8 * 4096
WS_SM = 0x1800000; SM_SIZE = 0x72000; SM_Z = 0; SM_ST = 0x52000; SM_CS = 0x12000
WS_FLAG = 0x1900000; FLAG_SIZE = 0x8000
FL_KV, FL_PART, FL_H, FL_O = 0, 0x2000, 0x6000, 0x6400
WS_PART = 0x1A00000; PART_SIZE = 128 * 65536
WS_STAMP = 0x3000000
LOG2E, NLOG2E, NLN2 = 0x3fb8aa3b, 0xbfb8aa3b, 0xbf317218
OPT = dict(stamp=0, pf=1, pfl=32, kw2=3, ka=56, rot=1, ctouch=1)

G1_SLOT = 36864; G2 = 3 * G1_SLOT; G2_SLOT = 12288
LDS_TOP = G2 + 4 * G2_SLOT
L_CS, L_M, L_R, L_D = LDS_TOP, LDS_TOP + 1024, LDS_TOP + 2048, LDS_TOP + 3072
LDS_SIZE = 163840
sA, sB, sHO, sU, sV = 8, 12, 16, 20, 24
sW, sTH, sNH = 28, 29, 30
sSoffA, sSoffB, sSoffH, sRd, sWr, sDelta, sM0A, sM0B, sCnt, sMT, sIDX = 31, 32, 33, 34, 35, 36, 37, 38, 39, 40, 41
sT0 = 42; sK = 46
sP = 48
sE = 68
sFL, sPoll, sTY, sMT2, sNT2 = 76, 80, 81, 82, 83
sDI, sDI1 = 88, 89
sSM, sDBG = 92, 96
sST = 100
vAoff, vBoff, vBh, vXa, vWa, vWh = 224, 232, 235, 236, 238, 240
vT = 241
vXb, vWhb = 241, 243
vPF = 250
vL = 255
F0 = 192
SETREG = 60
aWP, aCS, aONE, aX = 120, 156, 128, 160

def srd(s, base, off, size):
    o = []
    if isinstance(off, str):
        o += [f"s_add_u32 s{s}, s{base}, {off}", f"s_addc_u32 s{s+1}, s{base+1}, 0"]
    elif off == 0:
        o += [f"s_mov_b32 s{s}, s{base}", f"s_mov_b32 s{s+1}, s{base+1}"]
    elif off < 0:
        o += [f"s_sub_u32 s{s}, s{base}, {-off}", f"s_subb_u32 s{s+1}, s{base+1}, 0"]
    else:
        o += [f"s_add_u32 s{s}, s{base}, {hex(off)}", f"s_addc_u32 s{s+1}, s{base+1}, 0"]
    return o + [f"s_mov_b32 s{s+2}, {hex(size)}", f"s_mov_b32 s{s+3}, 0x20000"]

def stamp(idx):
    if not OPT["stamp"]:
        return []
    return [f"s_memrealtime s[{sST}:{sST+1}]", "s_waitcnt lgkmcnt(0)", f"v_mov_b32 v254, s{sST}",
            f"buffer_store_dword v254, v253, s[84:87], 0 offen offset:{idx*4}",
            f"s_memtime s[{sST}:{sST+1}]", "s_waitcnt lgkmcnt(0)", f"v_mov_b32 v254, s{sST}",
            f"buffer_store_dword v254, v253, s[84:87], 0 offen offset:{64+idx*4}"]

def resolve(traces):
    cnt = {}
    for dyn in traces:
        issued = []
        for it in dyn:
            if isinstance(it, tuple) and it[0] == "vm":
                issued.append(it[2])
            elif isinstance(it, tuple) and it[0] == "wait":
                idx = [i for i, tg in enumerate(issued) if tg in it[2]]
                for tg in it[2]:
                    assert tg in issued, (it, tg)
                cnt[it[1]] = min(cnt.get(it[1], 63), len(issued) - 1 - max(idx))
    return cnt

def render(items, cnt):
    out = []
    for it in items:
        if isinstance(it, tuple):
            if it[0] == "vm":
                out.append(it[1])
            else:
                out.append(f"s_waitcnt vmcnt({cnt[it[1]]})" + (" lgkmcnt(0)" if len(it) < 4 else ""))
        else:
            out.append(it)
    return out

def flat(x):
    o = []
    for it in x:
        o.extend(it if isinstance(it, list) else [it])
    return o

def poll(label, dst, addr, srdreg, target, cmp="lt"):
    return [f"s_mov_b32 s{sPoll}, 0", f"{label}:", f"buffer_load_dword v{dst}, v{addr}, s[{srdreg}:{srdreg+3}], 0 offen sc1", "s_waitcnt vmcnt(0)",
            f"v_readfirstlane_b32 s3, v{dst}", f"s_add_u32 s{sPoll}, s{sPoll}, 1", f"s_cmp_ge_u32 s{sPoll}, 0x40000", f"s_cbranch_scc1 {label}_ok",
            f"s_cmp_lt_u32 s3, {target}", f"s_cbranch_scc1 {label}", f"{label}_ok:"]

def acc_reg(ffn, ng, tb):
    if ffn:
        return ("v", (tb * 6 + ng) * 4) if ng < 6 else ("a", aX + tb * 4)
    return ("v", (ng >> 1) * 64 + tb * 8 + (ng & 1) * 4)

def xrows():
    return [f"buffer_load_dwordx4 {vr(200+8*r+4*h,4)}, v199, s[{sA}:{sA+3}], 0 offen offset:{r*2048+h*1024}" for r in range(2) for h in range(2)]

def place(nm, reads, main, side):
    fill = {}
    nr = len(reads)
    spread(reads, list(range(nr)), fill)
    load = [1 if g < nr else 0 for g in range(nm)]
    k = len(main)
    lo = nr if k <= nm - nr else max(0, nm - k)
    for i, it in enumerate(main):
        g = lo + (i * (nm - lo)) // k
        fill.setdefault(g, []).extend(it if isinstance(it, list) else [it]); load[g] += 2
    k = len(side)
    if k:
        order = sorted(range(1, nm), key=lambda g: (load[g], -g))
        gaps = []
        while len(gaps) < k:
            gaps += order[:k - len(gaps)]
        free = [g for g in range(1, nm) if load[g] == 0]
        if k <= len(free):
            gaps = [free[(i * len(free)) // k] for i in range(k)]
        for it, g in zip(side, sorted(gaps)):
            fill.setdefault(g, []).extend(it if isinstance(it, list) else [it])
    return fill

def phase1(a, ffn, tail_side):
    tag = "F" if ffn else "Q"
    RS = 7168 if ffn else 6144
    ngs = 7 if ffn else 6
    nm = ngs * 8
    PF, PFL = OPT["pf"], OPT["pfl"]
    chunk = PFL * 128
    nown = OPT.get("nown", 0)
    nw2 = -(-(3584 * 2048) // (1024 * chunk))
    def R(k, n): return vr(k[1], n) if k[0] == "v" else ar(k[1], n)
    def mfmas(s):
        base = (s & 1) * SETREG
        out = []
        for ng in range(ngs):
            for tb in range(8):
                X = ar(base + tb * 4, 4); W = ar(base + 32 + ng * 4, 4); D = R(acc_reg(ffn, ng, tb), 4)
                C = "0" if s == 0 else D
                if (not ffn) and ng >= 4:
                    out.append(f"v_mfma_f32_16x16x32_bf16 {D}, {X}, {W}, {C}")
                else:
                    out.append(f"v_mfma_f32_16x16x32_bf16 {D}, {W}, {X}, {C}")
        return out
    def reads(u):
        base = (u & 1) * SETREG
        j = u & 1; slot = u & 3; g1 = (u >> 1) % 3
        xa, wh, o1 = (vXa + j, vWh, g1 * G1_SLOT) if g1 < 2 else (vXb + j, vWhb, 0)
        xs = [f"ds_read_b128 {ar(base+tb*4,4)}, v{xa} offset:{o1+tb*2048}" for tb in range(8)]
        ws = []
        for ng in range(ngs):
            for jj in range(2):
                dst = ar(base + 32 + ng * 4 + jj * 2, 2)
                if ng < 6:
                    ws.append(f"ds_read_b64_tr_b16 {dst}, v{vWa+(ng&1)} offset:{slot*G2_SLOT+(ng>>1)*1024+jj*512}")
                else:
                    ws.append(f"ds_read_b64_tr_b16 {dst}, v{wh} offset:{o1+j*2048+jj*256}")
        return ws[:2] + xs + ws[2:]
    def dma_B(u):
        out = [f"s_add_u32 m0, s{sM0B}, {(u&3)*G2_SLOT}"]
        out += [("vm", f"buffer_load_dwordx4 v{vBoff+b}, s[{sB}:{sB+3}], s{sSoffB} offen offset:{b*1024} lds", ("B", u)) for b in range(3)]
        if u < 31:
            out.append(f"s_mov_b32 s{sSoffB}, s{sT0+3}" if u == 15 else f"s_add_u32 s{sSoffB}, s{sSoffB}, {32*RS}")
        return out
    def dma_A(t, half):
        out = [f"s_add_u32 m0, s{sM0A}, {(t%3)*G1_SLOT+half*4096}"]
        out += [("vm", f"buffer_load_dwordx4 v{vAoff+half*4+i}, s[{sA}:{sA+3}], s{sSoffA} offen offset:{i*1024} lds", ("A", t)) for i in range(4)]
        if half and ffn:
            out += [f"s_add_u32 m0, s{sT0}, {(t%3)*G1_SLOT}", ("vm", f"buffer_load_dwordx4 v{vBh}, s[{sB}:{sB+3}], s{sSoffH} offen lds", ("A", t))]
            if t < 15:
                out.append(f"s_mov_b32 s{sSoffH}, s{sT0+3}" if t == 7 else f"s_add_u32 s{sSoffH}, s{sSoffH}, {64*RS}")
        if half and t < 15:
            out.append(f"s_mov_b32 s{sSoffA}, s{sT0+2}" if t == 7 else f"s_add_u32 s{sSoffA}, s{sSoffA}, 128")
        return out
    def window(u):
        o = dma_B(u + 3) if 0 <= u + 3 < 32 else []
        t = (u >> 1) + 2
        return o + (dma_A(t, u & 1) if t < 16 else [])
    def touch(k):
        o = []
        if 0 < k < nown: o = [f"s_add_u32 s{sV}, s{sV}, {256*chunk}"]
        if k == nown: o = [f"s_mov_b32 s{sU}, s{sP+12}", f"s_mov_b32 s{sU+1}, s{sP+13}", f"s_mov_b32 s{sU+2}, {hex(3584*2048)}", f"s_mov_b32 s{sV}, s{sV+2}"]
        if nown < k < nown + nw2: o = [f"s_add_u32 s{sV}, s{sV}, {1024*chunk}"]
        if k == nown + nw2: o = [f"s_mov_b32 s{sU}, s{sP+6}", f"s_mov_b32 s{sU+1}, s{sP+7}", f"s_mov_b32 s{sU+2}, {hex(1024*2048)}", f"s_mov_b32 s{sV}, s{sV+2}"]
        return o + [("vm", f"buffer_load_dword v{vPF+1}, v{vPF}, s[{sU}:{sU+3}], s{sV} offen", ("pf", k))]
    tsteps = [OPT.get("t0", 1) + OPT.get("town", 4) * k for k in range(nown)] + [OPT.get("tw0", 9) + OPT.get("tw", 4) * k for k in range(nw2 + 1)]
    vCSo, vSig, vOne, vSig2, vG, vF = F0, F0 + 1, F0 + 2, F0 + 3, F0 + 4, F0 + 3
    ool = []
    def needs(u):
        return [("B", u)] + ([("A", u >> 1)] if u % 2 == 0 else [])
    def cond(name, val, body):
        ool.extend([f"L1{tag}_{name}:"] + body + [f"s_branch L1{tag}_{name}_r"])
        return [f"s_cmp_eq_u32 s{sDI}, {val}", f"s_cbranch_scc1 L1{tag}_{name}", f"L1{tag}_{name}_r:"]
    RAW = [200, 208]; HI = 216; s0, t0 = 244, 245; M = 246; RES = 248
    def row_stats(r):
        raw = RAW[r]
        def allsum():
            o = [f"v_add_f32 v{s0}, v{s0}, v{t0}"]
            for pat in ("quad_perm:[1,0,3,2]", "quad_perm:[2,3,0,1]", "row_half_mirror", "row_mirror"):
                o.append(f"v_add_f32_dpp v{s0}, v{s0}, v{s0} {pat} row_mask:0xf bank_mask:0xf")
            for pl in ("v_permlane16_swap_b32", "v_permlane32_swap_b32"):
                o += [f"v_mov_b32 v{t0}, v{s0}", f"{pl} v{s0}, v{t0}", f"v_add_f32 v{s0}, v{s0}, v{t0}"]
            return o
        rnd = [f"v_cvt_pk_bf16_f32 v{s0}, v{s0}, v{s0}", f"v_and_b32 v{s0}, 0xffff0000, v{s0}"]
        o = []
        for i in range(8):
            o += [f"v_and_b32 v{HI+i}, 0xffff0000, v{raw+i}", f"v_lshlrev_b32 v{raw+i}, 16, v{raw+i}"]
        o += [f"v_add_f32 v{s0}, v{raw}, v{raw+1}", f"v_add_f32 v{t0}, v{HI}, v{HI+1}"]
        for i in range(2, 8):
            o += [f"v_add_f32 v{s0}, v{s0}, v{raw+i}", f"v_add_f32 v{t0}, v{t0}, v{HI+i}"]
        o += allsum() + [f"v_mul_f32 v{M}, 0x3a800000, v{s0}"]
        for i in range(8):
            o += [f"v_sub_f32 v{raw+i}, v{raw+i}, v{M}", f"v_sub_f32 v{HI+i}, v{HI+i}, v{M}"]
        o += [f"v_mul_f32 v{s0}, v{raw}, v{raw}", f"v_mul_f32 v{t0}, v{HI}, v{HI}"]
        for i in range(1, 8):
            o += [f"v_fmac_f32 v{s0}, v{raw+i}, v{raw+i}", f"v_fmac_f32 v{t0}, v{HI+i}, v{HI+i}"]
        o += allsum() + [f"v_mul_f32 v{s0}, 0x3a800000, v{s0}"] + rnd + [f"v_add_f32 v{s0}, 0x3727c5ac, v{s0}"] + rnd
        return o + [f"v_sqrt_f32 v{s0}, v{s0}", f"v_lshrrev_b32 v{t0}, 3, v{vL}", f"v_cvt_pk_bf16_f32 v{RES+r}, v{M}, v{s0}"]
    stats = row_stats(0) + row_stats(1) + [f"v_lshlrev_b32 v{t0}, 20, v{t0}", f"v_lshl_add_u32 v{t0}, v{vL}, 4, v{t0}",
             ("vm", f"buffer_store_dwordx4 {vr(RES,4)}, v{t0}, s[{sSM}:{sSM+3}], s{sE+6} offen sc1", ("st",))]
    XS = OPT.get("xs", 1); ST0 = OPT.get("st0", 4); ST1 = OPT.get("st1", 10); SG = OPT.get("sg", 2)
    nst = ST1 - ST0 + 1
    def step(s):
        u = s + 1
        front, side, more = [], [], []
        main = window(-1) + window(0) if s == 0 else window(1) + window(2) if s == 1 else window(u) if s < 31 else []
        if PF and s in tsteps:
            t = touch(tsteps.index(s)); side += t[:-1]; main += t[-1:]
        if s < 16:
            base = (s & 1) * SETREG
            side.append(cond(f"d{s}", s >> 2, [f"v_mfma_f32_16x16x32_bf16 {ar(aCS,4)}, {ar(base+32+ng*4,4)}, {ar(aONE+4*ng,4)}, {'0' if s & 3 == 0 and ng == 0 else ar(aCS,4)}" for ng in range(ngs)]))
        if XS <= s < XS + 2:
            main += [("vm", x, ("xr", s - XS)) for x in xrows()[2 * (s - XS):2 * (s - XS) + 2]]
        if s == ST0:
            more.append(("xr", 0))
        if s == ST0 + nst // 2 - 1:
            more.append(("xr", 1))
        if ST0 <= s <= ST1:
            side += stats[((s - ST0) * len(stats)) // nst:((s - ST0 + 1) * len(stats)) // nst]
        if s in (4, 8, 12, 16):
            main = [cond(f"p{s}", s // 4 - 1, [f"buffer_store_dwordx4 {ar(aCS,4)}, v{vCSo}, s[{sSM}:{sSM+3}], s{sE+7} offen sc1"])] + main
        if s in (8, 12, 16, 20):
            main.append(cond(f"g{s}", s // 4 - 2, [f"buffer_atomic_add v{vOne}, v{vSig2}, s[{sDBG}:{sDBG+3}], 0 offen sc1"]))
        if ST1 + SG <= s <= ST1 + SG + 3:
            if s == ST1 + SG:
                more.append(("st",))
            main.append(cond(f"h{s}", s - ST1 - SG, [f"buffer_atomic_add v{vOne}, v{vSig}, s[{sDBG}:{sDBG+3}], 0 offen sc1"]))
        if s == 23:
            side += [f"v_min_u32 v{vG}, 8, v{vL}", f"s_lshl_b32 s3, s{sTY}, 4", f"s_add_u32 s3, s3, s{sIDX}", "s_add_u32 s3, s3, 24", f"v_lshrrev_b32 v{vG+1}, 3, v{vG}",
                     f"v_mad_u32_u24 v{vG}, v{vG+1}, s3, v{vG}", f"v_mul_u32_u24 v{vG+1}, 24, v{vG+1}", f"v_lshlrev_b32 v{vG}, 2, v{vG}", f"v_sub_u32 v{vG+1}, 32, v{vG+1}"]
        if s == 24:
            main.append(("vm", f"buffer_load_dword v{vF}, v{vG}, s[{sDBG}:{sDBG+3}], 0 offen sc1", ("F",)))
        if s == 27:
            more.append(("F",))
            ool.extend([f"L1{tag}_sp0:", f"s_mov_b32 s{sPoll}, 0", f"L1{tag}_sp:",
                        f"buffer_load_dword v{vF}, v{vG}, s[{sDBG}:{sDBG+3}], 0 offen sc1", "s_waitcnt vmcnt(0)", f"v_cmp_gt_u32 vcc, v{vG+1}, v{vF}",
                        f"s_add_u32 s{sPoll}, s{sPoll}, 1", f"s_cmp_ge_u32 s{sPoll}, 0x40000", f"s_cbranch_scc1 L1{tag}_sok",
                        "s_nop 2", f"s_cbranch_vccz L1{tag}_sok", "s_sleep 8", f"s_branch L1{tag}_sp"])
            front = [[f"v_cmp_gt_u32 vcc, v{vG+1}, v{vF}"], [f"s_lshl_b32 s{sE+6}, s{sW}, 8"], ["s_nop 0"],
                     [f"s_cbranch_vccnz L1{tag}_sp0", f"L1{tag}_sok:"], [f"v_lshl_add_u32 v{vF}, v{vL}, 2, s{sE+6}"]]
            main += [f"v_and_b32 v{vG+8}, 4, v{vF}", f"v_and_b32 v{vG+7}, -8, v{vF}", f"v_lshl_add_u32 v{vG+8}, v{vG+7}, 4, v{vG+8}"]
            main.append(("vm", f"buffer_load_dword v{vG+8}, v{vG+8}, s[{sSM}:{sSM+3}], s{sE+4} offen sc1", ("G",)))
            for m_ in range(8):
                main.append(("vm", f"buffer_load_dword v{vG+m_}, v{vF}, s[{sSM}:{sSM+3}], s{sE+5} offen offset:{(m_&3)*1024} sc1", ("G",)))
                if m_ == 3: main.append(f"s_add_u32 s{sE+5}, s{sE+5}, 4096")
        if s == 29:
            main += [[("wait", "G", [("G",)], 0), f"v_add_f32 v{vG}, v{vG}, v{vG+1}"], f"v_add_f32 v{vG+2}, v{vG+2}, v{vG+3}",
                     f"v_add_f32 v{vG+4}, v{vG+4}, v{vG+5}", f"v_add_f32 v{vG+6}, v{vG+6}, v{vG+7}",
                     f"v_add_f32 v{vG}, v{vG}, v{vG+2}", f"v_add_f32 v{vG+4}, v{vG+4}, v{vG+6}",
                     f"v_and_b32 v{vG+2}, 0xffff0000, v{vG+8}", f"v_add_f32 v{vG}, v{vG}, v{vG+4}",
                     f"v_rcp_f32 v{vG+2}, v{vG+2}", f"v_lshlrev_b32 v{vG+1}, 16, v{vG+8}",
                     f"v_add_u32 v{vF}, {LDS_TOP}, v{vF}", f"ds_write_b32 v{vF}, v{vG}", f"ds_write_b32 v{vF}, v{vG+1} offset:1024",
                     f"ds_write_b32 v{vF}, v{vG+2} offset:2048", f"v_lshrrev_b32 v{vF}, 1, v{vF}",
                     f"v_add_u32 v{vF}, {L_D - LDS_TOP // 2}, v{vF}", f"ds_write_b16_d16_hi v{vF}, v{vG+8}"]
        if s >= 28:
            main += tail_side(s)
        fill = place(nm, front + (reads(u) if s < 31 else []), main, side)
        fill[-1] = ["s_waitcnt lgkmcnt(0)", "s_barrier"] if s == 31 else [("wait", s, needs(u) + more), "s_barrier"]
        if OPT.get("sstamp"):
            fill[-1] += ([f"v_writelane_b32 v254, s{sST}, {s-1}"] if s else []) + [f"s_memtime s[{sST}:{sST+1}]"]
        return weave(mfmas(s), fill)

    a(f"s_lshl_b32 s{sT0}, s{sW}, 10", f"s_add_u32 s{sT0}, s{sT0}, 32768", f"s_lshl_b32 s{sM0A}, s{sW}, 13",
      f"s_mul_i32 s{sM0B}, s{sW}, 3072", f"s_add_u32 s{sM0B}, s{sM0B}, {G2}", f"s_lshr_b32 s3, s{sMT}, 2",
      f"s_lshl_b32 s{sSoffA}, s3, 10", f"s_mul_i32 s{sSoffB}, s3, {512*RS}", f"s_mov_b32 s{sSoffH}, s{sSoffB}",
      f"s_xor_b32 s{sT0+2}, s{sSoffA}, 1024", f"s_sub_u32 s{sT0+3}, {512*RS}, s{sSoffB}")
    pro = window(-4) + window(-3) + window(-2)
    pro += [f"v_add_u32 v{vXb}, {2*G1_SLOT}, v{vXa}", f"v_add_u32 v{vXb+1}, {2*G1_SLOT}, v{vXa+1}"] + ([f"v_add_u32 v{vWhb}, {2*G1_SLOT}, v{vWh}"] if ffn else [])
    pro += [f"v_mov_b32 v{28+i}, 0" for i in range(4)]
    pro += [f"v_lshrrev_b32 v2, 3, v0", "v_lshlrev_b32 v2, 20, v2", "v_and_b32 v3, 7, v0", "v_lshl_add_u32 v2, v3, 4, v2", "s_lshl_b32 s3, s2, 7",
            ("vm", f"buffer_store_dwordx4 v[28:31], v2, s[{sFL}:{sFL+3}], s3 offen sc1", ("z",))]
    pro += [f"s_lshl_b32 s3, s{sTY}, 4", f"s_add_u32 s3, s3, s{sIDX}", f"s_lshl_b32 s{sE+5}, s3, 13", f"s_add_u32 s{sE+5}, s{sE+5}, {SM_CS}",
            f"s_lshl_b32 s{sE+7}, s{sMT}, 10", f"s_add_u32 s{sE+7}, s{sE+7}, s{sE+5}", f"s_lshl_b32 s{sE+4}, s{sMT}, 14", f"s_add_u32 s{sE+4}, s{sE+4}, {SM_ST}", f"s_and_b32 s{sDI}, s{sMT}, 3",
            "s_lshl_b32 s3, s3, 9", f"s_add_u32 s3, s3, s{sE+4}", f"s_lshl_b32 s{sE+6}, s{sW}, 7", f"s_add_u32 s{sE+6}, s{sE+6}, s3"]
    if OPT.get("pretouch", 0):
        pro += [f"v_lshlrev_b32 v2, 7, v{vL}", f"v_add_u32 v2, s{sE+7}, v2", f"v_mov_b32 v3, s{sE+6}", f"v_cmp_gt_u32 vcc, 8, v{vL}", "v_cndmask_b32 v2, v3, v2, vcc"]
        if not ffn:
            pro += [f"s_lshl_b32 s3, s{sIDX}, 2", f"s_lshl_b32 s4, s{sNH}, 1", "s_add_u32 s3, s3, s4", f"s_add_u32 s3, s3, s{sTH}", "s_lshl_b32 s3, s3, 3",
                    f"s_add_u32 s3, s3, s{sMT}", "s_lshl_b32 s3, s3, 7", f"s_add_u32 s3, s3, {SM_Z}", "v_mov_b32 v3, s3", f"v_cmp_gt_u32 vcc, 32, v{vL}", "v_cndmask_b32 v2, v3, v2, vcc"]
        pro += [("vm", f"buffer_load_dword v{vPF+1}, v2, s[{sSM}:{sSM+3}], 0 offen", ("pt",))]
    if PF:
        pro += [f"s_mov_b32 s{sU}, s{sB}", f"s_mov_b32 s{sU+1}, s{sB+1}", f"s_mov_b32 s{sU+2}, s{sB+2}", f"s_mov_b32 s{sU+3}, 0x20000",
                f"s_lshr_b32 s3, s{sMT}, 2", f"s_mul_i32 s{sV}, s3, {512*RS}", f"s_add_u32 s{sV}, s{sV}, {4096+128*RS}",
                f"s_add_u32 s3, s3, {2 if ffn else 0}", f"s_mul_i32 s{sV+2}, s3, {256*chunk}",
                f"s_lshl_b32 s3, s{sIDX}, 2", f"s_add_u32 s3, s3, s{sDI}",
                "s_lshl_b32 s3, s3, 2", f"s_add_u32 s3, s3, s{sW}", f"s_mul_i32 s3, s3, {chunk}", f"v_lshlrev_b32 v{vPF}, 7, v{vL}"]
        if PFL < 64:
            pro += [f"v_lshrrev_b32 v3, {PFL.bit_length()-1}, v{vL}", f"v_lshl_add_u32 v{vPF}, v3, 28, v{vPF}"]
        pro += [f"v_add_u32 v{vPF}, s3, v{vPF}"]
    pro += [f"v_and_b32 v3, 15, v{vL}", "v_mov_b32 v4, 0x3f803f80"]
    for ng in range(ngs):
        pro += [f"v_cmp_eq_u32 vcc, {ng}, v3", f"v_cndmask_b32 v{8+ng}, 0, v4, vcc"]
    for ng in range(ngs):
        pro += [f"v_accvgpr_write_b32 a{aONE+4*ng+i}, v{8+ng}" for i in range(4)]
    pro += ["v_lshrrev_b32 v4, 1, v3", f"v_lshlrev_b32 v{vCSo}, 8, v4", "v_and_b32 v4, 1, v3", f"v_lshl_add_u32 v{vCSo}, v4, 6, v{vCSo}",
            f"v_lshrrev_b32 v4, 4, v{vL}", f"v_lshl_add_u32 v{vCSo}, v4, 4, v{vCSo}", f"s_lshl_b32 s3, s{sNH}, 7", f"s_lshl_b32 s4, s{sTH}, 24", "s_add_u32 s3, s3, s4",
            f"v_add_u32 v{vCSo}, s3, v{vCSo}", f"v_add_u32 v4, {16-ngs-(ngs&1)}, v3", "v_lshrrev_b32 v4, 4, v4", f"v_lshl_add_u32 v{vCSo}, v4, 20, v{vCSo}",
            f"v_lshlrev_b32 v{vSig}, 12, v0", f"s_lshl_b32 s3, s{sTY}, 4", f"s_add_u32 s3, s3, s{sIDX}", "s_add_u32 s3, s3, 32", "s_lshl_b32 s3, s3, 2",
            f"v_add_u32 v{vSig2}, s3, v{vSig}", f"s_lshl_b32 s3, s{sMT}, 2", f"v_add_u32 v{vSig}, s3, v{vSig}", f"v_mov_b32 v{vOne}, 1"]
    pro += stamp(1)
    pro += [("wait", "pro", needs(0), 0), "s_barrier"] + stamp(2) + reads(0)
    if not ffn:
        pro += [f"ds_read_b64_tr_b16 {ar(aWP+s*4+jj*2,2)}, v{vWh} offset:{s*1024+jj*256}" for s in range(2) for jj in range(2)]
    for s in range(32):
        if ffn and OPT.get("lstamp") and s in (3, 8, 16, 24):
            pro += stamp({3: 6, 8: 7, 16: 8, 24: 9}[s])
        pro += step(s)
    if OPT.get("sstamp"):
        pro += ["s_waitcnt lgkmcnt(0)", f"v_writelane_b32 v254, s{sST}, 31", f"s_memtime s[{sST}:{sST+1}]", "s_waitcnt lgkmcnt(0)", f"v_writelane_b32 v254, s{sST}, 32",
                f"v_lshlrev_b32 v241, 1, v253", f"v_lshl_add_u32 v241, v{vL}, 2, v241", "v_add_u32 v241, 0x20000, v241", "buffer_store_dword v254, v241, s[84:87], 0 offen"]
    a(render(pro, resolve([pro])))
    a(stamp(3))
    return ool

def b_offsets(RS, blockstride, scol, ffn):
    o = [f"v_lshrrev_b32 v{vT}, 3, v{vL}", f"s_lshl_b32 s3, s{sW}, 3", f"v_add_u32 v{vT}, s3, v{vT}",
         f"s_movk_i32 s3, {RS}", f"v_mul_lo_u32 v{vBoff}, v{vT}, s3",
         f"v_bfe_u32 v{vT}, v{vL}, 4, 1", f"v_lshlrev_b32 v{vT}, 2, v{vT}", f"s_lshl_b32 s3, s{sNH}, {0 if ffn else 1}", f"v_or_b32 v{vT}, s3, v{vT}",
         f"v_and_b32 v{vT+1}, 7, v{vL}", f"v_xor_b32 v{vT}, v{vT}, v{vT+1}",
         f"v_lshl_add_u32 v{vBoff}, v{vT}, 4, v{vBoff}", f"s_add_u32 s3, s{scol}, 4096", f"v_add_u32 v{vBoff}, s3, v{vBoff}"]
    for b in (1, 2):
        o.append(f"v_add_u32 v{vBoff+b}, {hex((b*blockstride-b*1024) & 0xffffffff)}, v{vBoff}")
    o += [f"v_lshrrev_b32 v{vT}, 4, v{vL}", f"v_mul_u32_u24 v{vWa}, 3072, v{vT}", f"v_and_b32 v{vT}, 1, v{vT}", f"v_bfe_u32 v{vT+1}, v{vL}, 3, 1"]
    if ffn:
        o += [f"v_lshl_or_b32 v{vT}, v{vT+1}, 2, v{vT}", f"s_lshl_b32 s3, s{sNH}, 2", f"v_xor_b32 v{vT}, s3, v{vT}",
              f"v_and_b32 v{vT+1}, 2, v{vL}", f"v_xor_b32 v{vT}, v{vT}, v{vT+1}", f"v_lshl_add_u32 v{vWa}, v{vT}, 4, v{vWa}",
              f"v_and_b32 v{vT+1}, 1, v{vL}", f"v_lshl_add_u32 v{vWa}, v{vT+1}, 3, v{vWa}"]
    else:
        o += [f"v_lshl_or_b32 v{vT}, v{vT+1}, 1, v{vT}", f"s_lshl_b32 s3, s{sNH}, 1", f"v_xor_b32 v{vT}, s3, v{vT}", f"v_lshl_add_u32 v{vWa}, v{vT}, 5, v{vWa}",
              f"v_and_b32 v{vT+1}, 3, v{vL}", f"v_lshl_add_u32 v{vWa}, v{vT+1}, 3, v{vWa}"]
    o += [f"v_bfe_u32 v{vT+1}, v{vL}, 2, 2", f"v_lshl_add_u32 v{vWa}, v{vT+1}, 7, v{vWa}",
          f"v_add_u32 v{vWa}, {G2}, v{vWa}", f"v_xor_b32 v{vWa+1}, {16 if ffn else 32}, v{vWa}"]
    return o

vDo = 244
sX0, sX1, sSo, sM0, sLast, sNx, sChk = 31, 32, 33, 34, 35, 36, 45
def p2_dma_setup(t0, t1):
    KA = OPT["ka"]
    o = srd(sB, sP + 12, -4096, 3584 * 2048 + 4096)
    o += [f"v_lshrrev_b32 v{t0}, 3, v{vL}", f"s_lshl_b32 s3, s{sW}, 4", f"v_add_u32 v{t0}, s3, v{t0}", f"v_lshlrev_b32 v{vDo}, 11, v{t0}",
          f"v_lshrrev_b32 v{t0}, 4, v{vL}", f"v_lshlrev_b32 v{t0}, 1, v{t0}", f"v_and_b32 v{t1}, 7, v{vL}", f"v_xor_b32 v{t0}, v{t0}, v{t1}",
          f"v_lshl_add_u32 v{vDo}, v{t0}, 4, v{vDo}", f"s_lshl_b32 s3, s{sNT2}, 8", "s_add_u32 s3, s3, 4096", f"v_add_u32 v{vDo}, s3, v{vDo}"]
    for i in range(1, 4):
        o.append(f"v_add_u32 v{vDo+i}, {hex(((i>>1)*16384+(i&1)*128-i*1024) & 0xffffffff)}, v{vDo}")
    o += [f"s_mul_i32 s{sSo}, s{sTY}, {KA*32*2048}", f"s_lshl_b32 s{sM0}, s{sW}, 12"]
    return o
def p2_dma(i):
    return f"buffer_load_dwordx4 v{vDo+i}, s[{sB}:{sB+3}], s{sSo} offen offset:{i*1024} lds"
def p2_dma_prologue(slots):
    o = []
    for t in slots:
        for i in range(4 if t < 7 else 2):
            it = [f"s_add_u32 m0, s{sM0}, {t*16384}", f"s_add_u32 s{sLast}, s{sSo}, {t*0x20000}"] if i == 0 else []
            o.append(it + [p2_dma(i).replace(f"s{sSo} offen", f"s{sLast} offen")])
    return o
vFo, vFv = 242, 243
def wg_signal(base, sidx, t0):
    return [f"s_lshl_b32 s3, s{sidx}, 7", f"s_add_u32 s3, s3, {base}", f"v_lshlrev_b32 v{t0}, 20, v{vL}", f"s_lshl_b32 s{sE+6}, s{sW}, 26",
            f"s_add_u32 s3, s3, s{sE+6}", f"v_add_u32 v{t0}, s3, v{t0}", f"v_mov_b32 v{t0+1}, 1",
            "s_waitcnt vmcnt(0)", "s_barrier", f"buffer_atomic_add v{t0+1}, v{t0}, s[{sFL}:{sFL+3}], 0 offen sc1"]

def role_ffn(a):
    a.label("L1_ffn")
    a(srd(sB, sP + 10, -4096, 1024 * 7168 + 4096))
    a(f"s_mul_i32 s{sE}, s{sIDX}, 448", f"s_and_b32 s{sE+1}, s{sIDX}, 1",
      f"s_lshl_b32 s{sE+2}, s{sE+1}, 6", f"s_add_u32 s{sE+2}, s{sE+2}, s{sE}",
      f"s_mul_i32 s{sE+1}, s{sE+1}, 384", f"s_sub_u32 s{sE+3}, s{sE}, s{sE+1}", f"s_add_u32 s{sE+3}, s{sE+3}, 384")
    a(b_offsets(7168, 128, sE + 2, True))
    a(f"v_lshrrev_b32 v{vT}, 2, v{vL}", f"s_lshl_b32 s3, s{sW}, 4", f"v_add_u32 v{vT}, s3, v{vT}",
      f"s_movk_i32 s3, 7168", f"v_mul_lo_u32 v{vBh}, v{vT}, s3",
      f"v_lshrrev_b32 v{vT}, 5, v{vL}", f"v_lshlrev_b32 v{vT}, 1, v{vT}", f"v_and_b32 v{vT+1}, 3, v{vL}", f"v_xor_b32 v{vT}, v{vT}, v{vT+1}",
      f"v_lshl_add_u32 v{vBh}, v{vT}, 4, v{vBh}", f"s_add_u32 s3, s{sE+3}, 4096", f"v_add_u32 v{vBh}, s3, v{vBh}")
    a(f"v_lshrrev_b32 v{vT}, 4, v{vL}", f"v_lshlrev_b32 v{vWh}, 9, v{vT}",
      f"v_and_b32 v{vT}, 1, v{vT}", f"v_xor_b32 v{vT}, s{sNH}, v{vT}", f"v_lshl_add_u32 v{vWh}, v{vT}, 5, v{vWh}",
      f"v_bfe_u32 v{vT}, v{vL}, 2, 2", f"v_lshl_add_u32 v{vWh}, v{vT}, 6, v{vWh}",
      f"v_and_b32 v{vT}, 3, v{vL}", f"v_lshl_add_u32 v{vWh}, v{vT}, 3, v{vWh}", f"v_add_u32 v{vWh}, 0x8000, v{vWh}")
    a(f"s_lshr_b32 s{sE}, s{sE+2}, 6", f"s_add_u32 s{sE}, s{sE}, s{sNH}", f"s_lshl_b32 s{sE}, s{sE}, 10",
      f"s_lshr_b32 s{sE+1}, s{sE+3}, 6", f"s_lshl_b32 s{sE+1}, s{sE+1}, 10", f"s_lshl_b32 s3, s{sNH}, 9", f"s_add_u32 s{sE+1}, s{sE+1}, s3",
      f"s_lshl_b32 s3, s{sMT}, 4", f"s_lshl_b32 s{sE+2}, s{sTH}, 3", f"s_add_u32 s3, s3, s{sE+2}", f"s_mul_i32 s3, s3, {HO_TB}",
      f"s_add_u32 s{sE}, s{sE}, s3", f"s_add_u32 s{sE+1}, s{sE+1}, s3")
    vM, vR, vC, tmp, vSt = 192, 200, 208, 236, 252
    def tail_reads(s):
        if s == 28:
            return [f"v_and_b32 v248, 15, v{vL}", f"s_lshl_b32 s3, s{sTH}, 9", f"s_add_u32 s3, s3, {L_M}", "v_lshl_add_u32 v248, v248, 2, s3",
                    f"v_lshrrev_b32 v249, 4, v{vL}", f"s_lshl_b32 s3, s{sNH}, 7", f"s_add_u32 s3, s3, {L_CS}", "v_lshl_add_u32 v249, v249, 4, s3",
                    f"v_lshlrev_b32 v{vSt}, 4, v{vL}"]
        if s == 30:
            return [f"ds_read_b32 v{vR+tb}, v248 offset:{1024+tb*64}" for tb in range(8)] + [f"ds_read_b32 v{vM+tb}, v248 offset:{tb*64}" for tb in range(8)] + \
                   [f"ds_read_b128 {vr(vC+4*ng,4)}, v249 offset:{(ng>>1)*256+(ng&1)*64}" for ng in range(7)]
        if s == 31:
            return [f"v_mul_f32 v{vR+tb}, {hex(NLOG2E)}, v{vR+tb}" for tb in range(8)] + p2_dma_setup(vT, vT + 1)
        return []
    ool = phase1(a, True, tail_reads)
    a.c("---- FFN epilogue: h' = -log2e * silu(LN(x) w1) -> fragment-major bf16")
    def bc(reg):
        return (vr(reg, 2), 0) if reg % 2 == 0 else (vr(reg - 1, 2), 1)
    def silu(regs, c, tb, t, dst):
        n = len(regs); o = []
        mp, ms = bc(vM + tb); rp, rs = bc(vR + tb)
        for i in range(0, n, 2):
            o.append(f"v_pk_fma_f32 {vr(regs[i],2)}, {vr(c+i,2)}, {mp}, {vr(regs[i],2)} op_sel:[0,{ms},0] op_sel_hi:[1,{ms},1] neg_lo:[1,0,0] neg_hi:[1,0,0]")
        for i in range(0, n, 2):
            o.append(f"v_pk_mul_f32 {vr(regs[i],2)}, {vr(regs[i],2)}, {rp} op_sel:[0,{rs}] op_sel_hi:[1,{rs}]")
        o += [f"v_exp_f32 v{t+i}, v{regs[i]}" for i in range(n)]
        o += [f"v_pk_add_f32 {vr(t+i,2)}, {vr(t+i,2)}, 1.0 op_sel_hi:[1,0]" for i in range(0, n, 2)]
        o += [f"v_rcp_f32 v{t+i}, v{t+i}" for i in range(n)]
        o += [f"v_pk_mul_f32 {vr(t+i,2)}, {vr(t+i,2)}, {vr(regs[i],2)}" for i in range(0, n, 2)]
        o += [f"v_cvt_pk_bf16_f32 v{dst+i//2}, v{t+i}, v{t+i+1}" for i in range(0, n, 2)]
        return o
    e = []
    for tb in range(8):
        base = tb * 24
        e += [f"v_accvgpr_read_b32 v{248+i}, a{aX+tb*4+i}" for i in range(4)]
        for b in range(3):
            e += silu(list(range(base + b * 8, base + b * 8 + 8)), vC + 8 * b, tb, tmp, base + b * 8)
            if b == 2:
                e.append(f"s_add_u32 s{sE+2}, s{sE}, 4096")
            so, imm = (sE, b * 2048) if b < 2 else (sE + 2, 0)
            e.append(f"buffer_store_dwordx4 {vr(base+b*8,4)}, v{vSt}, s[{sHO}:{sHO+3}], s{so} offen offset:{imm} sc1")
        hb = (tb & 6) * 24 + 4
        e += silu([248, 249, 250, 251], vC + 24, tb, tmp, hb + 2 * (tb & 1))
        if tb == 0:
            e += [f"v_lshrrev_b32 v13, 5, v{vL}", f"s_mov_b32 s3, {HO_TB}", "v_mul_lo_u32 v12, v13, s3", f"v_and_b32 v13, 31, v{vL}", "v_lshl_add_u32 v12, v13, 4, v12"]
        if tb & 1:
            e += [f"v_permlane32_swap_b32 v{hb}, v{hb+2}", f"v_permlane32_swap_b32 v{hb+1}, v{hb+3}",
                  f"buffer_store_dwordx4 {vr(hb,4)}, v12, s[{sHO}:{sHO+3}], s{sE+1} offen sc1", f"s_add_u32 s{sE+1}, s{sE+1}, {2*HO_TB}"]
        if tb < 7:
            e += [f"s_add_u32 s{sE}, s{sE}, {HO_TB}"]
    a(sprinkle(e, p2_dma_prologue(range(8)), start=4, end=int(len(e) * 0.8)))
    a(stamp(4))
    a([f"v_mov_b32 v{i}, 0" for i in range(64)], f"v_mov_b32 v{vFv}, 0")
    a(wg_signal(FL_H, sMT, 236))
    a(stamp(5))
    a("s_branch L_P2")
    a(ool)

def softmax_pair(P, E, t, rreg, dstp, dstm, kscale):
    t0, t1, t2, t3, c0 = t, t + 1, t + 2, t + 3, t + 4
    o = [f"v_max3_f32 v{t0}, v{P}, v{P+1}, v{P+2}", f"v_max3_f32 v{t1}, -v{P}, -v{P+1}, -v{P+2}"]
    for i in range(3, 15, 2):
        o += [f"v_max3_f32 v{t0}, v{t0}, v{P+i}, v{P+i+1}", f"v_max3_f32 v{t1}, v{t1}, -v{P+i}, -v{P+i+1}"]
    o += [f"v_max_f32 v{t0}, v{t0}, v{P+15}", f"v_max_f32_e64 v{t1}, v{t1}, -v{P+15}", f"v_mul_f32 v{c0}, {hex(LOG2E)}, v{rreg}",
          f"v_permlane32_swap_b32 v{t0}, v{t1}", f"v_max_f32 v{t0}, v{t0}, v{t1}",
          f"v_mul_f32 v{t0}, v{c0}, v{t0}", f"v_mov_b32 v{t2}, v{t0}", f"v_permlane32_swap_b32 v{t0}, v{t2}"]
    o += [f"v_pk_fma_f32 {vr(E[i],2)}, {vr(P+i,2)}, {vr(c0,2)}, {vr(t0,2)} op_sel_hi:[1,0,0] neg_lo:[0,0,1] neg_hi:[0,0,1]" for i in range(0, 16, 2)]
    o += [f"v_pk_fma_f32 {vr(P+i,2)}, {vr(P+i,2)}, {vr(c0,2)}, {vr(t2,2)} op_sel_hi:[1,0,0] neg_lo:[1,0,1] neg_hi:[1,0,1]" for i in range(0, 16, 2)]
    o += [f"v_exp_f32 v{E[i]}, v{E[i]}" for i in range(16)] + [f"v_exp_f32 v{P+i}, v{P+i}" for i in range(16)]
    o += [f"v_pk_add_f32 {vr(t0,2)}, {vr(E[0],2)}, {vr(E[2],2)}", f"v_pk_add_f32 {vr(t2,2)}, {vr(P,2)}, {vr(P+2,2)}"]
    for i in range(4, 16, 2):
        o += [f"v_pk_add_f32 {vr(t0,2)}, {vr(t0,2)}, {vr(E[i],2)}", f"v_pk_add_f32 {vr(t2,2)}, {vr(t2,2)}, {vr(P+i,2)}"]
    o += [f"v_add_f32 v{t0}, v{t0}, v{t1}", f"v_add_f32 v{t2}, v{t2}, v{t3}",
          f"v_permlane32_swap_b32 v{t0}, v{t2}", f"v_add_f32 v{t0}, v{t0}, v{t2}", f"v_rcp_f32 v{t0}, v{t0}"]
    if kscale:
        o += [f"v_mul_f32 v{t0}, v{t0}, v{rreg}"]
    o += [f"v_mov_b32 v{t2}, v{t0}", f"v_permlane32_swap_b32 v{t0}, v{t2}"]
    o += [f"v_pk_mul_f32 {vr(P+i,2)}, {vr(P+i,2)}, {vr(t2,2)} op_sel_hi:[1,0]" for i in range(0, 16, 2)]
    o += [f"v_pk_mul_f32 {vr(E[i],2)}, {vr(E[i],2)}, {vr(t0,2)} op_sel_hi:[1,0]" for i in range(0, 16, 2)]
    o += [f"v_cvt_pk_bf16_f32 v{dstm+i}, v{P+2*i}, v{P+2*i+1}" for i in range(7, -1, -1)]
    o += [f"v_cvt_pk_bf16_f32 v{dstp+i}, v{E[2*i]}, v{E[2*i+1]}" for i in range(8)]
    return o

def role_qkv(a):
    a.label("L1_qkv")
    a(srd(sB, sP + 2, -4096, 1024 * 6144 + 4096))
    a(f"s_lshl_b32 s{sE}, s{sIDX}, 7")
    a(b_offsets(6144, 2048, sE, False))
    a(srd(sU, sP + 4, 0, 65536))
    a(f"s_lshl_b32 s3, s{sIDX}, 12", f"s_lshl_b32 s{sE}, s{sW}, 10", f"s_add_u32 s3, s3, s{sE}",
      f"s_add_u32 m0, s{sE}, {LDS_TOP}", f"v_lshlrev_b32 v{vT}, 4, v{vL}",
      f"buffer_load_dwordx4 v{vT}, s[{sU}:{sU+3}], s3 offen lds")
    a(f"v_lshrrev_b32 v{vT+1}, 5, v{vL}", f"v_lshlrev_b32 v{vWh}, 9, v{vT+1}",
      f"v_bfe_u32 v{vT+1}, v{vL}, 2, 2", f"v_lshl_add_u32 v{vWh}, v{vT+1}, 6, v{vWh}",
      f"v_bfe_u32 v{vT+1}, v{vL}, 4, 1", f"v_lshl_add_u32 v{vWh}, v{vT+1}, 5, v{vWh}",
      f"v_and_b32 v{vT+1}, 3, v{vL}", f"v_lshl_add_u32 v{vWh}, v{vT+1}, 3, v{vWh}",
      f"s_lshl_b32 s3, s{sNH}, 11", f"s_add_u32 s3, s3, {LDS_TOP}", f"v_add_u32 v{vWh}, s3, v{vWh}")
    Q, K, V = 0, 64, 128
    vM, vCK, vCQ, vCV, vMV, vRr = 192, 200, 208, 216, 218, 248
    vPW, vPR, vLin, vZo = 236, 240, 238, 239
    aD = aX
    p1, p2, p3, pV, pR, pD = 244, 245, 246, 247, 252, 243
    def tail_reads(s):
        if s == 28:
            return [f"v_and_b32 v{p1}, 15, v{vL}", f"s_lshl_b32 s3, s{sTH}, 9", f"s_add_u32 s3, s3, {L_M}", f"v_lshl_add_u32 v{p1}, v{p1}, 2, s3",
                    f"v_lshrrev_b32 v{p2}, 4, v{vL}", f"v_lshl_add_u32 v{p3}, v{p2}, 4, s3",
                    f"s_lshl_b32 s3, s{sNH}, 7", f"s_add_u32 s3, s3, {L_CS}", f"v_lshl_add_u32 v{p2}, v{p2}, 4, s3",
                    f"v_and_b32 v{pV}, 15, v{vL}", f"v_lshl_add_u32 v{pV}, v{pV}, 2, s3",
                    f"v_and_b32 v{pR}, 31, v{vL}", f"s_lshl_b32 s3, s{sTH}, 9", f"s_add_u32 s3, s3, {L_R}", f"v_lshl_add_u32 v{pR}, v{pR}, 2, s3",
                    f"v_lshrrev_b32 v{pD}, 5, v{vL}", f"s_lshl_b32 s3, s{sTH}, 8", f"s_add_u32 s3, s3, {L_D}", f"v_lshl_add_u32 v{pD}, v{pD}, 4, s3"]
        if s == 30:
            return [f"ds_read_b32 v{vM+tb}, v{p1} offset:{tb*64}" for tb in range(8)] + \
                   [f"ds_read_b128 {vr(vCK+4*dt,4)}, v{p2} offset:{256+dt*64}" for dt in range(2)] + \
                   [f"ds_read_b128 {vr(vCQ+4*dt,4)}, v{p2} offset:{dt*64}" for dt in range(2)] + \
                   [f"ds_read_b32 v{vCV+dt}, v{pV} offset:{512+dt*64}" for dt in range(2)] + \
                   [f"ds_read_b128 {vr(vMV+4*tb,4)}, v{p3} offset:{tb*64}" for tb in range(4)] + \
                   [f"ds_read_b32 v{vRr+p}, v{pR} offset:{p*128}" for p in range(4)]
        if s == 31:
            return [f"ds_read_b128 {ar(aD+4*f,4)}, v{pD} offset:{f*32}" for f in range(8)] + srd(sU, sP + 18, WS_KV, KV_SIZE)
        return []
    ool = phase1(a, False, tail_reads)
    a.c("---- QKV epilogue")
    def bc(reg):
        return (vr(reg, 2), 0) if reg % 2 == 0 else (vr(reg - 1, 2), 1)
    def corr_qk(X, c, p):
        o = []
        for tbb in range(2):
            mp, ms = bc(vM + 2 * p + tbb)
            for i in range(0, 8, 2):
                r = X + 16 * p + 8 * tbb + i
                o.append(f"v_pk_fma_f32 {vr(r,2)}, {vr(c+i,2)}, {mp}, {vr(r,2)} op_sel:[0,{ms},0] op_sel_hi:[1,{ms},1] neg_lo:[1,0,0] neg_hi:[1,0,0]")
        return o
    def corr_v(tb, m):
        o = []
        for dt in range(2):
            for i in range(0, 4, 2):
                r = V + 8 * tb + 4 * dt + i
                o.append(f"v_pk_fma_f32 {vr(r,2)}, {vr(m+i,2)}, {vr(vCV,2)}, {vr(r,2)} op_sel:[0,{dt},0] op_sel_hi:[1,{dt},1] neg_lo:[1,0,0] neg_hi:[1,0,0]")
        return o
    def frags_qk(src, T0):
        o = []
        for tbb in range(2):
            for dt in range(2):
                s = src + tbb * 8 + dt * 4; d = T0 + dt * 4 + tbb * 2
                o += [f"v_cvt_pk_bf16_f32 v{d}, v{s}, v{s+1}", f"v_cvt_pk_bf16_f32 v{d+1}, v{s+2}, v{s+3}"]
        for f in range(2):
            o += [f"v_permlane16_swap_b32 v{T0+4*f}, v{T0+4*f+2}", f"v_permlane16_swap_b32 v{T0+4*f+1}, v{T0+4*f+3}"]
        o += [f"v_mfma_f32_32x32x16_bf16 {vr(src,16)}, {ar(aWP,4)}, {vr(T0,4)}, 0",
              f"v_mfma_f32_32x32x16_bf16 {vr(src,16)}, {ar(aWP+4,4)}, {vr(T0+4,4)}, {vr(src,16)}"]
        return o
    def frags_v(p):
        src = V + 16 * p; o = []
        for i in range(8):
            o.append(f"v_cvt_pk_bf16_f32 v{src+i}, v{src+2*i}, v{src+2*i+1}")
        for f in range(2):
            o += [f"v_permlane16_swap_b32 v{src+4*f}, v{src+4*f+2}", f"v_permlane16_swap_b32 v{src+4*f+1}, v{src+4*f+3}"]
        return o
    e = []
    TA, TB = 236, 200
    e += corr_qk(K, vCK, 0) + corr_qk(K, vCK, 1) + corr_qk(K, vCK, 2) + corr_qk(K, vCK, 3)
    e += flat([corr_v(tb, vMV + 4 * tb) for tb in range(4)])
    e += [f"ds_read_b128 {vr(vMV+4*tb,4)}, v{p3} offset:{(tb+4)*64}" for tb in range(4)]
    e += frags_qk(K, TB) + frags_qk(K + 16, TA) + frags_v(0) + frags_qk(K + 32, TB) + frags_v(1) + frags_qk(K + 48, TA)
    e += ["s_waitcnt lgkmcnt(0)"] + flat([corr_v(tb + 4, vMV + 4 * tb) for tb in range(4)]) + frags_v(2) + frags_v(3)
    t = 218
    ad = [f"v_and_b32 v{t}, 31, v{vL}", f"v_lshrrev_b32 v{t+1}, 5, v{vL}",
          f"v_bfe_u32 v{t+2}, v{vL}, 1, 1", f"v_lshlrev_b32 v{t+2}, 2, v{t+2}",
          f"v_bfe_u32 v{t+3}, v{vL}, 2, 1", f"v_lshl_or_b32 v{t+2}, v{t+3}, 1, v{t+2}",
          f"v_and_b32 v{t+3}, 1, v{vL}", f"v_or_b32 v{t+2}, v{t+3}, v{t+2}",
          f"v_xor_b32 v{t+2}, v{t+2}, v{t+1}", f"v_lshlrev_b32 v{t+2}, 4, v{t+2}",
          f"v_lshl_add_u32 v{vPW}, v{t}, 7, v{t+2}", f"s_lshl_b32 s3, s{sW}, 14", f"v_add_u32 v{vPW}, s3, v{vPW}"]
    ad += [f"v_xor_b32 v{vPW+i}, {i*32}, v{vPW}" for i in range(1, 4)]
    ad += [f"v_bfe_u32 v{t}, v{vL}, 2, 2", f"v_lshlrev_b32 v{vPR}, 10, v{t+1}", f"v_lshl_add_u32 v{vPR}, v{t}, 7, v{vPR}",
           f"v_lshrrev_b32 v{t+2}, 1, v{t}", f"v_lshlrev_b32 v{t+2}, 2, v{t+2}", f"v_and_b32 v{t+3}, 1, v{t}", f"v_or_b32 v{t+2}, v{t+2}, v{t+3}",
           f"v_bfe_u32 v{t+3}, v{vL}, 4, 1", f"v_lshlrev_b32 v{t+3}, 1, v{t+3}", f"v_xor_b32 v{t+2}, v{t+2}, v{t+3}",
           f"v_and_b32 v{t+3}, 1, v{vL}", f"v_xor_b32 v{t+2}, v{t+2}, v{t+3}", f"v_lshl_add_u32 v{vPR}, v{t+2}, 4, v{vPR}",
           f"v_bfe_u32 v{t+3}, v{vL}, 1, 1", f"v_lshl_add_u32 v{vPR}, v{t+3}, 3, v{vPR}", f"v_add_u32 v{vPR}, s3, v{vPR}"]
    ad += [f"v_xor_b32 v{vPR+i}, {i*32}, v{vPR}" for i in range(1, 4)]
    e += ad + p2_dma_setup(218, 219)
    EA = list(range(V + 8, V + 16)) + list(range(V + 24, V + 32))
    EB = list(range(V + 40, V + 48)) + list(range(V + 56, V + 64))
    tA, tB = 218, 224
    KVa, Za = [128, 144], [192, 208]
    def ksoft(p):
        E = EA if p % 2 == 0 else EB
        P = K + 16 * p
        o = softmax_pair(P, E, tA if p % 2 == 0 else tB, vRr + p, E[0], P + 8, True)
        for sign in range(2):
            for qq in range(2):
                o.append(f"ds_write_b128 v{vPW+sign*2+qq}, {vr((E[0] if sign == 0 else P + 8) + qq*4, 4)} offset:{p*4096}")
        return o
    def kreads(p):
        fb = (p & 1) * 16
        return [f"ds_read_b64_tr_b16 {ar(fb+sign*8+ks*4+jj*2,2)}, v{vPR+sign*2+jj} offset:{p*4096+ks*2048+jj*512}"
                for sign in range(2) for ks in range(2) for jj in range(2)]
    def kmfma(p):
        fb = (p & 1) * 16; o = []
        for ks in range(2):
            for sign in range(2):
                A = ar(fb + sign * 8 + ks * 4, 4); first = (p == 0 and ks == 0)
                o.append(f"v_mfma_f32_32x32x16_bf16 {ar(KVa[sign],16)}, {A}, {vr(V+16*p+4*ks,4)}, {'0' if first else ar(KVa[sign],16)}")
                o.append(f"v_mfma_f32_32x32x16_bf16 {ar(Za[sign],16)}, {A}, {ar(aD+8*p+4*ks,4)}, {'0' if first else ar(Za[sign],16)}")
        return o
    e += sprinkle(zipper(ksoft(0), ksoft(1)), p2_dma_prologue(range(4, 8)), start=4)
    s23 = zipper(ksoft(2), ksoft(3))
    mid = [["s_waitcnt lgkmcnt(0)"] + kreads(0) + kreads(1), ["s_waitcnt lgkmcnt(0)"]] + kmfma(0) + kmfma(1)
    e += sprinkle(s23, mid, start=30, end=len(s23) - 40)
    qpre = flat([corr_qk(Q, vCQ, p) for p in range(4)]) + frags_qk(Q, TB) + frags_qk(Q + 16, 218) + frags_qk(Q + 32, TB) + frags_qk(Q + 48, 218)
    mid = [["s_waitcnt lgkmcnt(0)"] + kreads(2) + kreads(3), ["s_waitcnt lgkmcnt(0)"]] + kmfma(2) + kmfma(3)
    e += sprinkle(qpre, mid, start=OPT.get("qs", 12), end=len(qpre) - 8)
    e += stamp(6)
    XR = 131072; X2 = XR + 4 * 4352
    t = 226
    e += [f"v_lshlrev_b32 v{vLin}, 4, v{vL}", f"s_mul_i32 s3, s{sW}, 4352", f"s_add_u32 s3, s3, {XR}", f"v_add_u32 v{t}, s3, v{vLin}",
          f"v_lshrrev_b32 v{vZo}, 5, v{vL}", f"v_lshlrev_b32 v{vZo}, 6, v{vZo}", f"v_add_u32 v{t+2}, s3, v{vZo}",
          f"s_xor_b32 s3, s{sW}, 2", "s_mul_i32 s3, s3, 4352", f"s_add_u32 s3, s3, {XR}", f"v_add_u32 v{t+1}, s3, v{vLin}", f"v_add_u32 v{t+3}, s3, v{vZo}",
          f"s_lshl_b32 s{sE}, s{sIDX}, 2", f"s_lshl_b32 s3, s{sNH}, 1", f"s_add_u32 s{sE}, s{sE}, s3", f"s_add_u32 s{sE}, s{sE}, s{sTH}",
          f"s_lshl_b32 s{sE+1}, s{sE}, 3", f"s_add_u32 s{sE+1}, s{sE+1}, s{sMT}", f"s_lshl_b32 s{sE+2}, s{sE+1}, 11", f"s_lshl_b32 s{sE+3}, s{sE+1}, 7",
          f"v_bfe_u32 v{t+4}, v{vL}, 2, 3", f"v_lshl_add_u32 v{vZo}, v{t+4}, 24, v{vZo}", f"v_and_b32 v{t+4}, 3, v{vL}", f"v_lshl_add_u32 v{vZo}, v{t+4}, 4, v{vZo}",
          f"s_cmp_eq_u32 s{sTH}, 0", "s_cbranch_scc1 L1q_th0"]
    for th in (1, 0):
        if th == 0:
            e += ["L1q_th0:", "s_nop 7"]
        e += [f"ds_write_b128 v{t}, {ar(KVa[1-th]+4*i,4)} offset:{i*1024}" for i in range(4)]
        e += [f"ds_write_b128 v{t+2}, {ar(Za[1-th]+4*i,4)} offset:{4096+i*16}" for i in range(4)]
        e += [f"v_accvgpr_read_b32 v{K+i}, a{KVa[th]+i}" for i in range(16)] + [f"v_accvgpr_read_b32 v{K+16+i}, a{Za[th]+i}" for i in range(16)]
        if th == 1:
            e += ["s_branch L1q_thj"]
    e += ["L1q_thj:", "s_waitcnt lgkmcnt(0)", "s_barrier"]
    e += [f"ds_read_b128 {vr(K+32+4*i,4)}, v{t+1} offset:{i*1024}" for i in range(4)] + [f"ds_read_b128 {vr(K+48+4*i,4)}, v{t+3} offset:{4096+i*16}" for i in range(4)]
    vAt, vPo, vDat = 236, 237, 252
    e += [f"s_lshl_b32 s3, s{sE}, 7", f"v_lshlrev_b32 v{vAt}, 20, v{vL}", f"v_add_u32 v{vAt}, s3, v{vAt}", f"v_mov_b32 v{vPo}, s3", f"v_mov_b32 v{vDat}, 1"]
    for i in range(8):
        e += [f"s_waitcnt lgkmcnt({7-i})", f"v_pk_add_f32 {vr(K+4*i,2)}, {vr(K+4*i,2)}, {vr(K+32+4*i,2)}", f"v_pk_add_f32 {vr(K+4*i+2,2)}, {vr(K+4*i+2,2)}, {vr(K+32+4*i+2,2)}"]
        if i < 4:
            e += [f"v_cvt_pk_bf16_f32 v{K+2*i}, v{K+4*i}, v{K+4*i+1}", f"v_cvt_pk_bf16_f32 v{K+2*i+1}, v{K+4*i+2}, v{K+4*i+3}"]
            if i & 1:
                e.append(f"buffer_store_dwordx4 {vr(K+2*i-2,4)}, v{vLin}, s[{sU}:{sU+3}], s{sE+2} offen offset:{(i>>1)*1024} sc1")
        elif i > 4:
            e += [f"v_cmp_eq_u32 vcc, {i-4}, v{t+4}"] + [f"v_cndmask_b32 v{K+16+j}, v{K+16+j}, v{K+4*i+j}, vcc" for j in range(4)]
    e.append(f"buffer_store_dwordx4 {vr(K+16,4)}, v{vZo}, s[{sSM}:{sSM+3}], s{sE+3} offen sc1")
    E0 = list(range(192, 208)); E1 = list(range(208, 224))
    def qsoft(p):
        P = Q + 16 * p
        return softmax_pair(P, E0 if p % 2 == 0 else E1, 224 if p % 2 == 0 else 230, vRr + p, P, P + 8, False)
    q01 = zipper(qsoft(0), qsoft(1))
    k = int(len(q01) * OPT.get("atpos", 55) / 100)
    e += q01[:k] + ["s_waitcnt vmcnt(0)", f"buffer_atomic_add v{vDat}, v{vAt}, s[{sFL}:{sFL+3}], 0 offen sc1"] + stamp(7) + sprinkle(q01[k:], p2_dma_prologue(range(4)))
    q23 = zipper(qsoft(2), qsoft(3))
    k = int(len(q23) * OPT.get("popos", 30) / 100)
    e += q23[:k] + poll("L1q_poll", vDat, vPo, sFL, 8) + stamp(8)
    vZ = 240
    g = [f"s_lshl_b32 s{sE+2}, s{sE}, 14", f"s_lshl_b32 s{sE+3}, s{sE}, 10",
         f"buffer_load_dwordx4 {vr(vZ,4)}, v{vLin}, s[{sSM}:{sSM+3}], s{sE+3} offen sc1"]
    for m in range(8):
        g += [f"buffer_load_dwordx4 {vr(V+8*m+4*i,4)}, v{vLin}, s[{sU}:{sU+3}], s{sE+2} offen offset:{(m&1)*2048+i*1024} sc1" for i in range(2)]
        if m & 1 and m < 7:
            g.append(f"s_add_u32 s{sE+2}, s{sE+2}, 4096")
    e += sprinkle(q23[k:], g, start=0, end=int((len(q23) - k) * 0.4))
    t = 224; T = 192
    e += [f"s_mul_i32 s3, s{sNH}, 4352", f"s_add_u32 s3, s3, {X2}", f"s_lshl_b32 s{sE+1}, s{sTH}, 11", f"s_add_u32 s{sE+1}, s{sE+1}, s3",
          f"v_add_u32 v{t}, s{sE+1}, v{vLin}", f"v_add_u32 v{t+1}, s3, v{vLin}",
          f"s_lshl_b32 s{sE+1}, s{sTH}, 6", f"s_add_u32 s{sE+1}, s{sE+1}, s3", f"s_add_u32 s{sE+1}, s{sE+1}, 4096",
          f"v_and_b32 v{t+2}, 7, v{vL}", f"v_lshlrev_b32 v{t+2}, 3, v{t+2}", f"v_add_u32 v{t+2}, s{sE+1}, v{t+2}",
          f"v_lshrrev_b32 v{t+3}, 5, v{vL}", f"v_lshlrev_b32 v{t+3}, 5, v{t+3}", "s_add_u32 s3, s3, 4096", f"v_add_u32 v{t+3}, s3, v{t+3}",
          "s_mov_b32 s46, 0x3f80", "s_mov_b32 s47, 0x3f800000"]
    e += ["s_waitcnt vmcnt(16)"] + [f"v_add_f32_dpp v{vZ+i}, v{vZ+i}, v{vZ+i} row_ror:8 row_mask:0xf bank_mask:0xf" for i in range(4)]
    for pl in ("v_permlane16_swap_b32", "v_permlane32_swap_b32"):
        e += [f"v_mov_b32 v{T+i}, v{vZ+i}" for i in range(4)] + [f"{pl} v{vZ+i}, v{T+i}" for i in range(4)] + [f"v_add_f32 v{vZ+i}, v{vZ+i}, v{T+i}" for i in range(4)]
    e += [f"v_cvt_pk_bf16_f32 v{vZ}, v{vZ}, v{vZ+1}", f"v_cvt_pk_bf16_f32 v{vZ+1}, v{vZ+2}, v{vZ+3}", f"ds_write_b64 v{t+2}, {vr(vZ,2)}"]
    e += ["s_waitcnt vmcnt(14)"] + flat([[f"v_lshlrev_b32 v{K+2*i}, 16, v{V+i}", f"v_and_b32 v{K+2*i+1}, 0xffff0000, v{V+i}"] for i in range(8)])
    for m in range(1, 8):
        e += [f"s_waitcnt vmcnt({14-2*m})"] + flat([[f"v_dot2c_f32_bf16 v{K+2*i}, s46, v{V+8*m+i}", f"v_dot2c_f32_bf16 v{K+2*i+1}, s47, v{V+8*m+i}"] for i in range(8)])
    e += [f"s_lshr_b32 s3, s{sMT2}, 1", "s_lshl_b32 s3, s3, 7", f"s_add_u32 s3, s3, {FL_H}", f"v_mov_b32 v{vFo}, s3"]
    e += [f"v_cvt_pk_bf16_f32 v{T+i}, v{K+2*i}, v{K+2*i+1}" for i in range(8)]
    e += [f"ds_write_b128 v{t}, {vr(T,4)}", f"ds_write_b128 v{t}, {vr(T+4,4)} offset:1024",
          f"buffer_load_dword v{vFv}, v{vFo}, s[{sFL}:{sFL+3}], 0 offen sc1", "s_waitcnt lgkmcnt(0)", "s_barrier"]
    for sign in range(2):
        for s in range(2):
            e += [f"ds_read_b128 {ar(sign*8+s*4,4)}, v{t+1} offset:{sign*2048+s*1024}", f"ds_read_b128 {ar(16+sign*8+s*4,4)}, v{t+3} offset:{sign*64+s*16}"]
    e += stamp(9)
    t = 228
    e += [f"v_bfe_u32 v{t}, v{vL}, 4, 1", f"s_mov_b32 s3, {HO_TB}", f"v_mul_lo_u32 v{t}, v{t}, s3",
          f"v_lshrrev_b32 v{t+1}, 5, v{vL}", f"v_lshl_add_u32 v{t}, v{t+1}, 8, v{t}",
          f"v_and_b32 v{t+1}, 15, v{vL}", f"v_lshl_add_u32 v{t}, v{t+1}, 4, v{t}",
          f"s_lshl_b32 s3, s{sMT}, 4", f"s_lshl_b32 s{sE+1}, s{sTH}, 3", f"s_add_u32 s3, s3, s{sE+1}", f"s_mul_i32 s3, s3, {HO_TB}",
          f"s_lshl_b32 s{sE+1}, s{sIDX}, 1", f"s_add_u32 s{sE+1}, s{sE+1}, s{sNH}", f"s_add_u32 s{sE+1}, s{sE+1}, 112", f"s_lshl_b32 s{sE+1}, s{sE+1}, 10",
          f"s_add_u32 s{sE+1}, s{sE+1}, s3", f"s_mov_b32 s{sE+2}, 0x358637bd"]
    e += ["s_waitcnt lgkmcnt(0)"]
    def nd(p):
        N = K + 32 * p; D = N + 16; o = []; k = 0
        for sign in range(2):
            for s in range(2):
                B = vr(Q + 16 * p + sign * 8 + s * 4, 4)
                o.append(f"v_mfma_f32_32x32x16_bf16 {vr(N,16)}, {ar(sign*8+s*4,4)}, {B}, {'0' if k == 0 else vr(N,16)}")
                o.append(f"v_mfma_f32_32x32x16_bf16 {vr(D,16)}, {ar(16+sign*8+s*4,4)}, {B}, {'0' if k == 0 else vr(D,16)}")
                k += 1
        return o
    def fin(p):
        N = K + 32 * p; D = N + 16
        o = [f"v_add_f32 v{D}, s{sE+2}, v{D}", f"v_rcp_f32 v{D}, v{D}", f"v_mul_f32 v{D}, {hex(NLN2)}, v{D}"]
        o += [f"v_pk_mul_f32 {vr(N+i,2)}, {vr(N+i,2)}, {vr(D,2)} op_sel_hi:[1,0]" for i in range(0, 16, 2)]
        o += [f"v_cvt_pk_bf16_f32 v{N+i}, v{N+2*i}, v{N+2*i+1}" for i in range(8)]
        o += [f"buffer_store_dwordx4 {vr(N+4*s,4)}, v{t}, s[{sHO}:{sHO+3}], s{sE+1} offen offset:{s*512} sc1" for s in range(2)]
        return o + [f"s_add_u32 s{sE+1}, s{sE+1}, {2*HO_TB}"]
    e += nd(0) + nd(1) + zipper(fin(0), nd(2)) + zipper(fin(1), nd(3)) + fin(2) + [f"v_mov_b32 v{i}, 0" for i in range(32)] + fin(3) + [f"v_mov_b32 v{i}, 0" for i in range(32, 64)]
    a(e)
    a(stamp(4))
    a("s_waitcnt vmcnt(8)")
    a(stamp(5))
    return ool

def phase2(a):
    KA = OPT["ka"]; nb = 112 - KA
    NITA, NITB = KA // 8, nb // 8
    sXs, sO, sPT = sU, sV, sHO
    vR1, vOs, vXo, vXg, vEw, vEr = 224, 228, 232, 233, 234, 248
    T = 252
    OUT, S, XR, P = 0, 64, 128, 160
    WF = 64
    a.label("L_P2")
    a(f"v_bfe_u32 v{T}, v{vL}, 2, 3", f"v_lshlrev_b32 v{vR1}, 7, v{T}", f"v_lshrrev_b32 v{T}, 1, v{T}", f"v_lshl_add_u32 v{vR1}, v{T}, 5, v{vR1}",
      f"v_and_b32 v{T}, 3, v{vL}", f"v_lshl_add_u32 v{vR1}, v{T}, 3, v{vR1}",
      f"v_lshrrev_b32 v{T}, 5, v{vL}", f"v_lshl_add_u32 v{vR1}, v{T}, 12, v{vR1}")
    for q in range(1, 4):
        a(f"v_xor_b32 v{vR1+q}, {q*32}, v{vR1}")
    def xload(S_):
        s = S_ & 7
        return [("vm", f"buffer_load_dwordx4 {ar(s*8+tb*4,4)}, v{vXo}, s[{sA}:{sA+3}], s{sX0+tb} offen offset:{(s&3)*1024}{' sc1' if OPT.get('xsc1', 1) else ''}", ("X", S_, tb)) for tb in range(2)]
    def xadv():
        return [f"s_add_u32 s{sX0}, s{sX0}, 4096", f"s_add_u32 s{sX1}, s{sX1}, 4096"]
    def dma(t, i):
        return ("vm", p2_dma(i), ("D", t))
    def reads(S_, typ):
        t, j = (S_ >> 1) & 3, S_ & 1
        st = WF + j * 32
        R = vR1
        return [f"ds_read_b64_tr_b16 {ar(st+q8*4+jj*2,2)}, v{R+(q8&3)} offset:{t*16384+j*8192+jj*2048+(q8>>2)*1024}"
                for q8 in range(8) for jj in range(2)]
    a(reads(0, 1))
    a(f"v_lshlrev_b32 v{vXo}, 4, v{vL}", f"s_lshr_b32 s3, s{sMT2}, 1", "s_lshl_b32 s3, s3, 7", f"s_add_u32 s{sE}, s3, {FL_O}", f"s_add_u32 s3, s3, {FL_H}", f"v_mov_b32 v{vFo}, s3")
    a(srd(sA, sP + 18, WS_HO, HO_SIZE))
    a(f"s_lshl_b32 s3, s{sMT2}, 3", f"s_lshl_b32 s{sE+1}, s{sW}, 1", f"s_add_u32 s3, s3, s{sE+1}", f"s_mul_i32 s{sX0}, s3, {HO_TB}",
      f"s_mul_i32 s{sE+1}, s{sTY}, {KA*1024}", f"s_add_u32 s{sX0}, s{sX0}, s{sE+1}", f"s_add_u32 s{sX1}, s{sX0}, {HO_TB}")
    a(f"v_readfirstlane_b32 s3, v{vFv}", "s_cmp_ge_u32 s3, 16", "s_cbranch_scc1 L2_hpoll_ok")
    a(poll("L2_hpoll", vFv, vFo, sFL, 16))
    a(stamp(10))
    pro = []
    for s in range(8):
        pro += xload(s)
        if (s & 3) == 3: pro += xadv()
    rows = [sE + 1, sE + 2, sE + 3, sE + 4, sE + 5, sE + 6, sE + 7]
    sPo, sFo = 42, 43
    pro += [f"v_mov_b32 v{vFo}, s{sE}", f"s_add_u32 m0, s{sM0}, {7*16384}", f"s_add_u32 s{sSo}, s{sSo}, {7*0x20000}", f"s_mov_b32 s{sCnt}, 0",
            f"s_lshl_b32 s3, s{sMT}, 7", f"s_add_u32 s3, s3, {FL_O}", f"v_add_u32 v{vOs}, s{sW}, v{vL}", f"v_lshlrev_b32 v{vOs}, 20, v{vOs}",
            f"v_add_u32 v{vOs}, s3, v{vOs}", f"v_mov_b32 v{vOs+1}, 1", f"s_sub_u32 s{sDI}, 0, s{sTY}"]
    pro += srd(sXs, sP + 0, 0, 2048 * 2048) + srd(sO, sP + 14, 0, 2048 * 2048) + srd(sPT, sP + 18, WS_PART, PART_SIZE)
    pro += [f"s_sub_u32 s{sNx}, s{sP+6}, 4096", f"s_subb_u32 s{sNx+1}, s{sP+7}, 0",
            f"s_cmp_eq_u32 s{sTY}, 0", f"s_cselect_b32 s{sLast}, {NITA-1}, {NITB-1}",
            f"s_cselect_b32 s{sNx+2}, 0, {hex(1024*2048+4096)}", f"s_cselect_b32 s44, 0, s{sA+2}", f"s_cselect_b32 s{sChk}, -1, {NITB-1}",
            f"s_sub_u32 s46, s{sLast}, 1",
            f"s_lshl_b32 s3, s{sMT2}, 3", f"s_add_u32 s3, s3, s{sNT2}", f"s_lshl_b32 s{sPo}, s3, 16", f"s_lshl_b32 s47, s{sW}, 14", f"s_add_u32 s{sPo}, s{sPo}, s47",
            f"s_lshl_b32 s{sFo}, s3, 7", f"s_lshl_b32 s47, s{sW}, 2", f"s_add_u32 s{sFo}, s{sFo}, s47", f"s_add_u32 s{sFo}, s{sFo}, {FL_PART}"]
    pro += [f"v_lshrrev_b32 v{T}, 4, v{vL}", f"v_lshlrev_b32 v{vXg}, 11, v{T}", f"v_and_b32 v{P}, 15, v{vL}", f"v_lshl_add_u32 v{vXg}, v{P}, 4, v{vXg}",
            f"s_lshl_b32 s3, s{sNT2}, 8", f"s_lshl_b32 s47, s{sMT2}, 18", "s_add_u32 s3, s3, s47", f"s_lshl_b32 s47, s{sW}, 16", "s_add_u32 s3, s3, s47",
            f"v_add_u32 v{vXg}, s3, v{vXg}",
            f"v_xor_b32 v{P+1}, v{T}, v{P}", f"v_lshlrev_b32 v{vEr}, 8, v{T}", f"v_lshl_add_u32 v{vEr}, v{P+1}, 4, v{vEr}",
            f"s_lshl_b32 s3, s{sW}, 13", "s_add_u32 s3, s3, 0x20000", f"v_add_u32 v{vEr}, s3, v{vEr}",
            f"v_lshrrev_b32 v{T}, 5, v{vL}", f"v_xor_b32 v{T}, v{T}, v{P}", f"v_lshlrev_b32 v{vEw}, 8, v{P}", f"v_lshl_add_u32 v{vEw}, v{T}, 4, v{vEw}",
            f"v_bfe_u32 v{T}, v{vL}, 4, 1", f"v_lshl_add_u32 v{vEw}, v{T}, 3, v{vEw}", f"v_add_u32 v{vEw}, s3, v{vEw}"]
    pro += [f"v_xor_b32 v{vEw+q}, {q*32}, v{vEw}" for q in range(1, 8)] + [f"v_xor_b32 v{vEr+q}, {q*64}, v{vEr}" for q in range(1, 4)]
    pro += [f"s_mov_b32 s{rows[g]}, {(g+1)*8192}" for g in range(7)]
    def step(S_, typ, site, k=None):
        s = S_ & 7; Tt = S_ >> 1; j = S_ & 1
        acc = OUT if typ == 1 else S
        st = WF + j * 32
        m = [f"v_mfma_f32_16x16x32_bf16 {vr(acc+(tb*8+q)*4,4)}, {ar(st+q*4,4)}, {ar(s*8+tb*4,4)}, {'0' if k == 0 and s == 0 else vr(acc+(tb*8+q)*4,4)}"
             for tb in range(2) for q in range(8)]
        fill = {}
        need = [("X", S_, 0), ("X", S_, 1)]
        lastst = (k == 3 and s == 7)
        if j == 1 and not lastst and Tt + 1 >= 7:
            need.append(("D", Tt + 1))
        if k == 3 and s == 0:
            need.append(("F",))
        if k is None and s == 0 and S_ > 0:
            need.append(("O", S_ - 8))
        fill[-1] = [("wait", (site, s), need)]
        if j == 1 and not lastst:
            fill[-1].append("s_barrier")
        if not lastst:
            spread(reads(S_ + 1, typ), [0, 0, 1, 1, 2, 2, 3, 3, 4, 5, 6, 7, 8, 9, 10, 11], fill)
        R = vR1
        if s == 6:
            spread([f"v_xor_b32 v{R+q}, 0x10000, v{R+q}" for q in range(4)], [12, 13, 14, 15], fill)
        if k is None and s == 0:
            spread([[f"s_cmp_eq_u32 s{sCnt}, s{sChk}", "s_cbranch_scc1 L2_chk", "L2_nochk:"],
                    [("vm", f"buffer_load_dword v{vFv}, v{vFo}, s[{sFL}:{sFL+3}], 0 offen sc1", ("O", S_))],
                    [f"s_cmp_eq_u32 s{sCnt}, s{sLast}", f"s_cselect_b32 s{sA+2}, s44, s{sA+2}"]], [4, 5, 6], fill)
        if k is None and s == 3:
            spread([[f"s_cmp_eq_u32 s{sCnt}, s{sDI}", "s_cbranch_scc1 L2_osig", "L2_osig_r:"]], [5], fill)
        dma_on = k is None or k < 2
        if j == 1 and dma_on:
            if s == 1 and k is None:
                spread([[f"s_cmp_eq_u32 s{sCnt}, s46", f"s_cselect_b32 s{sB}, s{sNx}, s{sB}"],
                        [f"s_cselect_b32 s{sB+1}, s{sNx+1}, s{sB+1}", f"s_cselect_b32 s{sB+2}, s{sNx+2}, s{sB+2}"],
                        [f"s_cselect_b32 s{sSo}, 0, s{sSo}"]], [4, 5, 6], fill)
            spread([f"s_add_u32 m0, s{sM0}, {(Tt&3)*16384}", dma(Tt + 8, 0), dma(Tt + 8, 1)], [7, 10, 13], fill)
            if s == 7:
                spread([f"s_xor_b32 s{sM0}, s{sM0}, 0x10000"], [9], fill)
        if j == 0 and (dma_on or (k == 2 and s == 0)):
            spread([dma(Tt + 7, 2), dma(Tt + 7, 3), f"s_add_u32 s{sSo}, s{sSo}, 0x20000"], [10, 13, 14], fill)
        if k == 2 and s == 0:
            spread([f"v_mov_b32 v{vFo}, s{sFo}", ("vm", f"buffer_load_dword v{vFv}, v{vFo}, s[{sFL}:{sFL+3}], 0 offen sc1", ("F",))], [4, 6], fill)
        if k != 3:
            spread(xload(S_ + 8), [8, 15], fill)
            if (s & 3) == 3:
                fill[15].extend(xadv())
        if k == 2 and s >= 1:
            ids = [s - 1] if s < 7 else [6, 7]
            spread([("vm", f"buffer_load_dwordx4 {vr(XR+4*i,4)}, v{vXg}, s[{sXs}:{sXs+3}], {'0' if i == 0 else 's%d' % rows[i-1]} offen", ("x",)) for i in ids], [11, 13], fill)
        if k == 3 and s == 0:
            spread([[f"v_readfirstlane_b32 s3, v{vFv}", "s_nop 0", "s_cmp_lg_u32 s3, 0", "s_cbranch_scc1 L2_ppoll_ok"] + poll("L2_ppoll", vFv, vFo, sFL, 1)], [4], fill)
        if k == 3 and s < 4:
            spread([("vm", f"buffer_load_dwordx4 {vr(P+16*s+4*i,4)}, v{vXo}, s[{sPT}:{sPT+3}], s{sPo} offen offset:{i*1024} sc1", ("P",)) for i in range(4)] +
                   [f"s_add_u32 s{sPo}, s{sPo}, 4096"], [6, 9, 12, 14, 15], fill)
        return weave(m, fill)
    trA = list(pro); trB = list(pro)
    for S_ in range(KA): trA += step(S_, 1, "h")
    for S_ in range(nb): trB += step(S_, 1, "h")
    for S_ in range(nb, nb + 32): trB += step(S_, 2, ("o", (S_ - nb) // 8), (S_ - nb) // 8)
    cnt = resolve([[("vm", "", ("D", 7))] + trA, [("vm", "", ("D", 7))] + trB])
    a(render(pro, cnt))
    a(stamp(11))
    a(".p2align 6")
    a.label("L2_loop")
    for s in range(8, 16):
        a(render(step(s, 1, "h"), cnt))
    a(f"s_add_u32 s{sCnt}, s{sCnt}, 1", f"s_cmp_le_u32 s{sCnt}, s{sLast}", "s_cbranch_scc1 L2_loop")
    a(stamp(12))
    a(f"s_cmp_eq_u32 s{sTY}, 1", "s_cbranch_scc1 L2_B", "s_nop 7")
    a.c("---- role A: publish the partial tile")
    for i in range(16):
        a(f"buffer_store_dwordx4 {vr(OUT+4*i,4)}, v{vXo}, s[{sPT}:{sPT+3}], s{sPo} offen offset:{(i&3)*1024} sc1")
        if (i & 3) == 3 and i < 15:
            a(f"s_add_u32 s{sPo}, s{sPo}, 4096")
    a(f"v_lshlrev_b32 v{vFo}, 20, v{vL}", f"v_add_u32 v{vFo}, s{sFo}, v{vFo}", f"v_mov_b32 v{vFv}, 1", "s_waitcnt vmcnt(0)")
    a(f"buffer_atomic_add v{vFv}, v{vFo}, s[{sFL}:{sFL+3}], 0 offen sc1")
    a(stamp(14))
    a("s_endpgm")
    a("L2_chk:", f"v_readfirstlane_b32 s3, v{vFv}", "s_nop 0", "s_cmp_ge_u32 s3, 16", "s_cbranch_scc1 L2_nochk", poll("L2_opoll", vFv, vFo, sFL, 16), "s_branch L2_nochk")
    a("L2_osig:", f"buffer_atomic_add v{vOs+1}, v{vOs}, s[{sFL}:{sFL+3}], 0 offen sc1", "s_branch L2_osig_r")
    a.label("L2_B")
    for S_ in range(nb, nb + 32):
        a(render(step(S_, 2, ("o", (S_ - nb) // 8), (S_ - nb) // 8), cnt))
    a(stamp(13))
    a.c("---- role B epilogue: out = x + S' * acc / (1 + 2^acc)")
    e = ["s_mov_b32 s46, 0xffff0000"]
    E = P
    for k in range(4):
        e += [f"s_waitcnt vmcnt({12-4*k})"] + [f"v_pk_add_f32 {vr(OUT+i,2)}, {vr(OUT+i,2)}, {vr(P+i,2)}" for i in range(16 * k, 16 * k + 16, 2)]
        e += [f"v_exp_f32 v{E+i}, v{OUT+i}" for i in range(16 * k, 16 * k + 16)]
        e += [f"v_pk_mul_f32 {vr(OUT+i,2)}, {vr(OUT+i,2)}, {vr(S+i,2)}" for i in range(16 * k, 16 * k + 16, 2)]
        e += [f"v_pk_add_f32 {vr(E+i,2)}, {vr(E+i,2)}, 1.0 op_sel_hi:[1,0]" for i in range(16 * k, 16 * k + 16, 2)]
        e += [f"v_rcp_f32 v{E+i}, v{E+i}" for i in range(16 * k, 16 * k + 16)]
        for p in range(4 * k, 4 * k + 4):
            e += [f"v_pk_mul_f32 {vr(E+4*p,2)}, {vr(E+4*p,2)}, {vr(OUT+4*p,2)}", f"v_pk_mul_f32 {vr(E+4*p+2,2)}, {vr(E+4*p+2,2)}, {vr(OUT+4*p+2,2)}",
                  f"v_cvt_pk_bf16_f32 v{E+4*p}, v{E+4*p}, v{E+4*p+1}", f"v_cvt_pk_bf16_f32 v{E+4*p+1}, v{E+4*p+2}, v{E+4*p+3}",
                  f"ds_write_b64 v{vEw+(p&7)}, {vr(E+4*p,2)} offset:{(p>>3)*4096}"]
    for i in range(32):
        e += [f"v_lshlrev_b32 v{OUT+2*i}, 16, v{XR+i}", f"v_and_b32 v{OUT+2*i+1}, s46, v{XR+i}"]
        if i == 3:
            e += ["s_waitcnt lgkmcnt(0)"] + [f"ds_read_b128 {vr(S+4*k,4)}, v{vEr+(k&3)} offset:{k*1024}" for k in range(8)]
    for i in range(8):
        e += [f"s_waitcnt lgkmcnt({7-i})"]
        for k in range(4):
            e += [f"v_lshlrev_b32 v{E+2*k}, 16, v{S+4*i+k}", f"v_and_b32 v{E+2*k+1}, s46, v{S+4*i+k}"]
        e += [f"v_pk_add_f32 {vr(OUT+2*(4*i+k),2)}, {vr(OUT+2*(4*i+k),2)}, {vr(E+2*k,2)}" for k in range(4)]
        e += [f"v_cvt_pk_bf16_f32 v{XR+4*i+k}, v{OUT+2*(4*i+k)}, v{OUT+2*(4*i+k)+1}" for k in range(4)]
        e += [f"buffer_store_dwordx4 {vr(XR+4*i,4)}, v{vXg}, s[{sO}:{sO+3}], {'0' if i == 0 else 's%d' % rows[i-1]} offen"]
    a(e)
    a(stamp(14))
    a("s_endpgm")

def kernel():
    a = Asm()
    a.label(KNAME)
    a("s_cmp_ge_u32 s2, 256", "s_cbranch_scc1 L_end")
    a(f"s_load_dwordx16 s[{sP}:{sP+15}], s[0:1], 0", f"s_load_dwordx4 s[{sP+16}:{sP+19}], s[0:1], 64")
    a(f"v_and_b32 v{vL}, 63, v0", "v_lshrrev_b32 v1, 6, v0", f"v_readfirstlane_b32 s{sW}, v1")
    if OPT["ctouch"]:
        a("s_getpc_b64 s[4:5]", "L_pc:", f"s_sub_u32 s4, s4, L_pc-{KNAME}", "s_subb_u32 s5, s5, 0",
          "s_lshr_b32 s3, s2, 3", "s_lshl_b32 s3, s3, 2", f"s_add_u32 s3, s3, s{sW}", "s_and_b32 s3, s3, 15", "s_lshl_b32 s3, s3, 13",
          f"v_lshlrev_b32 v1, 7, v{vL}", "v_add_u32 v1, s3, v1", f"v_min_u32 v1, L_end-{KNAME}, v1", f"global_load_dword v{vPF+1}, v1, s[4:5]")
    a("s_and_b32 s3, s2, 1", f"s_lshl_b32 s{sMT}, s3, 2", "s_bfe_u32 s3, s2, 0x20003", f"s_add_u32 s{sMT}, s{sMT}, s3",
      "s_bfe_u32 s3, s2, 0x20001", f"s_lshl_b32 s{sIDX}, s3, 2", "s_bfe_u32 s3, s2, 0x20005", f"s_add_u32 s{sIDX}, s{sIDX}, s3",
      f"s_lshr_b32 s{sTH}, s{sW}, 1", f"s_and_b32 s{sNH}, s{sW}, 1", f"s_bfe_u32 s{sTY}, s2, 0x10007")
    a("s_and_b32 s3, s2, 3", f"s_lshl_b32 s{sMT2}, s3, 2", "s_bfe_u32 s3, s2, 0x20003", f"s_add_u32 s{sMT2}, s{sMT2}, s3",
      "s_bfe_u32 s3, s2, 0x10002", f"s_lshl_b32 s{sNT2}, s3, 2", "s_bfe_u32 s3, s2, 0x20005", f"s_add_u32 s{sNT2}, s{sNT2}, s3")
    a(f"s_lshl_b32 s3, s{sTY}, 4", f"s_add_u32 s3, s3, s{sIDX}", "s_lshl_b32 s3, s3, 14", f"s_lshl_b32 s4, s{sW}, 12", "s_add_u32 s3, s3, s4",
      f"v_lshl_add_u32 v199, v{vL}, 4, s3")
    a(f"v_lshrrev_b32 v{vT}, 3, v{vL}", f"s_lshl_b32 s3, s{sW}, 6", f"v_add_u32 v{vT}, s3, v{vT}", f"v_lshlrev_b32 v{vT}, 11, v{vT}",
      f"v_lshrrev_b32 v{vT+1}, 4, v{vL}", f"v_and_b32 v{vT+2}, 7, v{vL}", f"v_xor_b32 v{vT+1}, v{vT+1}, v{vT+2}",
      f"v_lshl_add_u32 v{vAoff}, v{vT+1}, 4, v{vT}", f"v_xor_b32 v{vT+3}, 64, v{vAoff}")
    for i in range(1, 8):
        a(f"v_add_u32 v{vAoff+i}, {i*16384-(i&3)*1024}, v{vAoff if i % 2 == 0 else vT+3}")
    a(f"v_and_b32 v{vT}, 15, v{vL}", f"s_lshl_b32 s3, s{sTH}, 7", f"v_add_u32 v{vT}, s3, v{vT}", f"v_lshlrev_b32 v{vT}, 7, v{vT}",
      f"v_lshrrev_b32 v{vT+1}, 4, v{vL}", f"v_bfe_u32 v{vT+2}, v{vL}, 1, 3", f"v_xor_b32 v{vT+1}, v{vT+1}, v{vT+2}",
      f"v_lshl_add_u32 v{vXa}, v{vT+1}, 4, v{vT}", f"v_xor_b32 v{vXa+1}, 64, v{vXa}")
    a("s_waitcnt lgkmcnt(0)")
    a(f"s_lshl_b32 s3, s{sMT}, 19")
    a(srd(sA, sP + 0, "s3", 256 * 2048))
    a(srd(sHO, sP + 18, WS_HO, HO_SIZE), srd(sFL, sP + 18, WS_FLAG, FLAG_SIZE), srd(sSM, sP + 18, WS_SM, SM_SIZE), srd(sDBG, sP + 16, 0, 256))
    if OPT["stamp"]:
        a(srd(84, sP + 18, WS_STAMP + 0x40000, 0x60000))
        a("s_lshl_b32 s3, s2, 2", f"s_add_u32 s3, s3, s{sW}", "s_lshl_b32 s3, s3, 7", "v_mov_b32 v253, s3")
        a(stamp(0))
    a(f"s_cmp_eq_u32 s{sTY}, 1", "s_cbranch_scc1 L1_ffn")
    ool = role_qkv(a)
    phase2(a)
    a(ool)
    role_ffn(a)
    a.label("L_end")
    a("s_endpgm")
    return a

def pre_kernel(mask):
    a = Asm()
    a.label("pre_kernel")
    a("s_cmp_ge_u32 s2, 256", "s_cbranch_scc1 pre_end")
    regs = []
    if mask & 2: regs += [(0, 0, 1 << 22), (1, 0, 1024 * 6144), (5, 0, 1024 * 7168)]
    if mask & 4: regs += [(6, 0, 3584 * 2048), (3, 0, 1 << 21)]
    if mask & 8: regs += [(9, WS_HO, HO_SIZE), (9, WS_KV, 0x400000), (9, WS_PART, PART_SIZE), (7, 0, 1 << 22)]
    for pi, off, size in regs:
        a(f"s_load_dwordx2 s[4:5], s[0:1], {8*pi}", "s_waitcnt lgkmcnt(0)", srd(8, 4, off, size))
        per = size // 256
        sh = 7 if not (mask & 16) else 12
        a(f"s_mul_i32 s3, s2, {per}", f"v_lshlrev_b32 v1, {sh}, v0", "v_add_u32 v1, s3, v1")
        for i in range(-(-per // (256 << sh))):
            a("buffer_load_dword v4, v1, s[8:11], 0 offen", f"v_add_u32 v1, {hex(256 << sh)}, v1")
    if mask & 1:
        a("s_getpc_b64 s[4:5]", "pre_pc:", f"s_sub_u32 s4, s4, pre_pc-{KNAME}", "s_subb_u32 s5, s5, 0", "v_lshlrev_b32 v1, 7, v0")
        for i in range(3):
            a(f"v_min_u32 v2, L_end-{KNAME}, v1", "global_load_dword v4, v2, s[4:5]", "v_add_u32 v1, 0x8000, v1")
    a("s_waitcnt vmcnt(0)")
    a.label("pre_end")
    a("s_endpgm")
    return a

def build():
    a = kernel()
    a.lines = autonop(a.lines)
    bad = check_hazards(a.lines)
    for p in bad:
        print("HAZARD", p, file=sys.stderr)
    out = ["; generated by gen/gen3.py: one persistent kernel, 256 workgroups (one per CU)",
           f"; @launch grid=(256,1,1) block=(256,1,1) lds={LDS_SIZE}",
           '.amdgcn_target "amdgcn-amd-amdhsa--gfx950"', ".text", f".globl {KNAME}", ".p2align 8", f".type {KNAME},@function", a.text(),
           '.section .rodata,"a"', ".p2align 6", f""".amdhsa_kernel {KNAME}
  .amdhsa_next_free_vgpr 480
  .amdhsa_next_free_sgpr 102
  .amdhsa_accum_offset 256
  .amdhsa_group_segment_fixed_size 0
  .amdhsa_kernarg_size 80
  .amdhsa_user_sgpr_count 2
  .amdhsa_user_sgpr_kernarg_segment_ptr 1
  .amdhsa_system_sgpr_workgroup_id_x 1
  .amdhsa_float_denorm_mode_32 3
.end_amdhsa_kernel
"""]
    if "pre" in OPT:
        out[1] = f"; @launch kernel=pre_kernel grid=(256,1,1) block=(256,1,1) lds=0\n; @launch kernel={KNAME} grid=(256,1,1) block=(256,1,1) lds={LDS_SIZE}"
        out[7] += ".globl pre_kernel\n.p2align 8\n.type pre_kernel,@function\n" + pre_kernel(OPT["pre"]).text()
        out.append(".p2align 6\n" + out[-1].replace(KNAME, "pre_kernel").replace("vgpr 480", "vgpr 64").replace("offset 256", "offset 64"))
    return "\n".join(out), len(bad)

if __name__ == "__main__":
    dst = f"cdna_kernels/{NAME}.s"
    for arg in sys.argv[1:]:
        k, v = arg.split("=")
        if k == "out": dst = v
        else: OPT[k] = int(v)
    txt, bad = build()
    open(dst, "w").write(txt)
    print("wrote", dst, len(txt), "bytes; hazards:", bad)
```

```python
import sys, os
sys.path.insert(0, os.path.dirname(os.path.abspath(__file__)))
from asmlib import *

NAME = "recurrent_scan__linear_kernel_hedgehog__dense_activation_silu__prompt"
KNAME = NAME + "_kernel"
WS_HO = 0x400000
HO_TB = 144 * 1024
HO_SIZE = 128 * HO_TB
WS_KV = 0x1600000; KV_SIZE = 32 * 2 * 8 * 4096
WS_SM = 0x1800000; SM_SIZE = 0x72000; SM_Z = 0; SM_ST = 0x52000; SM_CS = 0x12000
WS_FLAG = 0x1900000; FLAG_SIZE = 0x8000
FL_KV, FL_PART, FL_H, FL_O = 0, 0x2000, 0x6000, 0x6400
WS_PART = 0x1A00000; PART_SIZE = 128 * 65536
WS_STAMP = 0x3000000
LOG2E, NLOG2E, NLN2 = 0x3fb8aa3b, 0xbfb8aa3b, 0xbf317218
OPT = dict(stamp=0, pf=1, pfl=32, kw2=3, ka=56, rot=1, ctouch=1)

G1_SLOT = 36864; G2 = 3 * G1_SLOT; G2_SLOT = 12288
LDS_TOP = G2 + 4 * G2_SLOT
L_CS, L_M, L_R, L_D = LDS_TOP, LDS_TOP + 1024, LDS_TOP + 2048, LDS_TOP + 3072
LDS_SIZE = 163840
sA, sB, sHO, sU, sV = 8, 12, 16, 20, 24
sW, sTH, sNH = 28, 29, 30
sSoffA, sSoffB, sSoffH, sRd, sWr, sDelta, sM0A, sM0B, sCnt, sMT, sIDX = 31, 32, 33, 34, 35, 36, 37, 38, 39, 40, 41
sT0 = 42; sK = 46
sP = 48
sE = 68
sFL, sPoll, sTY, sMT2, sNT2 = 76, 80, 81, 82, 83
sDI, sDI1 = 88, 89
sSM, sDBG = 92, 96
sST = 100
vAoff, vBoff, vBh, vXa, vWa, vWh = 224, 232, 235, 236, 238, 240
vT = 241
vXb, vWhb = 241, 243
vPF = 250
vL = 255
F0 = 192
SETREG = 60
aWP, aCS, aONE, aX = 120, 156, 128, 160

def srd(s, base, off, size):
    o = []
    if isinstance(off, str):
        o += [f"s_add_u32 s{s}, s{base}, {off}", f"s_addc_u32 s{s+1}, s{base+1}, 0"]
    elif off == 0:
        o += [f"s_mov_b32 s{s}, s{base}", f"s_mov_b32 s{s+1}, s{base+1}"]
    elif off < 0:
        o += [f"s_sub_u32 s{s}, s{base}, {-off}", f"s_subb_u32 s{s+1}, s{base+1}, 0"]
    else:
        o += [f"s_add_u32 s{s}, s{base}, {hex(off)}", f"s_addc_u32 s{s+1}, s{base+1}, 0"]
    return o + [f"s_mov_b32 s{s+2}, {hex(size)}", f"s_mov_b32 s{s+3}, 0x20000"]

def stamp(idx):
    if not OPT["stamp"]:
        return []
    return [f"s_memrealtime s[{sST}:{sST+1}]", "s_waitcnt lgkmcnt(0)", f"v_mov_b32 v254, s{sST}",
            f"buffer_store_dword v254, v253, s[84:87], 0 offen offset:{idx*4}",
            f"s_memtime s[{sST}:{sST+1}]", "s_waitcnt lgkmcnt(0)", f"v_mov_b32 v254, s{sST}",
            f"buffer_store_dword v254, v253, s[84:87], 0 offen offset:{64+idx*4}"]

def resolve(traces):
    cnt = {}
    for dyn in traces:
        issued = []
        for it in dyn:
            if isinstance(it, tuple) and it[0] == "vm":
                issued.append(it[2])
            elif isinstance(it, tuple) and it[0] == "wait":
                idx = [i for i, tg in enumerate(issued) if tg in it[2]]
                for tg in it[2]:
                    assert tg in issued, (it, tg)
                cnt[it[1]] = min(cnt.get(it[1], 63), len(issued) - 1 - max(idx))
    return cnt

def render(items, cnt):
    out = []
    for it in items:
        if isinstance(it, tuple):
            if it[0] == "vm":
                out.append(it[1])
            else:
                lg = " lgkmcnt(0)" if len(it) < 4 else "" if it[3] < 0 else f" lgkmcnt({it[3]})"
                out.append(f"s_waitcnt vmcnt({cnt[it[1]]})" + lg)
        else:
            out.append(it)
    return out

def flat(x):
    o = []
    for it in x:
        o.extend(it if isinstance(it, list) else [it])
    return o

def poll(label, dst, addr, srdreg, target, cmp="lt"):
    return [f"s_mov_b32 s{sPoll}, 0", f"{label}:", f"buffer_load_dword v{dst}, v{addr}, s[{srdreg}:{srdreg+3}], 0 offen sc1", "s_waitcnt vmcnt(0)",
            f"v_readfirstlane_b32 s3, v{dst}", f"s_add_u32 s{sPoll}, s{sPoll}, 1", f"s_cmp_ge_u32 s{sPoll}, 0x40000", f"s_cbranch_scc1 {label}_ok",
            f"s_cmp_lt_u32 s3, {target}", f"s_cbranch_scc1 {label}", f"{label}_ok:"]

def acc_reg(ffn, ng, tb):
    if ffn:
        return ("v", (tb * 6 + ng) * 4) if ng < 6 else ("a", aX + tb * 4)
    return ("v", (ng >> 1) * 64 + tb * 8 + (ng & 1) * 4)

def xrows():
    return [f"buffer_load_dwordx4 {vr(200+8*r+4*h,4)}, v199, s[{sA}:{sA+3}], 0 offen offset:{r*2048+h*1024}" for r in range(2) for h in range(2)]

def place(nm, reads, main, side):
    fill = {}
    nr = len(reads)
    spread(reads, list(range(nr)), fill)
    load = [1 if g < nr else 0 for g in range(nm)]
    k = len(main)
    lo = nr if k <= nm - nr else max(0, nm - k)
    for i, it in enumerate(main):
        g = lo + (i * (nm - lo)) // k
        fill.setdefault(g, []).extend(it if isinstance(it, list) else [it]); load[g] += 2
    k = len(side)
    if k:
        order = sorted(range(1, nm), key=lambda g: (load[g], -g))
        gaps = []
        while len(gaps) < k:
            gaps += order[:k - len(gaps)]
        free = [g for g in range(1, nm) if load[g] == 0]
        if k <= len(free):
            gaps = [free[(i * len(free)) // k] for i in range(k)]
        for it, g in zip(side, sorted(gaps)):
            fill.setdefault(g, []).extend(it if isinstance(it, list) else [it])
    return fill

def phase1(a, ffn, tail_side):
    tag = "F" if ffn else "Q"
    RS = 7168 if ffn else 6144
    ngs = 7 if ffn else 6
    nm = ngs * 8
    PF, PFL = OPT["pf"], OPT["pfl"]
    chunk = PFL * 128
    nown = OPT.get("nown", 0)
    nw2 = -(-(3584 * 2048) // (1024 * chunk))
    def R(k, n): return vr(k[1], n) if k[0] == "v" else ar(k[1], n)
    def mfmas(s):
        base = (s & 1) * SETREG
        out = []
        for ng in range(ngs):
            for tb in range(8):
                X = ar(base + tb * 4, 4); W = ar(base + 32 + ng * 4, 4); D = R(acc_reg(ffn, ng, tb), 4)
                C = "0" if s == 0 else D
                if (not ffn) and ng >= 4:
                    out.append(f"v_mfma_f32_16x16x32_bf16 {D}, {X}, {W}, {C}")
                else:
                    out.append(f"v_mfma_f32_16x16x32_bf16 {D}, {W}, {X}, {C}")
        return out
    def reads(u):
        base = (u & 1) * SETREG
        j = u & 1; slot = u & 3; g1 = (u >> 1) % 3
        xa, wh, o1 = (vXa + j, vWh, g1 * G1_SLOT) if g1 < 2 else (vXb + j, vWhb, 0)
        xs = [f"ds_read_b128 {ar(base+tb*4,4)}, v{xa} offset:{o1+tb*2048}" for tb in range(8)]
        ws = []
        for ng in range(ngs):
            for jj in range(2):
                dst = ar(base + 32 + ng * 4 + jj * 2, 2)
                if ng < 6:
                    ws.append(f"ds_read_b64_tr_b16 {dst}, v{vWa+(ng&1)} offset:{slot*G2_SLOT+(ng>>1)*1024+jj*512}")
                else:
                    ws.append(f"ds_read_b64_tr_b16 {dst}, v{wh} offset:{o1+j*2048+jj*256}")
        return ws[:2] + xs + ws[2:]
    def dma_B(u):
        out = [f"s_add_u32 m0, s{sM0B}, {(u&3)*G2_SLOT}"]
        out += [("vm", f"buffer_load_dwordx4 v{vBoff+b}, s[{sB}:{sB+3}], s{sSoffB} offen offset:{b*1024} lds", ("B", u)) for b in range(3)]
        if u < 31:
            out.append(f"s_mov_b32 s{sSoffB}, s{sT0+3}" if u == 15 else f"s_add_u32 s{sSoffB}, s{sSoffB}, {32*RS}")
        return out
    def dma_A(t, half):
        out = [f"s_add_u32 m0, s{sM0A}, {(t%3)*G1_SLOT+half*4096}"]
        out += [("vm", f"buffer_load_dwordx4 v{vAoff+half*4+i}, s[{sA}:{sA+3}], s{sSoffA} offen offset:{i*1024} lds", ("A", t)) for i in range(4)]
        if half and ffn:
            out += [f"s_add_u32 m0, s{sT0}, {(t%3)*G1_SLOT}", ("vm", f"buffer_load_dwordx4 v{vBh}, s[{sB}:{sB+3}], s{sSoffH} offen lds", ("A", t))]
            if t < 15:
                out.append(f"s_mov_b32 s{sSoffH}, s{sT0+3}" if t == 7 else f"s_add_u32 s{sSoffH}, s{sSoffH}, {64*RS}")
        if half and t < 15:
            out.append(f"s_mov_b32 s{sSoffA}, s{sT0+2}" if t == 7 else f"s_add_u32 s{sSoffA}, s{sSoffA}, 128")
        return out
    def window(u):
        o = dma_B(u + 3) if 0 <= u + 3 < 32 else []
        t = (u >> 1) + 2
        return o + (dma_A(t, u & 1) if t < 16 else [])
    def touch(k):
        o = []
        if 0 < k < nown: o = [f"s_add_u32 s{sV}, s{sV}, {256*chunk}"]
        if k == nown: o = [f"s_mov_b32 s{sU}, s{sP+12}", f"s_mov_b32 s{sU+1}, s{sP+13}", f"s_mov_b32 s{sU+2}, {hex(3584*2048)}", f"s_mov_b32 s{sV}, s{sV+2}"]
        if nown < k < nown + nw2: o = [f"s_add_u32 s{sV}, s{sV}, {1024*chunk}"]
        if k == nown + nw2: o = [f"s_mov_b32 s{sU}, s{sP+6}", f"s_mov_b32 s{sU+1}, s{sP+7}", f"s_mov_b32 s{sU+2}, {hex(1024*2048)}", f"s_mov_b32 s{sV}, s{sV+2}"]
        return o + [("vm", f"buffer_load_dword v{vPF+1}, v{vPF}, s[{sU}:{sU+3}], s{sV} offen", ("pf", k))]
    vTA, vTB = 247, 252
    def xtouch(b):
        return [f"s_xor_b32 s6, s{sT0+2}, {1024 if b < 4 else 0}" , f"s_add_u32 s6, s6, {(b&3)*256}",
                ("vm", f"buffer_load_dword v{vPF+1}, v{vTA}, s[{sA}:{sA+3}], s6 offen", ("xa", b)),
                f"s_add_u32 s6, s{sT0+1 if b < 4 else sT0+3}, {(b&3)*128*RS}",
                ("vm", f"buffer_load_dword v{vPF+1}, v{vTB}, s[{sB}:{sB+3}], s6 offen", ("xb", b))]
    tsteps = [OPT.get("t0", 1) + OPT.get("town", 4) * k for k in range(nown)] + [OPT.get("tw0", 13) + OPT.get("tw", 4) * k for k in range(nw2 + 1)]
    vCSo, vSig, vOne, vSig2, vG, vF = F0, F0 + 1, F0 + 2, F0 + 3, F0 + 4, F0 + 3
    ool = []
    def needs(u):
        return [("B", u)] + ([("A", u >> 1)] if u % 2 == 0 else [])
    def cond(name, val, body):
        ool.extend([f"L1{tag}_{name}:"] + body + [f"s_branch L1{tag}_{name}_r"])
        return [f"s_cmp_eq_u32 s{sDI}, {val}", f"s_cbranch_scc1 L1{tag}_{name}", f"L1{tag}_{name}_r:"]
    RAW = [200, 208]; HI = 216; s0, t0 = 244, 245; M = 246; RES = 248
    def row_stats(r):
        raw = RAW[r]
        def allsum():
            o = [f"v_add_f32 v{s0}, v{s0}, v{t0}"]
            for pat in ("quad_perm:[1,0,3,2]", "quad_perm:[2,3,0,1]", "row_half_mirror", "row_mirror"):
                o.append(f"v_add_f32_dpp v{s0}, v{s0}, v{s0} {pat} row_mask:0xf bank_mask:0xf")
            for pl in ("v_permlane16_swap_b32", "v_permlane32_swap_b32"):
                o += [f"v_mov_b32 v{t0}, v{s0}", f"{pl} v{s0}, v{t0}", f"v_add_f32 v{s0}, v{s0}, v{t0}"]
            return o
        rnd = [f"v_cvt_pk_bf16_f32 v{s0}, v{s0}, v{s0}", f"v_and_b32 v{s0}, 0xffff0000, v{s0}"]
        o = []
        for i in range(8):
            o += [f"v_and_b32 v{HI+i}, 0xffff0000, v{raw+i}", f"v_lshlrev_b32 v{raw+i}, 16, v{raw+i}"]
        o += [f"v_add_f32 v{s0}, v{raw}, v{raw+1}", f"v_add_f32 v{t0}, v{HI}, v{HI+1}"]
        for i in range(2, 8):
            o += [f"v_add_f32 v{s0}, v{s0}, v{raw+i}", f"v_add_f32 v{t0}, v{t0}, v{HI+i}"]
        o += allsum() + [f"v_mul_f32 v{M}, 0x3a800000, v{s0}"]
        for i in range(8):
            o += [f"v_sub_f32 v{raw+i}, v{raw+i}, v{M}", f"v_sub_f32 v{HI+i}, v{HI+i}, v{M}"]
        o += [f"v_mul_f32 v{s0}, v{raw}, v{raw}", f"v_mul_f32 v{t0}, v{HI}, v{HI}"]
        for i in range(1, 8):
            o += [f"v_fmac_f32 v{s0}, v{raw+i}, v{raw+i}", f"v_fmac_f32 v{t0}, v{HI+i}, v{HI+i}"]
        o += allsum() + [f"v_mul_f32 v{s0}, 0x3a800000, v{s0}"] + rnd + [f"v_add_f32 v{s0}, 0x3727c5ac, v{s0}"] + rnd
        return o + [f"v_sqrt_f32 v{s0}, v{s0}", f"v_lshrrev_b32 v{t0}, 3, v{vL}", f"v_cvt_pk_bf16_f32 v{RES+r}, v{M}, v{s0}"]
    stats = row_stats(0) + row_stats(1) + [f"v_lshlrev_b32 v{t0}, 20, v{t0}", f"v_lshl_add_u32 v{t0}, v{vL}, 4, v{t0}",
             ("vm", f"buffer_store_dwordx4 {vr(RES,4)}, v{t0}, s[{sSM}:{sSM+3}], s{sE+6} offen sc1", ("st",))]
    XS = OPT.get("xs", 1); ST0 = OPT.get("st0", 4); ST1 = OPT.get("st1", 10); SG = OPT.get("sg", 2)
    nst = ST1 - ST0 + 1
    def step(s):
        u = s + 1
        front, side, more = [], [], []
        main = window(-1) + window(0) if s == 0 else window(1) + window(2) if s == 1 else window(u) if s < 31 else []
        if PF and s in tsteps:
            t = touch(tsteps.index(s)); side += t[:-1]; main += t[-1:]
        if s < 16:
            base = (s & 1) * SETREG
            side.append(cond(f"d{s}", s >> 2, [f"v_mfma_f32_16x16x32_bf16 {ar(aCS,4)}, {ar(base+32+ng*4,4)}, {ar(aONE+4*ng,4)}, {'0' if s & 3 == 0 and ng == 0 else ar(aCS,4)}" for ng in range(ngs)]))
        if XS <= s < XS + 2:
            main += [("vm", x, ("xr", s - XS)) for x in xrows()[2 * (s - XS):2 * (s - XS) + 2]]
        if s == ST0:
            more.append(("xr", 0))
        if s == ST0 + nst // 2 - 1:
            more.append(("xr", 1))
        if ST0 <= s <= ST1:
            side += stats[((s - ST0) * len(stats)) // nst:((s - ST0 + 1) * len(stats)) // nst]
        def sel(k, sreg):
            return [[f"s_cmp_eq_u32 s{sDI}, {k}", f"s_cselect_b32 s4, {sreg}, s5"]]
        if s in (4, 8, 12, 16):
            main = sel(s // 4 - 1, f"s{sE+7}") + [("vm", f"buffer_store_dwordx4 {ar(aCS,4)}, v{vCSo}, s[{sSM}:{sSM+3}], s4 offen sc1", ("pub", s))] + main
        if s in (6, 10, 14, 18):
            more.append(("pub", s - 2))
            main = sel(s // 4 - 1, "0") + [("vm", f"buffer_atomic_add v{vOne}, v{vSig2}, s[{sDBG}:{sDBG+3}], s4 offen sc1", ("s2", s))] + main
        if ST1 + SG <= s <= ST1 + SG + 3:
            if s == ST1 + SG:
                more.append(("st",))
            main = sel(s - ST1 - SG, "0") + [("vm", f"buffer_atomic_add v{vOne}, v{vSig}, s[{sDBG}:{sDBG+3}], s4 offen sc1", ("s1", s))] + main
        XT = OPT.get("xt", 8)
        if XT and (s + XT) % 4 == 0 and (s + XT) // 4 < 8:
            main += xtouch((s + XT) // 4)
        if s == 23:
            side += [f"v_min_u32 v{vG}, 8, v{vL}", f"s_lshl_b32 s3, s{sTY}, 4", f"s_add_u32 s3, s3, s{sIDX}", "s_add_u32 s3, s3, 24", f"v_lshrrev_b32 v{vG+1}, 3, v{vG}",
                     f"v_mad_u32_u24 v{vG}, v{vG+1}, s3, v{vG}", f"v_mul_u32_u24 v{vG+1}, 24, v{vG+1}", f"v_lshlrev_b32 v{vG}, 2, v{vG}", f"v_sub_u32 v{vG+1}, 32, v{vG+1}"]
        if s == 24:
            main.append(("vm", f"buffer_load_dword v{vF}, v{vG}, s[{sDBG}:{sDBG+3}], 0 offen sc1", ("F",)))
        if s == 27:
            more.append(("F",))
            ool.extend([f"L1{tag}_sp0:", f"s_mov_b32 s{sPoll}, 0", f"L1{tag}_sp:",
                        f"buffer_load_dword v{vF}, v{vG}, s[{sDBG}:{sDBG+3}], 0 offen sc1", "s_waitcnt vmcnt(0)", f"v_cmp_gt_u32 vcc, v{vG+1}, v{vF}",
                        f"s_add_u32 s{sPoll}, s{sPoll}, 1", f"s_cmp_ge_u32 s{sPoll}, 0x40000", f"s_cbranch_scc1 L1{tag}_sok",
                        "s_nop 2", f"s_cbranch_vccz L1{tag}_sok", "s_sleep 8", f"s_branch L1{tag}_sp"])
            front = [[f"v_cmp_gt_u32 vcc, v{vG+1}, v{vF}"], [f"s_lshl_b32 s{sE+6}, s{sW}, 8"], ["s_nop 0"],
                     [f"s_cbranch_vccnz L1{tag}_sp0", f"L1{tag}_sok:"], [f"v_lshl_add_u32 v{vF}, v{vL}, 2, s{sE+6}"]]
            main += [f"v_and_b32 v{vG+8}, 4, v{vF}", f"v_and_b32 v{vG+7}, -8, v{vF}", f"v_lshl_add_u32 v{vG+8}, v{vG+7}, 4, v{vG+8}"]
            main.append(("vm", f"buffer_load_dword v{vG+8}, v{vG+8}, s[{sSM}:{sSM+3}], s{sE+4} offen sc1", ("G",)))
            for m_ in range(8):
                main.append(("vm", f"buffer_load_dword v{vG+m_}, v{vF}, s[{sSM}:{sSM+3}], s{sE+5} offen offset:{(m_&3)*1024} sc1", ("G",)))
                if m_ == 3: main.append(f"s_add_u32 s{sE+5}, s{sE+5}, 4096")
        if s == 29:
            main += [[("wait", "G", [("G",)], -1), f"v_add_f32 v{vG}, v{vG}, v{vG+1}"], f"v_add_f32 v{vG+2}, v{vG+2}, v{vG+3}",
                     f"v_add_f32 v{vG+4}, v{vG+4}, v{vG+5}", f"v_add_f32 v{vG+6}, v{vG+6}, v{vG+7}",
                     f"v_add_f32 v{vG}, v{vG}, v{vG+2}", f"v_add_f32 v{vG+4}, v{vG+4}, v{vG+6}",
                     f"v_and_b32 v{vG+2}, 0xffff0000, v{vG+8}", f"v_add_f32 v{vG}, v{vG}, v{vG+4}",
                     f"v_rcp_f32 v{vG+2}, v{vG+2}", f"v_lshlrev_b32 v{vG+1}, 16, v{vG+8}",
                     f"v_add_u32 v{vF}, {LDS_TOP}, v{vF}", f"ds_write_b32 v{vF}, v{vG}", f"ds_write_b32 v{vF}, v{vG+1} offset:1024",
                     f"ds_write_b32 v{vF}, v{vG+2} offset:2048", f"v_lshrrev_b32 v{vF}, 1, v{vF}",
                     f"v_add_u32 v{vF}, {L_D - LDS_TOP // 2}, v{vF}", f"ds_write_b16_d16_hi v{vF}, v{vG+8}"]
        if s >= 28:
            main += tail_side(s)
        fill = place(nm, front + (reads(u) if s < 31 else []), main, side)
        fill[-1] = ["s_waitcnt lgkmcnt(0)", "s_barrier"] if s == 31 else [("wait", s, needs(u) + more), "s_barrier"]
        if OPT.get("sstamp"):
            fill[-1] += ([f"v_writelane_b32 v254, s{sST}, {s-1}"] if s else []) + [f"s_memtime s[{sST}:{sST+1}]"]
        return weave(mfmas(s), fill)

    a(f"s_lshl_b32 s{sT0}, s{sW}, 10", f"s_add_u32 s{sT0}, s{sT0}, 32768", f"s_lshl_b32 s{sM0A}, s{sW}, 13",
      f"s_mul_i32 s{sM0B}, s{sW}, 3072", f"s_add_u32 s{sM0B}, s{sM0B}, {G2}", f"s_lshr_b32 s3, s{sMT}, 2",
      f"s_lshl_b32 s{sSoffA}, s3, 10", f"s_mul_i32 s{sSoffB}, s3, {512*RS}", f"s_mov_b32 s{sSoffH}, s{sSoffB}",
      f"s_xor_b32 s{sT0+2}, s{sSoffA}, 1024", f"s_mov_b32 s{sT0+1}, s{sSoffB}", "s_mov_b32 s5, 0x40000000", f"s_sub_u32 s{sT0+3}, {512*RS}, s{sSoffB}")
    pro = window(-4) + window(-3) + window(-2)
    if OPT.get("xt", 8):
        pro += [f"s_and_b32 s3, s{sIDX}, 3", f"s_lshl_b32 s4, s{sTY}, 2", "s_add_u32 s3, s3, s4", "s_lshl_b32 s3, s3, 2", f"s_add_u32 s3, s3, s{sW}", "s_lshl_b32 s3, s3, 14",
                f"v_lshrrev_b32 v2, 1, v{vL}", f"v_lshlrev_b32 v{vTA}, 11, v2", f"v_and_b32 v2, 1, v{vL}", f"v_lshl_add_u32 v{vTA}, v2, 7, v{vTA}",
                f"v_lshrrev_b32 v2, 4, v{vL}", f"v_lshl_add_u32 v{vTA}, v2, 28, v{vTA}", f"v_add_u32 v{vTA}, s3, v{vTA}",
                f"s_and_b32 s3, s{sMT}, 3", "s_lshl_b32 s3, s3, 2", f"s_add_u32 s3, s3, s{sW}", f"s_mul_i32 s3, s3, {8*RS}",
                f"v_lshrrev_b32 v2, 2, v{vL}", f"v_mul_u32_u24 v{vTB}, {RS}, v2", f"v_and_b32 v2, 3, v{vL}", f"v_lshl_add_u32 v{vTB}, v2, {7 if ffn else 11}, v{vTB}"]
        if ffn:
            pro += [f"s_mul_i32 s4, s{sIDX}, 448", "s_and_b32 s4, s4, -128", f"v_lshrrev_b32 v2, 5, v{vL}"]
        else:
            pro += [f"s_lshl_b32 s4, s{sIDX}, 7", "v_add_u32 v2, 1, v2", "v_lshrrev_b32 v2, 2, v2", f"v_lshrrev_b32 v3, 5, v{vL}", "v_or_b32 v2, v2, v3"]
        pro += ["s_add_u32 s3, s3, s4", "s_add_u32 s3, s3, 4096", f"v_lshl_add_u32 v{vTB}, v2, 28, v{vTB}", f"v_add_u32 v{vTB}, s3, v{vTB}"]
        for b in range(OPT.get("xt0", 0), (OPT.get("xt", 8) + 3) // 4):
            pro += xtouch(b)
    pro += [f"v_add_u32 v{vXb}, {2*G1_SLOT}, v{vXa}", f"v_add_u32 v{vXb+1}, {2*G1_SLOT}, v{vXa+1}"] + ([f"v_add_u32 v{vWhb}, {2*G1_SLOT}, v{vWh}"] if ffn else [])
    pro += [f"v_mov_b32 v{28+i}, 0" for i in range(4)]
    pro += [f"v_lshrrev_b32 v2, 3, v0", "v_lshlrev_b32 v2, 20, v2", "v_and_b32 v3, 7, v0", "v_lshl_add_u32 v2, v3, 4, v2", "s_lshl_b32 s3, s2, 7",
            ("vm", f"buffer_store_dwordx4 v[28:31], v2, s[{sFL}:{sFL+3}], s3 offen sc1", ("z",))]
    pro += [f"s_lshl_b32 s3, s{sTY}, 4", f"s_add_u32 s3, s3, s{sIDX}", f"s_lshl_b32 s{sE+5}, s3, 13", f"s_add_u32 s{sE+5}, s{sE+5}, {SM_CS}",
            f"s_lshl_b32 s{sE+7}, s{sMT}, 10", f"s_add_u32 s{sE+7}, s{sE+7}, s{sE+5}", f"s_lshl_b32 s{sE+4}, s{sMT}, 14", f"s_add_u32 s{sE+4}, s{sE+4}, {SM_ST}", f"s_and_b32 s{sDI}, s{sMT}, 3",
            "s_lshl_b32 s3, s3, 9", f"s_add_u32 s3, s3, s{sE+4}", f"s_lshl_b32 s{sE+6}, s{sW}, 7", f"s_add_u32 s{sE+6}, s{sE+6}, s3"]
    if OPT.get("pretouch", 0):
        pro += [f"v_lshlrev_b32 v2, 7, v{vL}", f"v_add_u32 v2, s{sE+7}, v2", f"v_mov_b32 v3, s{sE+6}", f"v_cmp_gt_u32 vcc, 8, v{vL}", "v_cndmask_b32 v2, v3, v2, vcc"]
        if not ffn:
            pro += [f"s_lshl_b32 s3, s{sIDX}, 2", f"s_lshl_b32 s4, s{sNH}, 1", "s_add_u32 s3, s3, s4", f"s_add_u32 s3, s3, s{sTH}", "s_lshl_b32 s3, s3, 3",
                    f"s_add_u32 s3, s3, s{sMT}", "s_lshl_b32 s3, s3, 7", f"s_add_u32 s3, s3, {SM_Z}", "v_mov_b32 v3, s3", f"v_cmp_gt_u32 vcc, 32, v{vL}", "v_cndmask_b32 v2, v3, v2, vcc"]
        pro += [("vm", f"buffer_load_dword v{vPF+1}, v2, s[{sSM}:{sSM+3}], 0 offen", ("pt",))]
    if PF:
        pro += [f"s_mov_b32 s{sU}, s{sB}", f"s_mov_b32 s{sU+1}, s{sB+1}", f"s_mov_b32 s{sU+2}, s{sB+2}", f"s_mov_b32 s{sU+3}, 0x20000",
                f"s_lshr_b32 s3, s{sMT}, 2", f"s_mul_i32 s{sV}, s3, {512*RS}", f"s_add_u32 s{sV}, s{sV}, {4096+128*RS}",
                f"s_add_u32 s3, s3, {2 if ffn else 0}", f"s_mul_i32 s{sV+2}, s3, {256*chunk}",
                f"s_lshl_b32 s3, s{sIDX}, 2", f"s_add_u32 s3, s3, s{sDI}",
                "s_lshl_b32 s3, s3, 2", f"s_add_u32 s3, s3, s{sW}", f"s_mul_i32 s3, s3, {chunk}", f"v_lshlrev_b32 v{vPF}, 7, v{vL}"]
        if PFL < 64:
            pro += [f"v_lshrrev_b32 v3, {PFL.bit_length()-1}, v{vL}", f"v_lshl_add_u32 v{vPF}, v3, 28, v{vPF}"]
        pro += [f"v_add_u32 v{vPF}, s3, v{vPF}"]
    pro += [f"v_and_b32 v3, 15, v{vL}", "v_mov_b32 v4, 0x3f803f80"]
    for ng in range(ngs):
        pro += [f"v_cmp_eq_u32 vcc, {ng}, v3", f"v_cndmask_b32 v{8+ng}, 0, v4, vcc"]
    for ng in range(ngs):
        pro += [f"v_accvgpr_write_b32 a{aONE+4*ng+i}, v{8+ng}" for i in range(4)]
    pro += ["v_lshrrev_b32 v4, 1, v3", f"v_lshlrev_b32 v{vCSo}, 8, v4", "v_and_b32 v4, 1, v3", f"v_lshl_add_u32 v{vCSo}, v4, 6, v{vCSo}",
            f"v_lshrrev_b32 v4, 4, v{vL}", f"v_lshl_add_u32 v{vCSo}, v4, 4, v{vCSo}", f"s_lshl_b32 s3, s{sNH}, 7", f"s_lshl_b32 s4, s{sTH}, 24", "s_add_u32 s3, s3, s4",
            f"v_add_u32 v{vCSo}, s3, v{vCSo}", f"v_add_u32 v4, {16-ngs-(ngs&1)}, v3", "v_lshrrev_b32 v4, 4, v4", f"v_lshl_add_u32 v{vCSo}, v4, 20, v{vCSo}",
            f"v_lshlrev_b32 v{vSig}, 12, v0", f"s_lshl_b32 s3, s{sTY}, 4", f"s_add_u32 s3, s3, s{sIDX}", "s_add_u32 s3, s3, 32", "s_lshl_b32 s3, s3, 2",
            f"v_add_u32 v{vSig2}, s3, v{vSig}", f"s_lshl_b32 s3, s{sMT}, 2", f"v_add_u32 v{vSig}, s3, v{vSig}", f"v_mov_b32 v{vOne}, 1"]
    pro += stamp(1)
    pro += [("wait", "pro", needs(0), -1), "s_barrier"] + stamp(2) + reads(0)
    if not ffn:
        pro += [f"ds_read_b64_tr_b16 {ar(aWP+s*4+jj*2,2)}, v{vWh} offset:{s*1024+jj*256}" for s in range(2) for jj in range(2)]
    for s in range(32):
        if ffn and OPT.get("lstamp") and s in (3, 8, 16, 24):
            pro += stamp({3: 6, 8: 7, 16: 8, 24: 9}[s])
        pro += step(s)
    if OPT.get("sstamp"):
        pro += ["s_waitcnt lgkmcnt(0)", f"v_writelane_b32 v254, s{sST}, 31", f"s_memtime s[{sST}:{sST+1}]", "s_waitcnt lgkmcnt(0)", f"v_writelane_b32 v254, s{sST}, 32",
                f"v_lshlrev_b32 v241, 1, v253", f"v_lshl_add_u32 v241, v{vL}, 2, v241", "v_add_u32 v241, 0x20000, v241", "buffer_store_dword v254, v241, s[84:87], 0 offen"]
    a(render(pro, resolve([pro])))
    a(stamp(3))
    return ool

def b_offsets(RS, blockstride, scol, ffn):
    o = [f"v_lshrrev_b32 v{vT}, 3, v{vL}", f"s_lshl_b32 s3, s{sW}, 3", f"v_add_u32 v{vT}, s3, v{vT}",
         f"s_movk_i32 s3, {RS}", f"v_mul_lo_u32 v{vBoff}, v{vT}, s3",
         f"v_bfe_u32 v{vT}, v{vL}, 4, 1", f"v_lshlrev_b32 v{vT}, 2, v{vT}", f"s_lshl_b32 s3, s{sNH}, {0 if ffn else 1}", f"v_or_b32 v{vT}, s3, v{vT}",
         f"v_and_b32 v{vT+1}, 7, v{vL}", f"v_xor_b32 v{vT}, v{vT}, v{vT+1}",
         f"v_lshl_add_u32 v{vBoff}, v{vT}, 4, v{vBoff}", f"s_add_u32 s3, s{scol}, 4096", f"v_add_u32 v{vBoff}, s3, v{vBoff}"]
    for b in (1, 2):
        o.append(f"v_add_u32 v{vBoff+b}, {hex((b*blockstride-b*1024) & 0xffffffff)}, v{vBoff}")
    o += [f"v_lshrrev_b32 v{vT}, 4, v{vL}", f"v_mul_u32_u24 v{vWa}, 3072, v{vT}", f"v_and_b32 v{vT}, 1, v{vT}", f"v_bfe_u32 v{vT+1}, v{vL}, 3, 1"]
    if ffn:
        o += [f"v_lshl_or_b32 v{vT}, v{vT+1}, 2, v{vT}", f"s_lshl_b32 s3, s{sNH}, 2", f"v_xor_b32 v{vT}, s3, v{vT}",
              f"v_and_b32 v{vT+1}, 2, v{vL}", f"v_xor_b32 v{vT}, v{vT}, v{vT+1}", f"v_lshl_add_u32 v{vWa}, v{vT}, 4, v{vWa}",
              f"v_and_b32 v{vT+1}, 1, v{vL}", f"v_lshl_add_u32 v{vWa}, v{vT+1}, 3, v{vWa}"]
    else:
        o += [f"v_lshl_or_b32 v{vT}, v{vT+1}, 1, v{vT}", f"s_lshl_b32 s3, s{sNH}, 1", f"v_xor_b32 v{vT}, s3, v{vT}", f"v_lshl_add_u32 v{vWa}, v{vT}, 5, v{vWa}",
              f"v_and_b32 v{vT+1}, 3, v{vL}", f"v_lshl_add_u32 v{vWa}, v{vT+1}, 3, v{vWa}"]
    o += [f"v_bfe_u32 v{vT+1}, v{vL}, 2, 2", f"v_lshl_add_u32 v{vWa}, v{vT+1}, 7, v{vWa}",
          f"v_add_u32 v{vWa}, {G2}, v{vWa}", f"v_xor_b32 v{vWa+1}, {16 if ffn else 32}, v{vWa}"]
    return o

vDo = 244
sX0, sX1, sSo, sM0, sLast, sNx, sChk = 31, 32, 33, 34, 35, 36, 45
def p2_dma_setup(t0, t1):
    KA = OPT["ka"]
    o = srd(sB, sP + 12, -4096, 3584 * 2048 + 4096)
    o += [f"v_lshrrev_b32 v{t0}, 3, v{vL}", f"s_lshl_b32 s3, s{sW}, 4", f"v_add_u32 v{t0}, s3, v{t0}", f"v_lshlrev_b32 v{vDo}, 11, v{t0}",
          f"v_lshrrev_b32 v{t0}, 4, v{vL}", f"v_lshlrev_b32 v{t0}, 1, v{t0}", f"v_and_b32 v{t1}, 7, v{vL}", f"v_xor_b32 v{t0}, v{t0}, v{t1}",
          f"v_lshl_add_u32 v{vDo}, v{t0}, 4, v{vDo}", f"s_lshl_b32 s3, s{sNT2}, 8", "s_add_u32 s3, s3, 4096", f"s_lshl_b32 s4, s{sTY}, 7",
          f"s_sub_u32 s6, s3, s4", "s_add_u32 s3, s3, s4", f"v_add_u32 v{vDo+1}, s6, v{vDo}", f"v_add_u32 v{vDo}, s3, v{vDo}",
          f"v_add_u32 v{vDo+1}, {hex((128-1024) & 0xffffffff)}, v{vDo+1}", f"v_add_u32 v{vDo+2}, {16384-2048}, v{vDo}", f"v_add_u32 v{vDo+3}, {16384-2048}, v{vDo+1}"]
    o += [f"s_mul_i32 s{sSo}, s{sTY}, {KA*32*2048}", f"s_lshl_b32 s{sM0}, s{sW}, 12"]
    return o
def p2_dma(i):
    return f"buffer_load_dwordx4 v{vDo+i}, s[{sB}:{sB+3}], s{sSo} offen offset:{i*1024} lds"
def p2_dma_prologue(slots):
    o = []
    for t in slots:
        for i in range(4 if t < 6 else 2):
            it = [f"s_add_u32 m0, s{sM0}, {t*16384}", f"s_add_u32 s{sLast}, s{sSo}, {t*0x20000}"] if i == 0 else []
            o.append(it + [p2_dma(i).replace(f"s{sSo} offen", f"s{sLast} offen")])
    return o
vFo, vFv = 242, 243
def wg_signal(base, sidx, t0):
    return [f"s_lshl_b32 s3, s{sidx}, 7", f"s_add_u32 s3, s3, {base}", f"v_lshlrev_b32 v{t0}, 20, v{vL}", f"s_lshl_b32 s{sE+6}, s{sW}, 26",
            f"s_add_u32 s3, s3, s{sE+6}", f"v_add_u32 v{t0}, s3, v{t0}", f"v_mov_b32 v{t0+1}, 1",
            "s_waitcnt vmcnt(0)", "s_barrier", f"buffer_atomic_add v{t0+1}, v{t0}, s[{sFL}:{sFL+3}], 0 offen sc1"]

def role_ffn(a):
    a.label("L1_ffn")
    a(srd(sB, sP + 10, -4096, 1024 * 7168 + 4096))
    a(f"s_mul_i32 s{sE}, s{sIDX}, 448", f"s_and_b32 s{sE+1}, s{sIDX}, 1",
      f"s_lshl_b32 s{sE+2}, s{sE+1}, 6", f"s_add_u32 s{sE+2}, s{sE+2}, s{sE}",
      f"s_mul_i32 s{sE+1}, s{sE+1}, 384", f"s_sub_u32 s{sE+3}, s{sE}, s{sE+1}", f"s_add_u32 s{sE+3}, s{sE+3}, 384")
    a(b_offsets(7168, 128, sE + 2, True))
    a(f"v_lshrrev_b32 v{vT}, 2, v{vL}", f"s_lshl_b32 s3, s{sW}, 4", f"v_add_u32 v{vT}, s3, v{vT}",
      f"s_movk_i32 s3, 7168", f"v_mul_lo_u32 v{vBh}, v{vT}, s3",
      f"v_lshrrev_b32 v{vT}, 5, v{vL}", f"v_lshlrev_b32 v{vT}, 1, v{vT}", f"v_and_b32 v{vT+1}, 3, v{vL}", f"v_xor_b32 v{vT}, v{vT}, v{vT+1}",
      f"v_lshl_add_u32 v{vBh}, v{vT}, 4, v{vBh}", f"s_add_u32 s3, s{sE+3}, 4096", f"v_add_u32 v{vBh}, s3, v{vBh}")
    a(f"v_lshrrev_b32 v{vT}, 4, v{vL}", f"v_lshlrev_b32 v{vWh}, 9, v{vT}",
      f"v_and_b32 v{vT}, 1, v{vT}", f"v_xor_b32 v{vT}, s{sNH}, v{vT}", f"v_lshl_add_u32 v{vWh}, v{vT}, 5, v{vWh}",
      f"v_bfe_u32 v{vT}, v{vL}, 2, 2", f"v_lshl_add_u32 v{vWh}, v{vT}, 6, v{vWh}",
      f"v_and_b32 v{vT}, 3, v{vL}", f"v_lshl_add_u32 v{vWh}, v{vT}, 3, v{vWh}", f"v_add_u32 v{vWh}, 0x8000, v{vWh}")
    a(f"s_lshr_b32 s{sE}, s{sE+2}, 6", f"s_add_u32 s{sE}, s{sE}, s{sNH}", f"s_lshl_b32 s{sE}, s{sE}, 10",
      f"s_lshr_b32 s{sE+1}, s{sE+3}, 6", f"s_lshl_b32 s{sE+1}, s{sE+1}, 10", f"s_lshl_b32 s3, s{sNH}, 9", f"s_add_u32 s{sE+1}, s{sE+1}, s3",
      f"s_lshl_b32 s3, s{sMT}, 4", f"s_lshl_b32 s{sE+2}, s{sTH}, 3", f"s_add_u32 s3, s3, s{sE+2}", f"s_mul_i32 s3, s3, {HO_TB}",
      f"s_add_u32 s{sE}, s{sE}, s3", f"s_add_u32 s{sE+1}, s{sE+1}, s3")
    vM, vR, vC, tmp, vSt = 192, 200, 208, 236, 252
    def tail_reads(s):
        if s == 28:
            return [f"v_and_b32 v248, 15, v{vL}", f"s_lshl_b32 s3, s{sTH}, 9", f"s_add_u32 s3, s3, {L_M}", "v_lshl_add_u32 v248, v248, 2, s3",
                    f"v_lshrrev_b32 v249, 4, v{vL}", f"s_lshl_b32 s3, s{sNH}, 7", f"s_add_u32 s3, s3, {L_CS}", "v_lshl_add_u32 v249, v249, 4, s3",
                    f"v_lshlrev_b32 v{vSt}, 4, v{vL}"]
        if s == 30:
            return [f"ds_read_b32 v{vR+tb}, v248 offset:{1024+tb*64}" for tb in range(8)] + [f"ds_read_b32 v{vM+tb}, v248 offset:{tb*64}" for tb in range(8)] + \
                   [f"ds_read_b128 {vr(vC+4*ng,4)}, v249 offset:{(ng>>1)*256+(ng&1)*64}" for ng in range(7)]
        if s == 31:
            return [f"v_mul_f32 v{vR+tb}, {hex(NLOG2E)}, v{vR+tb}" for tb in range(8)] + p2_dma_setup(vT, vT + 1)
        return []
    ool = phase1(a, True, tail_reads)
    a.c("---- FFN epilogue: h' = -log2e * silu(LN(x) w1) -> fragment-major bf16")
    def bc(reg):
        return (vr(reg, 2), 0) if reg % 2 == 0 else (vr(reg - 1, 2), 1)
    def silu(regs, c, tb, t, dst):
        n = len(regs); o = []
        mp, ms = bc(vM + tb); rp, rs = bc(vR + tb)
        for i in range(0, n, 2):
            o.append(f"v_pk_fma_f32 {vr(regs[i],2)}, {vr(c+i,2)}, {mp}, {vr(regs[i],2)} op_sel:[0,{ms},0] op_sel_hi:[1,{ms},1] neg_lo:[1,0,0] neg_hi:[1,0,0]")
        for i in range(0, n, 2):
            o.append(f"v_pk_mul_f32 {vr(regs[i],2)}, {vr(regs[i],2)}, {rp} op_sel:[0,{rs}] op_sel_hi:[1,{rs}]")
        o += [f"v_exp_f32 v{t+i}, v{regs[i]}" for i in range(n)]
        o += [f"v_pk_add_f32 {vr(t+i,2)}, {vr(t+i,2)}, 1.0 op_sel_hi:[1,0]" for i in range(0, n, 2)]
        o += [f"v_rcp_f32 v{t+i}, v{t+i}" for i in range(n)]
        o += [f"v_pk_mul_f32 {vr(t+i,2)}, {vr(t+i,2)}, {vr(regs[i],2)}" for i in range(0, n, 2)]
        o += [f"v_cvt_pk_bf16_f32 v{dst+i//2}, v{t+i}, v{t+i+1}" for i in range(0, n, 2)]
        return o
    e = []
    for tb in range(8):
        base = tb * 24
        e += [f"v_accvgpr_read_b32 v{248+i}, a{aX+tb*4+i}" for i in range(4)]
        for b in range(3):
            e += silu(list(range(base + b * 8, base + b * 8 + 8)), vC + 8 * b, tb, tmp, base + b * 8)
            if b == 2:
                e.append(f"s_add_u32 s{sE+2}, s{sE}, 4096")
            so, imm = (sE, b * 2048) if b < 2 else (sE + 2, 0)
            e.append(f"buffer_store_dwordx4 {vr(base+b*8,4)}, v{vSt}, s[{sHO}:{sHO+3}], s{so} offen offset:{imm} sc1")
        hb = (tb & 6) * 24 + 4
        e += silu([248, 249, 250, 251], vC + 24, tb, tmp, hb + 2 * (tb & 1))
        if tb == 0:
            e += [f"v_lshrrev_b32 v13, 5, v{vL}", f"s_mov_b32 s3, {HO_TB}", "v_mul_lo_u32 v12, v13, s3", f"v_and_b32 v13, 31, v{vL}", "v_lshl_add_u32 v12, v13, 4, v12"]
        if tb & 1:
            e += [f"v_permlane32_swap_b32 v{hb}, v{hb+2}", f"v_permlane32_swap_b32 v{hb+1}, v{hb+3}",
                  f"buffer_store_dwordx4 {vr(hb,4)}, v12, s[{sHO}:{sHO+3}], s{sE+1} offen sc1", f"s_add_u32 s{sE+1}, s{sE+1}, {2*HO_TB}"]
        if tb < 7:
            e += [f"s_add_u32 s{sE}, s{sE}, {HO_TB}"]
    a(sprinkle(e, p2_dma_prologue(range(7)), start=4, end=int(len(e) * 0.8)))
    a(stamp(4))
    a([f"v_mov_b32 v{i}, 0" for i in range(64)], f"v_mov_b32 v{vFv}, 0")
    a(wg_signal(FL_H, sMT, 236))
    a(stamp(5))
    a("s_branch L_P2")
    a(ool)

def softmax_pair(P, E, t, rreg, dstp, dstm, kscale):
    t0, t1, t2, t3, c0 = t, t + 1, t + 2, t + 3, t + 4
    o = [f"v_max3_f32 v{t0}, v{P}, v{P+1}, v{P+2}", f"v_max3_f32 v{t1}, -v{P}, -v{P+1}, -v{P+2}"]
    for i in range(3, 15, 2):
        o += [f"v_max3_f32 v{t0}, v{t0}, v{P+i}, v{P+i+1}", f"v_max3_f32 v{t1}, v{t1}, -v{P+i}, -v{P+i+1}"]
    o += [f"v_max_f32 v{t0}, v{t0}, v{P+15}", f"v_max_f32_e64 v{t1}, v{t1}, -v{P+15}", f"v_mul_f32 v{c0}, {hex(LOG2E)}, v{rreg}",
          f"v_permlane32_swap_b32 v{t0}, v{t1}", f"v_max_f32 v{t0}, v{t0}, v{t1}",
          f"v_mul_f32 v{t0}, v{c0}, v{t0}", f"v_mov_b32 v{t2}, v{t0}", f"v_permlane32_swap_b32 v{t0}, v{t2}"]
    o += [f"v_pk_fma_f32 {vr(E[i],2)}, {vr(P+i,2)}, {vr(c0,2)}, {vr(t0,2)} op_sel_hi:[1,0,0] neg_lo:[0,0,1] neg_hi:[0,0,1]" for i in range(0, 16, 2)]
    o += [f"v_pk_fma_f32 {vr(P+i,2)}, {vr(P+i,2)}, {vr(c0,2)}, {vr(t2,2)} op_sel_hi:[1,0,0] neg_lo:[1,0,1] neg_hi:[1,0,1]" for i in range(0, 16, 2)]
    o += [f"v_exp_f32 v{E[i]}, v{E[i]}" for i in range(16)] + [f"v_exp_f32 v{P+i}, v{P+i}" for i in range(16)]
    o += [f"v_pk_add_f32 {vr(t0,2)}, {vr(E[0],2)}, {vr(E[2],2)}", f"v_pk_add_f32 {vr(t2,2)}, {vr(P,2)}, {vr(P+2,2)}"]
    for i in range(4, 16, 2):
        o += [f"v_pk_add_f32 {vr(t0,2)}, {vr(t0,2)}, {vr(E[i],2)}", f"v_pk_add_f32 {vr(t2,2)}, {vr(t2,2)}, {vr(P+i,2)}"]
    o += [f"v_add_f32 v{t0}, v{t0}, v{t1}", f"v_add_f32 v{t2}, v{t2}, v{t3}",
          f"v_permlane32_swap_b32 v{t0}, v{t2}", f"v_add_f32 v{t0}, v{t0}, v{t2}", f"v_rcp_f32 v{t0}, v{t0}"]
    if kscale:
        o += [f"v_mul_f32 v{t0}, v{t0}, v{rreg}"]
    o += [f"v_mov_b32 v{t2}, v{t0}", f"v_permlane32_swap_b32 v{t0}, v{t2}"]
    o += [f"v_pk_mul_f32 {vr(P+i,2)}, {vr(P+i,2)}, {vr(t2,2)} op_sel_hi:[1,0]" for i in range(0, 16, 2)]
    o += [f"v_pk_mul_f32 {vr(E[i],2)}, {vr(E[i],2)}, {vr(t0,2)} op_sel_hi:[1,0]" for i in range(0, 16, 2)]
    o += [f"v_cvt_pk_bf16_f32 v{dstm+i}, v{P+2*i}, v{P+2*i+1}" for i in range(7, -1, -1)]
    o += [f"v_cvt_pk_bf16_f32 v{dstp+i}, v{E[2*i]}, v{E[2*i+1]}" for i in range(8)]
    return o

def role_qkv(a):
    a.label("L1_qkv")
    a(srd(sB, sP + 2, -4096, 1024 * 6144 + 4096))
    a(f"s_lshl_b32 s{sE}, s{sIDX}, 7")
    a(b_offsets(6144, 2048, sE, False))
    a(srd(sU, sP + 4, 0, 65536))
    a(f"s_lshl_b32 s3, s{sIDX}, 12", f"s_lshl_b32 s{sE}, s{sW}, 10", f"s_add_u32 s3, s3, s{sE}",
      f"s_add_u32 m0, s{sE}, {LDS_TOP}", f"v_lshlrev_b32 v{vT}, 4, v{vL}",
      f"buffer_load_dwordx4 v{vT}, s[{sU}:{sU+3}], s3 offen lds")
    a(f"v_lshrrev_b32 v{vT+1}, 5, v{vL}", f"v_lshlrev_b32 v{vWh}, 9, v{vT+1}",
      f"v_bfe_u32 v{vT+1}, v{vL}, 2, 2", f"v_lshl_add_u32 v{vWh}, v{vT+1}, 6, v{vWh}",
      f"v_bfe_u32 v{vT+1}, v{vL}, 4, 1", f"v_lshl_add_u32 v{vWh}, v{vT+1}, 5, v{vWh}",
      f"v_and_b32 v{vT+1}, 3, v{vL}", f"v_lshl_add_u32 v{vWh}, v{vT+1}, 3, v{vWh}",
      f"s_lshl_b32 s3, s{sNH}, 11", f"s_add_u32 s3, s3, {LDS_TOP}", f"v_add_u32 v{vWh}, s3, v{vWh}")
    Q, K, V = 0, 64, 128
    vM, vCK, vCQ, vCV, vMV, vRr = 192, 200, 208, 216, 218, 248
    vPW, vPR, vLin, vZo = 236, 240, 238, 239
    aD = aX
    p1, p2, p3, pV, pR, pD = 244, 245, 246, 247, 252, 243
    def tail_reads(s):
        if s == 28:
            return [f"v_and_b32 v{p1}, 15, v{vL}", f"s_lshl_b32 s3, s{sTH}, 9", f"s_add_u32 s3, s3, {L_M}", f"v_lshl_add_u32 v{p1}, v{p1}, 2, s3",
                    f"v_lshrrev_b32 v{p2}, 4, v{vL}", f"v_lshl_add_u32 v{p3}, v{p2}, 4, s3",
                    f"s_lshl_b32 s3, s{sNH}, 7", f"s_add_u32 s3, s3, {L_CS}", f"v_lshl_add_u32 v{p2}, v{p2}, 4, s3",
                    f"v_and_b32 v{pV}, 15, v{vL}", f"v_lshl_add_u32 v{pV}, v{pV}, 2, s3",
                    f"v_and_b32 v{pR}, 31, v{vL}", f"s_lshl_b32 s3, s{sTH}, 9", f"s_add_u32 s3, s3, {L_R}", f"v_lshl_add_u32 v{pR}, v{pR}, 2, s3",
                    f"v_lshrrev_b32 v{pD}, 5, v{vL}", f"s_lshl_b32 s3, s{sTH}, 8", f"s_add_u32 s3, s3, {L_D}", f"v_lshl_add_u32 v{pD}, v{pD}, 4, s3"]
        if s == 30:
            return [f"ds_read_b32 v{vM+tb}, v{p1} offset:{tb*64}" for tb in range(8)] + \
                   [f"ds_read_b128 {vr(vCK+4*dt,4)}, v{p2} offset:{256+dt*64}" for dt in range(2)] + \
                   [f"ds_read_b128 {vr(vCQ+4*dt,4)}, v{p2} offset:{dt*64}" for dt in range(2)] + \
                   [f"ds_read_b32 v{vCV+dt}, v{pV} offset:{512+dt*64}" for dt in range(2)] + \
                   [f"ds_read_b128 {vr(vMV+4*tb,4)}, v{p3} offset:{tb*64}" for tb in range(4)] + \
                   [f"ds_read_b32 v{vRr+p}, v{pR} offset:{p*128}" for p in range(4)]
        if s == 31:
            return [f"ds_read_b128 {ar(aD+4*f,4)}, v{pD} offset:{f*32}" for f in range(8)] + srd(sU, sP + 18, WS_KV, KV_SIZE)
        return []
    ool = phase1(a, False, tail_reads)
    a.c("---- QKV epilogue")
    def bc(reg):
        return (vr(reg, 2), 0) if reg % 2 == 0 else (vr(reg - 1, 2), 1)
    def corr_qk(X, c, p):
        o = []
        for tbb in range(2):
            mp, ms = bc(vM + 2 * p + tbb)
            for i in range(0, 8, 2):
                r = X + 16 * p + 8 * tbb + i
                o.append(f"v_pk_fma_f32 {vr(r,2)}, {vr(c+i,2)}, {mp}, {vr(r,2)} op_sel:[0,{ms},0] op_sel_hi:[1,{ms},1] neg_lo:[1,0,0] neg_hi:[1,0,0]")
        return o
    def corr_v(tb, m):
        o = []
        for dt in range(2):
            for i in range(0, 4, 2):
                r = V + 8 * tb + 4 * dt + i
                o.append(f"v_pk_fma_f32 {vr(r,2)}, {vr(m+i,2)}, {vr(vCV,2)}, {vr(r,2)} op_sel:[0,{dt},0] op_sel_hi:[1,{dt},1] neg_lo:[1,0,0] neg_hi:[1,0,0]")
        return o
    def frags_qk(src, T0):
        o = []
        for tbb in range(2):
            for dt in range(2):
                s = src + tbb * 8 + dt * 4; d = T0 + dt * 4 + tbb * 2
                o += [f"v_cvt_pk_bf16_f32 v{d}, v{s}, v{s+1}", f"v_cvt_pk_bf16_f32 v{d+1}, v{s+2}, v{s+3}"]
        for f in range(2):
            o += [f"v_permlane16_swap_b32 v{T0+4*f}, v{T0+4*f+2}", f"v_permlane16_swap_b32 v{T0+4*f+1}, v{T0+4*f+3}"]
        o += [f"v_mfma_f32_32x32x16_bf16 {vr(src,16)}, {ar(aWP,4)}, {vr(T0,4)}, 0",
              f"v_mfma_f32_32x32x16_bf16 {vr(src,16)}, {ar(aWP+4,4)}, {vr(T0+4,4)}, {vr(src,16)}"]
        return o
    def frags_v(p):
        src = V + 16 * p; o = []
        for i in range(8):
            o.append(f"v_cvt_pk_bf16_f32 v{src+i}, v{src+2*i}, v{src+2*i+1}")
        for f in range(2):
            o += [f"v_permlane16_swap_b32 v{src+4*f}, v{src+4*f+2}", f"v_permlane16_swap_b32 v{src+4*f+1}, v{src+4*f+3}"]
        return o
    e = []
    TA, TB = 236, 200
    e += corr_qk(K, vCK, 0) + corr_qk(K, vCK, 1) + corr_qk(K, vCK, 2) + corr_qk(K, vCK, 3)
    e += flat([corr_v(tb, vMV + 4 * tb) for tb in range(4)])
    e += [f"ds_read_b128 {vr(vMV+4*tb,4)}, v{p3} offset:{(tb+4)*64}" for tb in range(4)]
    e += frags_qk(K, TB) + frags_qk(K + 16, TA) + frags_v(0) + frags_qk(K + 32, TB) + frags_v(1) + frags_qk(K + 48, TA)
    e += ["s_waitcnt lgkmcnt(0)"] + flat([corr_v(tb + 4, vMV + 4 * tb) for tb in range(4)]) + frags_v(2) + frags_v(3)
    t = 218
    ad = [f"v_and_b32 v{t}, 31, v{vL}", f"v_lshrrev_b32 v{t+1}, 5, v{vL}",
          f"v_bfe_u32 v{t+2}, v{vL}, 1, 1", f"v_lshlrev_b32 v{t+2}, 2, v{t+2}",
          f"v_bfe_u32 v{t+3}, v{vL}, 2, 1", f"v_lshl_or_b32 v{t+2}, v{t+3}, 1, v{t+2}",
          f"v_and_b32 v{t+3}, 1, v{vL}", f"v_or_b32 v{t+2}, v{t+3}, v{t+2}",
          f"v_xor_b32 v{t+2}, v{t+2}, v{t+1}", f"v_lshlrev_b32 v{t+2}, 4, v{t+2}",
          f"v_lshl_add_u32 v{vPW}, v{t}, 7, v{t+2}", f"s_lshl_b32 s3, s{sW}, 14", f"v_add_u32 v{vPW}, s3, v{vPW}"]
    ad += [f"v_xor_b32 v{vPW+i}, {i*32}, v{vPW}" for i in range(1, 4)]
    ad += [f"v_bfe_u32 v{t}, v{vL}, 2, 2", f"v_lshlrev_b32 v{vPR}, 10, v{t+1}", f"v_lshl_add_u32 v{vPR}, v{t}, 7, v{vPR}",
           f"v_lshrrev_b32 v{t+2}, 1, v{t}", f"v_lshlrev_b32 v{t+2}, 2, v{t+2}", f"v_and_b32 v{t+3}, 1, v{t}", f"v_or_b32 v{t+2}, v{t+2}, v{t+3}",
           f"v_bfe_u32 v{t+3}, v{vL}, 4, 1", f"v_lshlrev_b32 v{t+3}, 1, v{t+3}", f"v_xor_b32 v{t+2}, v{t+2}, v{t+3}",
           f"v_and_b32 v{t+3}, 1, v{vL}", f"v_xor_b32 v{t+2}, v{t+2}, v{t+3}", f"v_lshl_add_u32 v{vPR}, v{t+2}, 4, v{vPR}",
           f"v_bfe_u32 v{t+3}, v{vL}, 1, 1", f"v_lshl_add_u32 v{vPR}, v{t+3}, 3, v{vPR}", f"v_add_u32 v{vPR}, s3, v{vPR}"]
    ad += [f"v_xor_b32 v{vPR+i}, {i*32}, v{vPR}" for i in range(1, 4)]
    e += ad + p2_dma_setup(218, 219)
    EA = list(range(V + 8, V + 16)) + list(range(V + 24, V + 32))
    EB = list(range(V + 40, V + 48)) + list(range(V + 56, V + 64))
    tA, tB = 218, 224
    KVa, Za = [128, 144], [192, 208]
    def ksoft(p):
        E = EA if p % 2 == 0 else EB
        P = K + 16 * p
        o = softmax_pair(P, E, tA if p % 2 == 0 else tB, vRr + p, E[0], P + 8, True)
        for sign in range(2):
            for qq in range(2):
                o.append(f"ds_write_b128 v{vPW+sign*2+qq}, {vr((E[0] if sign == 0 else P + 8) + qq*4, 4)} offset:{p*4096}")
        return o
    def kreads(p):
        fb = (p & 1) * 16
        return [f"ds_read_b64_tr_b16 {ar(fb+sign*8+ks*4+jj*2,2)}, v{vPR+sign*2+jj} offset:{p*4096+ks*2048+jj*512}"
                for sign in range(2) for ks in range(2) for jj in range(2)]
    def kmfma(p):
        fb = (p & 1) * 16; o = []
        for ks in range(2):
            for sign in range(2):
                A = ar(fb + sign * 8 + ks * 4, 4); first = (p == 0 and ks == 0)
                o.append(f"v_mfma_f32_32x32x16_bf16 {ar(KVa[sign],16)}, {A}, {vr(V+16*p+4*ks,4)}, {'0' if first else ar(KVa[sign],16)}")
                o.append(f"v_mfma_f32_32x32x16_bf16 {ar(Za[sign],16)}, {A}, {ar(aD+8*p+4*ks,4)}, {'0' if first else ar(Za[sign],16)}")
        return o
    e += sprinkle(zipper(ksoft(0), ksoft(1)), p2_dma_prologue(range(4, 7)), start=4)
    s23 = zipper(ksoft(2), ksoft(3))
    mid = [["s_waitcnt lgkmcnt(0)"] + kreads(0) + kreads(1), ["s_waitcnt lgkmcnt(0)"]] + kmfma(0) + kmfma(1)
    e += sprinkle(s23, mid, start=30, end=len(s23) - 40)
    qpre = flat([corr_qk(Q, vCQ, p) for p in range(4)]) + frags_qk(Q, TB) + frags_qk(Q + 16, 218) + frags_qk(Q + 32, TB) + frags_qk(Q + 48, 218)
    mid = [["s_waitcnt lgkmcnt(0)"] + kreads(2) + kreads(3), ["s_waitcnt lgkmcnt(0)"]] + kmfma(2) + kmfma(3)
    e += sprinkle(qpre, mid, start=OPT.get("qs", 12), end=len(qpre) - 8)
    e += stamp(6)
    XR = 131072; X2 = XR + 4 * 4352
    t = 226
    e += [f"v_lshlrev_b32 v{vLin}, 4, v{vL}", f"s_mul_i32 s3, s{sW}, 4352", f"s_add_u32 s3, s3, {XR}", f"v_add_u32 v{t}, s3, v{vLin}",
          f"v_lshrrev_b32 v{vZo}, 5, v{vL}", f"v_lshlrev_b32 v{vZo}, 6, v{vZo}", f"v_add_u32 v{t+2}, s3, v{vZo}",
          f"s_xor_b32 s3, s{sW}, 2", "s_mul_i32 s3, s3, 4352", f"s_add_u32 s3, s3, {XR}", f"v_add_u32 v{t+1}, s3, v{vLin}", f"v_add_u32 v{t+3}, s3, v{vZo}",
          f"s_lshl_b32 s{sE}, s{sIDX}, 2", f"s_lshl_b32 s3, s{sNH}, 1", f"s_add_u32 s{sE}, s{sE}, s3", f"s_add_u32 s{sE}, s{sE}, s{sTH}",
          f"s_lshl_b32 s{sE+1}, s{sE}, 3", f"s_add_u32 s{sE+1}, s{sE+1}, s{sMT}", f"s_lshl_b32 s{sE+2}, s{sE+1}, 11", f"s_lshl_b32 s{sE+3}, s{sE+1}, 7",
          f"v_bfe_u32 v{t+4}, v{vL}, 2, 3", f"v_lshl_add_u32 v{vZo}, v{t+4}, 24, v{vZo}", f"v_and_b32 v{t+4}, 3, v{vL}", f"v_lshl_add_u32 v{vZo}, v{t+4}, 4, v{vZo}",
          f"s_cmp_eq_u32 s{sTH}, 0", "s_cbranch_scc1 L1q_th0"]
    for th in (1, 0):
        if th == 0:
            e += ["L1q_th0:", "s_nop 7"]
        e += [f"ds_write_b128 v{t}, {ar(KVa[1-th]+4*i,4)} offset:{i*1024}" for i in range(4)]
        e += [f"ds_write_b128 v{t+2}, {ar(Za[1-th]+4*i,4)} offset:{4096+i*16}" for i in range(4)]
        e += [f"v_accvgpr_read_b32 v{K+i}, a{KVa[th]+i}" for i in range(16)] + [f"v_accvgpr_read_b32 v{K+16+i}, a{Za[th]+i}" for i in range(16)]
        if th == 1:
            e += ["s_branch L1q_thj"]
    e += ["L1q_thj:", "s_waitcnt lgkmcnt(0)", "s_barrier"]
    e += [f"ds_read_b128 {vr(K+32+4*i,4)}, v{t+1} offset:{i*1024}" for i in range(4)] + [f"ds_read_b128 {vr(K+48+4*i,4)}, v{t+3} offset:{4096+i*16}" for i in range(4)]
    vAt, vPo, vDat = 236, 237, 252
    e += [f"s_lshl_b32 s3, s{sE}, 7", f"v_lshlrev_b32 v{vAt}, 20, v{vL}", f"v_add_u32 v{vAt}, s3, v{vAt}", f"v_mov_b32 v{vPo}, s3", f"v_mov_b32 v{vDat}, 1"]
    for i in range(8):
        e += [f"s_waitcnt lgkmcnt({7-i})", f"v_pk_add_f32 {vr(K+4*i,2)}, {vr(K+4*i,2)}, {vr(K+32+4*i,2)}", f"v_pk_add_f32 {vr(K+4*i+2,2)}, {vr(K+4*i+2,2)}, {vr(K+32+4*i+2,2)}"]
        if i < 4:
            e += [f"v_cvt_pk_bf16_f32 v{K+2*i}, v{K+4*i}, v{K+4*i+1}", f"v_cvt_pk_bf16_f32 v{K+2*i+1}, v{K+4*i+2}, v{K+4*i+3}"]
            if i & 1:
                e.append(f"buffer_store_dwordx4 {vr(K+2*i-2,4)}, v{vLin}, s[{sU}:{sU+3}], s{sE+2} offen offset:{(i>>1)*1024} sc1")
        elif i > 4:
            e += [f"v_cmp_eq_u32 vcc, {i-4}, v{t+4}"] + [f"v_cndmask_b32 v{K+16+j}, v{K+16+j}, v{K+4*i+j}, vcc" for j in range(4)]
    e.append(f"buffer_store_dwordx4 {vr(K+16,4)}, v{vZo}, s[{sSM}:{sSM+3}], s{sE+3} offen sc1")
    E0 = list(range(192, 208)); E1 = list(range(208, 224))
    def qsoft(p):
        P = Q + 16 * p
        return softmax_pair(P, E0 if p % 2 == 0 else E1, 224 if p % 2 == 0 else 230, vRr + p, P, P + 8, False)
    q01 = zipper(qsoft(0), qsoft(1))
    k = int(len(q01) * OPT.get("atpos", 55) / 100)
    e += q01[:k] + ["s_waitcnt vmcnt(0)", f"buffer_atomic_add v{vDat}, v{vAt}, s[{sFL}:{sFL+3}], 0 offen sc1"] + stamp(7) + sprinkle(q01[k:], p2_dma_prologue(range(4)))
    q23 = zipper(qsoft(2), qsoft(3))
    k = int(len(q23) * OPT.get("popos", 30) / 100)
    e += q23[:k] + poll("L1q_poll", vDat, vPo, sFL, 8) + stamp(8)
    vZ = 240
    g = [f"s_lshl_b32 s{sE+2}, s{sE}, 14", f"s_lshl_b32 s{sE+3}, s{sE}, 10",
         f"buffer_load_dwordx4 {vr(vZ,4)}, v{vLin}, s[{sSM}:{sSM+3}], s{sE+3} offen sc1"]
    for m in range(8):
        g += [f"buffer_load_dwordx4 {vr(V+8*m+4*i,4)}, v{vLin}, s[{sU}:{sU+3}], s{sE+2} offen offset:{(m&1)*2048+i*1024} sc1" for i in range(2)]
        if m & 1 and m < 7:
            g.append(f"s_add_u32 s{sE+2}, s{sE+2}, 4096")
    e += sprinkle(q23[k:], g, start=0, end=int((len(q23) - k) * 0.4))
    t = 224; T = 192
    e += [f"s_mul_i32 s3, s{sNH}, 4352", f"s_add_u32 s3, s3, {X2}", f"s_lshl_b32 s{sE+1}, s{sTH}, 11", f"s_add_u32 s{sE+1}, s{sE+1}, s3",
          f"v_add_u32 v{t}, s{sE+1}, v{vLin}", f"v_add_u32 v{t+1}, s3, v{vLin}",
          f"s_lshl_b32 s{sE+1}, s{sTH}, 6", f"s_add_u32 s{sE+1}, s{sE+1}, s3", f"s_add_u32 s{sE+1}, s{sE+1}, 4096",
          f"v_and_b32 v{t+2}, 7, v{vL}", f"v_lshlrev_b32 v{t+2}, 3, v{t+2}", f"v_add_u32 v{t+2}, s{sE+1}, v{t+2}",
          f"v_lshrrev_b32 v{t+3}, 5, v{vL}", f"v_lshlrev_b32 v{t+3}, 5, v{t+3}", "s_add_u32 s3, s3, 4096", f"v_add_u32 v{t+3}, s3, v{t+3}",
          "s_mov_b32 s46, 0x3f80", "s_mov_b32 s47, 0x3f800000"]
    e += ["s_waitcnt vmcnt(16)"] + [f"v_add_f32_dpp v{vZ+i}, v{vZ+i}, v{vZ+i} row_ror:8 row_mask:0xf bank_mask:0xf" for i in range(4)]
    for pl in ("v_permlane16_swap_b32", "v_permlane32_swap_b32"):
        e += [f"v_mov_b32 v{T+i}, v{vZ+i}" for i in range(4)] + [f"{pl} v{vZ+i}, v{T+i}" for i in range(4)] + [f"v_add_f32 v{vZ+i}, v{vZ+i}, v{T+i}" for i in range(4)]
    e += [f"v_cvt_pk_bf16_f32 v{vZ}, v{vZ}, v{vZ+1}", f"v_cvt_pk_bf16_f32 v{vZ+1}, v{vZ+2}, v{vZ+3}", f"ds_write_b64 v{t+2}, {vr(vZ,2)}"]
    e += ["s_waitcnt vmcnt(14)"] + flat([[f"v_lshlrev_b32 v{K+2*i}, 16, v{V+i}", f"v_and_b32 v{K+2*i+1}, 0xffff0000, v{V+i}"] for i in range(8)])
    for m in range(1, 8):
        e += [f"s_waitcnt vmcnt({14-2*m})"] + flat([[f"v_dot2c_f32_bf16 v{K+2*i}, s46, v{V+8*m+i}", f"v_dot2c_f32_bf16 v{K+2*i+1}, s47, v{V+8*m+i}"] for i in range(8)])
    e += [f"s_lshr_b32 s3, s{sMT2}, 1", "s_lshl_b32 s3, s3, 7", f"s_add_u32 s3, s3, {FL_H}", f"v_mov_b32 v{vFo}, s3"]
    e += [f"v_cvt_pk_bf16_f32 v{T+i}, v{K+2*i}, v{K+2*i+1}" for i in range(8)]
    e += [f"ds_write_b128 v{t}, {vr(T,4)}", f"ds_write_b128 v{t}, {vr(T+4,4)} offset:1024",
          f"buffer_load_dword v{vFv}, v{vFo}, s[{sFL}:{sFL+3}], 0 offen sc1", "s_waitcnt lgkmcnt(0)", "s_barrier"]
    for sign in range(2):
        for s in range(2):
            e += [f"ds_read_b128 {ar(sign*8+s*4,4)}, v{t+1} offset:{sign*2048+s*1024}", f"ds_read_b128 {ar(16+sign*8+s*4,4)}, v{t+3} offset:{sign*64+s*16}"]
    e += stamp(9)
    t = 228
    e += [f"v_bfe_u32 v{t}, v{vL}, 4, 1", f"s_mov_b32 s3, {HO_TB}", f"v_mul_lo_u32 v{t}, v{t}, s3",
          f"v_lshrrev_b32 v{t+1}, 5, v{vL}", f"v_lshl_add_u32 v{t}, v{t+1}, 8, v{t}",
          f"v_and_b32 v{t+1}, 15, v{vL}", f"v_lshl_add_u32 v{t}, v{t+1}, 4, v{t}",
          f"s_lshl_b32 s3, s{sMT}, 4", f"s_lshl_b32 s{sE+1}, s{sTH}, 3", f"s_add_u32 s3, s3, s{sE+1}", f"s_mul_i32 s3, s3, {HO_TB}",
          f"s_lshl_b32 s{sE+1}, s{sIDX}, 1", f"s_add_u32 s{sE+1}, s{sE+1}, s{sNH}", f"s_add_u32 s{sE+1}, s{sE+1}, 112", f"s_lshl_b32 s{sE+1}, s{sE+1}, 10",
          f"s_add_u32 s{sE+1}, s{sE+1}, s3", f"s_mov_b32 s{sE+2}, 0x358637bd"]
    e += ["s_waitcnt lgkmcnt(0)"]
    def nd(p):
        N = K + 32 * p; D = N + 16; o = []; k = 0
        for sign in range(2):
            for s in range(2):
                B = vr(Q + 16 * p + sign * 8 + s * 4, 4)
                o.append(f"v_mfma_f32_32x32x16_bf16 {vr(N,16)}, {ar(sign*8+s*4,4)}, {B}, {'0' if k == 0 else vr(N,16)}")
                o.append(f"v_mfma_f32_32x32x16_bf16 {vr(D,16)}, {ar(16+sign*8+s*4,4)}, {B}, {'0' if k == 0 else vr(D,16)}")
                k += 1
        return o
    def fin(p):
        N = K + 32 * p; D = N + 16
        o = [f"v_add_f32 v{D}, s{sE+2}, v{D}", f"v_rcp_f32 v{D}, v{D}", f"v_mul_f32 v{D}, {hex(NLN2)}, v{D}"]
        o += [f"v_pk_mul_f32 {vr(N+i,2)}, {vr(N+i,2)}, {vr(D,2)} op_sel_hi:[1,0]" for i in range(0, 16, 2)]
        o += [f"v_cvt_pk_bf16_f32 v{N+i}, v{N+2*i}, v{N+2*i+1}" for i in range(8)]
        o += [f"buffer_store_dwordx4 {vr(N+4*s,4)}, v{t}, s[{sHO}:{sHO+3}], s{sE+1} offen offset:{s*512} sc1" for s in range(2)]
        return o + [f"s_add_u32 s{sE+1}, s{sE+1}, {2*HO_TB}"]
    e += nd(0) + nd(1) + zipper(fin(0), nd(2)) + zipper(fin(1), nd(3)) + fin(2) + [f"v_mov_b32 v{i}, 0" for i in range(32)] + fin(3) + [f"v_mov_b32 v{i}, 0" for i in range(32, 64)]
    a(e)
    a(stamp(4))
    a("s_waitcnt vmcnt(8)")
    a(stamp(5))
    return ool

def phase2(a):
    KA = OPT["ka"]; NH = [KA, 112 - KA]
    NIT = [n // 8 for n in NH]
    sXs, sO, sPT = sU, sV, sHO
    vR1, vR2, vXo, vXg, vEw, vEr, vOs = 224, 228, 232, 233, 234, 238, 240
    T = 252
    OUT, S, XR, P, E = 0, 64, 96, 112, 144
    WF = 64
    sStr, sSw, sPo, sPi, sFi, sFo = 42, 43, 44, 46, 47, 36
    a.label("L_P2")
    a(f"v_bfe_u32 v{T}, v{vL}, 2, 3", f"v_lshlrev_b32 v{vR1}, 7, v{T}", f"v_lshrrev_b32 v{T}, 1, v{T}", f"v_lshl_add_u32 v{vR1}, v{T}, 5, v{vR1}",
      f"v_and_b32 v{T}, 3, v{vL}", f"v_lshl_add_u32 v{vR1}, v{T}, 3, v{vR1}",
      f"v_lshrrev_b32 v{T}, 5, v{vL}", f"v_lshl_add_u32 v{vR2}, v{T}, 11, v{vR1}", f"v_lshl_add_u32 v{vR1}, v{T}, 12, v{vR1}")
    for q in range(1, 4):
        a(f"v_xor_b32 v{vR1+q}, {q*32}, v{vR1}")
    X = lambda pos, tb: ar((pos & 7) * 8 + tb * 4, 4)
    def xload(S_):
        return [("vm", f"buffer_load_dwordx4 {X(S_, tb)}, v{vXo}, s[{sA}:{sA+3}], s{sX0+tb} offen offset:{(S_&3)*1024} sc1", ("X", S_, tb)) for tb in range(2)]
    def xadv():
        return [f"s_add_u32 s{sX0}, s{sX0}, 4096", f"s_add_u32 s{sX1}, s{sX1}, 4096"]
    def dma(t, i):
        return ("vm", p2_dma(i), ("D", t))
    def hreads(S_):
        t, j = (S_ >> 1) & 3, S_ & 1
        return [f"ds_read_b64_tr_b16 {ar(WF+j*32+q8*4+jj*2,2)}, v{vR1+(q8&3)} offset:{t*16384+j*8192+jj*2048+(q8>>2)*1024}" for q8 in range(8) for jj in range(2)]
    def oreads(k):
        return [f"ds_read_b64_tr_b16 {ar(WF+(k&3)*16+q*4+jj*2,2)}, v{vR2+q} offset:{((k>>2)&3)*16384+(k&3)*4096+jj*1024}" for q in range(4) for jj in range(2)]
    a(hreads(0))
    a(f"v_lshlrev_b32 v{vXo}, 4, v{vL}", f"s_lshr_b32 s3, s{sMT2}, 1", "s_lshl_b32 s3, s3, 7", f"s_add_u32 s{sE}, s3, {FL_O}", f"s_add_u32 s3, s3, {FL_H}", f"v_mov_b32 v{vFo}, s3")
    a(srd(sA, sP + 18, WS_HO, HO_SIZE))
    a(f"s_lshl_b32 s3, s{sMT2}, 3", f"s_lshl_b32 s{sE+1}, s{sW}, 1", f"s_add_u32 s3, s3, s{sE+1}", f"s_mul_i32 s{sX0}, s3, {HO_TB}",
      f"s_add_u32 s{sE+2}, s{sX0}, {112*1024}",
      f"s_mul_i32 s{sE+1}, s{sTY}, {KA*1024}", f"s_add_u32 s{sX0}, s{sX0}, s{sE+1}", f"s_add_u32 s{sX1}, s{sX0}, {HO_TB}")
    a(f"v_readfirstlane_b32 s3, v{vFv}", "s_cmp_ge_u32 s3, 16", "s_cbranch_scc1 L2_hpoll_ok")
    a(poll("L2_hpoll", vFv, vFo, sFL, 16))
    a(stamp(10))
    pro = []
    for s in range(7):
        pro += xload(s)
        if s == 3: pro += xadv()
    rows = [sE + 3, sE + 4, sE + 5]
    pro += [f"v_mov_b32 v{vFo}, s{sE}", f"s_add_u32 m0, s{sM0}, {6*16384}", f"s_add_u32 s{sSo}, s{sSo}, {6*0x20000}", f"s_mov_b32 s{sCnt}, 1", f"s_mov_b32 s{sStr}, 0x20000",
            f"s_lshl_b32 s3, s{sMT}, 7", f"s_add_u32 s3, s3, {FL_O}", f"v_add_u32 v{vOs}, s{sW}, v{vL}", f"v_lshlrev_b32 v{vOs}, 20, v{vOs}",
            f"v_add_u32 v{vOs}, s3, v{vOs}", f"v_mov_b32 v{vOs+1}, 1",
            f"s_add_u32 s{sM0}, s{sM0}, 0x1c000"]
    pro += srd(sXs, sP + 0, 0, 2048 * 2048) + srd(sO, sP + 14, 0, 2048 * 2048) + srd(sPT, sP + 18, WS_PART, PART_SIZE)
    pro += [f"s_cmp_eq_u32 s{sTY}, 0", f"s_cselect_b32 s{sLast}, {NIT[0]-1}, {NIT[1]-1}", f"s_cselect_b32 s4, {(NIT[0]&1)*0x10000}, {(NIT[1]&1)*0x10000}",
            f"s_sub_u32 s{sSw}, s{sLast}, 1", f"v_add_u32 v{vR2}, s4, v{vR2}",
            f"s_lshl_b32 s3, s{sMT2}, 3", f"s_add_u32 s3, s3, s{sNT2}", f"s_lshl_b32 s{sPo}, s3, 16", f"s_lshl_b32 s4, s{sW}, 13", f"s_add_u32 s{sPo}, s{sPo}, s4",
            f"s_lshl_b32 s4, s{sTY}, 15", f"s_add_u32 s{sPo}, s{sPo}, s4", f"s_xor_b32 s{sPi}, s{sPo}, 0x8000",
            f"s_lshl_b32 s{sFo}, s3, 7", f"s_lshl_b32 s4, s{sW}, 2", f"s_add_u32 s{sFo}, s{sFo}, s4", f"s_add_u32 s{sFo}, s{sFo}, {FL_PART}",
            f"s_lshl_b32 s4, s{sTY}, 4", f"s_add_u32 s{sFo}, s{sFo}, s4", f"s_xor_b32 s{sFi}, s{sFo}, 16"]
    pro += [f"v_xor_b32 v{vR2+q}, {q*32}, v{vR2}" for q in range(1, 4)]
    pro += [f"v_lshrrev_b32 v{T}, 3, v{vL}", f"v_lshlrev_b32 v{vXg}, 11, v{T}", f"v_and_b32 v{E}, 7, v{vL}", f"v_lshl_add_u32 v{vXg}, v{E}, 4, v{vXg}",
            f"s_lshl_b32 s3, s{sNT2}, 8", f"s_lshl_b32 s4, s{sTY}, 7", "s_add_u32 s3, s3, s4", f"s_lshl_b32 s4, s{sMT2}, 18", "s_add_u32 s3, s3, s4",
            f"s_lshl_b32 s4, s{sW}, 16", "s_add_u32 s3, s3, s4", f"v_add_u32 v{vXg}, s3, v{vXg}",
            f"v_xor_b32 v{E+1}, v{T}, v{E}", f"v_lshlrev_b32 v{vEr}, 7, v{T}", f"v_lshl_add_u32 v{vEr}, v{E+1}, 4, v{vEr}",
            f"s_lshl_b32 s3, s{sW}, 12", "s_add_u32 s3, s3, 0x20000", f"v_add_u32 v{vEr}, s3, v{vEr}",
            f"v_lshrrev_b32 v{T}, 5, v{vL}", f"v_xor_b32 v{T}, v{T}, v{E}", f"v_and_b32 v{E+1}, 15, v{vL}", f"v_lshlrev_b32 v{vEw}, 7, v{E+1}",
            f"v_lshl_add_u32 v{vEw}, v{T}, 4, v{vEw}", f"v_bfe_u32 v{T}, v{vL}, 4, 1", f"v_lshl_add_u32 v{vEw}, v{T}, 3, v{vEw}", f"v_add_u32 v{vEw}, s3, v{vEw}"]
    pro += [f"v_xor_b32 v{vEw+q}, {q*32}, v{vEw}" for q in range(1, 4)] + [f"s_mov_b32 s{rows[g]}, {(g+1)*16384}" for g in range(3)]
    pst = lambda: ["s_mov_b32 s6, m0", "s_mov_b32 m0, s7", "s_nop 0", f"v_writelane_b32 v254, s{sST}, m0", "s_mov_b32 m0, s6", "s_add_u32 s7, s7, 1",
                   f"s_memtime s[{sST}:{sST+1}]", "s_waitcnt lgkmcnt(0)"] if OPT.get("p2stamp") else []
    def acc(base, nq, tb, q): return vr(base + (tb * nq + q) * 4, 4)
    def hstep(S_):
        s = S_ & 7; Tt = S_ >> 1; j = S_ & 1
        m = [f"v_mfma_f32_16x16x32_bf16 {acc(OUT+(q>>2)*32,4,tb,q&3)}, {ar(WF+j*32+q*4,4)}, {X(s,tb)}, {acc(OUT+(q>>2)*32,4,tb,q&3)}" for q in range(8) for tb in range(2)]
        fill = {}
        need = [("X", S_, 0), ("X", S_, 1)]
        if j == 1 and Tt + 1 >= 6: need.append(("D", Tt + 1))
        if s == 0 and S_ > 0: need.append(("O", S_ - 8))
        fill[-1] = [("wait", ("h", s, S_ < 8), need, 8)] + (["s_barrier"] + pst() if j == 1 else [])
        spread(hreads(S_ + 1), list(range(16)), fill)
        fill[7].append("s_waitcnt lgkmcnt(8)")
        if s == 0:
            spread([[f"s_cmp_eq_u32 s{sCnt}, s{sLast}", "s_cbranch_scc1 L2_chk", "L2_chk_r:"] if S_ else [],
                    [("vm", f"buffer_load_dword v{vFv}, v{vFo}, s[{sFL}:{sFL+3}], 0 offen sc1", ("O", S_))]], [3, 4], fill)
        x = xload(S_ + 7)
        spread(x, [1, 5] if s else [0, 2], fill)
        if (s & 3) == 0:
            spread(xadv(), [8, 9] if s else [5, 6], fill)
        if S_ == 3:
            spread([[f"s_cmp_eq_u32 s{sTY}, 0", "s_cbranch_scc1 L2_osig", "L2_osig_r:"]], [3], fill)
        if j == 1:
            if s == 3 and S_ > 8:
                spread([[f"s_cmp_eq_u32 s{sCnt}, s{sSw}", "s_cbranch_scc1 L2_sw", "L2_sw_r:"]], [6], fill)
            spread([f"s_add_u32 s4, s{sM0}, {(Tt&3)*16384}", "s_and_b32 m0, s4, 0x1ffff", dma(Tt + 7, 0), dma(Tt + 7, 1)], [8, 9, 11, 14], fill)
            if s == 7:
                spread([f"s_xor_b32 s{sM0}, s{sM0}, 0x10000"], [12], fill)
        else:
            spread([dma(Tt + 6, 2), dma(Tt + 6, 3), f"s_add_u32 s{sSo}, s{sSo}, s{sStr}"], [11, 14, 15], fill)
        if s == 6:
            for q in range(4):
                fill[9 + 2 * q].append(f"v_xor_b32 v{vR1+q}, 0x10000, v{vR1+q}")
        return weave(m, fill)
    PS = OPT.get("ps", 22)
    def ostep(k, nh):
        S_ = nh + k; NS = nh // 2
        m = [f"v_mfma_f32_16x16x32_bf16 {acc(S,4,tb,q)}, {ar(WF+(k&3)*16+q*4,4)}, {X(k,tb)}, {'0' if k == 0 else acc(S,4,tb,q)}" for q in range(4) for tb in range(2)]
        fill = {}
        need = [("X", S_, 0), ("X", S_, 1)]
        bar = []
        if k == 14:
            need += [("D", NS + 7)]; bar = ["s_barrier"]
        if k == PS: need.append(("F",))
        fill[-1] = [("wait", ("o", k), need, 8 if k < 31 else 0)] + bar + (pst() if k % 4 == 3 else [])
        if k + 2 < 32:
            spread(oreads(k + 2), list(range(8)), fill)
        if k == 13:
            for q in range(4):
                fill[2 * q + 1].append(f"v_xor_b32 v{vR2+q}, 0x10000, v{vR2+q}")
        if k + 7 < 32:
            spread(xload(S_ + 7), [1, 5], fill)
            if (k & 3) == 0:
                spread(xadv(), [6, 7], fill)
        if k == 0:
            spread([dma(NS + 6, 2), dma(NS + 6, 3), f"s_add_u32 s{sSo}, s{sSo}, s{sStr}"], [2, 3, 4], fill)
        if k == 1:
            spread([f"s_and_b32 m0, s{sM0}, 0x1ffff", dma(NS + 7, 0), dma(NS + 7, 1)], [0, 3, 6], fill)
        if k == 2:
            spread([dma(NS + 7, 2), dma(NS + 7, 3)], [3, 6], fill)
        if 3 <= k <= 6:
            i = 2 * (k - 3)
            spread([("vm", f"buffer_store_dwordx4 {vr(OUT+32+4*i,4)}, v{vXo}, s[{sPT}:{sPT+3}], s{sPo} offen offset:{(i&3)*1024} sc1", ("PS0",)),
                    ("vm", f"buffer_store_dwordx4 {vr(OUT+36+4*i,4)}, v{vXo}, s[{sPT}:{sPT+3}], s{sPo} offen offset:{((i+1)&3)*1024} sc1", ("PS0",))], [3, 7], fill)
            if k == 4: fill[7].append(f"s_add_u32 s{sPo}, s{sPo}, 4096")
        if k == 7:
            spread([f"v_lshlrev_b32 v{vOs}, 20, v{vL}", f"v_add_u32 v{vOs}, s{sFo}, v{vOs}", f"v_mov_b32 v{vFo}, s{sFi}"], [2, 3, 4], fill)
        SG = OPT.get("sgk", 12)
        if k == SG:
            fill[-1][0][2].append(("PS0",))
            spread([("vm", f"buffer_atomic_add v{vOs+1}, v{vOs}, s[{sFL}:{sFL+3}], 0 offen sc1", ("sig",))], [3], fill)
        if k == PS - 6:
            spread([("vm", f"buffer_load_dword v{vFv}, v{vFo}, s[{sFL}:{sFL+3}], 0 offen sc1", ("F",))], [0], fill)
        if 8 <= k <= 11:
            i = k - 8
            spread([("vm", f"buffer_load_dwordx4 {vr(XR+4*i,4)}, v{vXg}, s[{sXs}:{sXs+3}], {'0' if i == 0 else 's%d' % rows[i-1]} offen", ("x",))], [3], fill)
        if k == PS:
            spread([[f"v_readfirstlane_b32 s3, v{vFv}"], ["s_cmp_eq_u32 s3, 0", "s_cbranch_scc1 L2_pp", "L2_ppoll_ok:"]], [0, 2], fill)
        if PS <= k < PS + 4:
            i = 2 * (k - PS)
            spread([("vm", f"buffer_load_dwordx4 {vr(P+4*i,4)}, v{vXo}, s[{sPT}:{sPT+3}], s{sPi} offen offset:{(i&3)*1024} sc1", ("P", i)),
                    ("vm", f"buffer_load_dwordx4 {vr(P+4*i+4,4)}, v{vXo}, s[{sPT}:{sPT+3}], s{sPi} offen offset:{((i+1)&3)*1024} sc1", ("P", i + 1))], [3, 7], fill)
            if k == PS + 1: fill[7].append(f"s_add_u32 s{sPi}, s{sPi}, 4096")
        return weave(m, fill)
    def trans(nh):
        return [("wait", "tr", [("D", nh // 2 + 3)], 0), "s_barrier"] + oreads(0) + oreads(1)
    epi = []
    for h in range(2):
        r = range(16 * h, 16 * h + 16)
        epi += [("wait", ("e", h), [("P", 4 * h + 3), ("x",)], -1)] + [f"v_pk_add_f32 {vr(OUT+i,2)}, {vr(OUT+i,2)}, {vr(P+i,2)}" for i in r[::2]]
        epi += [f"v_exp_f32 v{E+i}, v{OUT+i}" for i in r]
        epi += [f"v_pk_mul_f32 {vr(OUT+i,2)}, {vr(OUT+i,2)}, {vr(S+i,2)}" for i in r[::2]]
        epi += [f"v_pk_add_f32 {vr(E+i,2)}, {vr(E+i,2)}, 1.0 op_sel_hi:[1,0]" for i in r[::2]]
        epi += [f"v_rcp_f32 v{E+i}, v{E+i}" for i in r]
        for q in range(4):
            p = E + 16 * h + 4 * q; o = OUT + 16 * h + 4 * q
            epi += [f"v_pk_mul_f32 {vr(p,2)}, {vr(p,2)}, {vr(o,2)}", f"v_pk_mul_f32 {vr(p+2,2)}, {vr(p+2,2)}, {vr(o+2,2)}",
                    f"v_cvt_pk_bf16_f32 v{p}, v{p}, v{p+1}", f"v_cvt_pk_bf16_f32 v{p+1}, v{p+2}, v{p+3}", f"ds_write_b64 v{vEw+q}, {vr(p,2)} offset:{h*2048}"]
    for i in range(16):
        epi += [f"v_lshlrev_b32 v{OUT+2*i}, 16, v{XR+i}", f"v_and_b32 v{OUT+2*i+1}, 0xffff0000, v{XR+i}"]
        if i == 3:
            epi += ["s_waitcnt lgkmcnt(0)"] + [f"ds_read_b128 {vr(S+4*k,4)}, v{vEr} offset:{k*1024}" for k in range(4)]
    for i in range(4):
        epi += [f"s_waitcnt lgkmcnt({3-i})"]
        for k in range(4):
            epi += [f"v_lshlrev_b32 v{E+2*k}, 16, v{S+4*i+k}", f"v_and_b32 v{E+2*k+1}, 0xffff0000, v{S+4*i+k}"]
        epi += [f"v_pk_add_f32 {vr(OUT+2*(4*i+k),2)}, {vr(OUT+2*(4*i+k),2)}, {vr(E+2*k,2)}" for k in range(4)]
        epi += [f"v_cvt_pk_bf16_f32 v{XR+4*i+k}, v{OUT+2*(4*i+k)}, v{OUT+2*(4*i+k)+1}" for k in range(4)]
        epi += [f"buffer_store_dwordx4 {vr(XR+4*i,4)}, v{vXg}, s[{sO}:{sO+3}], {'0' if i == 0 else 's%d' % rows[i-1]} offen{' sc1' if OPT.get('osc1', 0) else ''}"]
    trs = []
    for nh in NH:
        tr = [("vm", "", ("D", 6))] + list(pro)
        for S_ in range(nh): tr += hstep(S_)
        tr += trans(nh)
        for k in range(32): tr += ostep(k, nh)
        trs.append(tr + epi)
    cnt = resolve(trs)
    a(render(pro, cnt))
    a(stamp(11))
    if OPT.get("p2stamp"):
        a("s_mov_b32 s7, 0", f"s_memtime s[{sST}:{sST+1}]", "s_waitcnt lgkmcnt(0)")
    a("s_waitcnt lgkmcnt(0)")
    for s in range(8):
        a(render(hstep(s), cnt))
    a(".p2align 6")
    a.label("L2_loop")
    for s in range(8, 16):
        body = render(hstep(s), cnt)
        ex = OPT.get("exp", 0)
        if ex & 1: body = [l for l in body if not (l.startswith("buffer_load_dwordx4 a["))]
        if ex & 2: body = [l for l in body if not l.endswith(" lds")]
        if ex & 4: body = [l for l in body if not l.startswith("ds_read")]
        if ex & 8: body = [l for l in body if not l.startswith("s_barrier")]
        if ex & 64: body = [l.replace("vmcnt(27)", "vmcnt(19)").replace("vmcnt(26)", "vmcnt(18)") for l in body]
        a(body)
    a(f"s_add_u32 s{sCnt}, s{sCnt}, 1", f"s_cmp_le_u32 s{sCnt}, s{sLast}", "s_cbranch_scc1 L2_loop")
    if not OPT.get("p2stamp"):
        a(stamp(12))
    a(render(trans(56), cnt))
    for k in range(32):
        a(render(ostep(k, 56), cnt))
    if OPT.get("p2stamp"):
        a(f"v_lshlrev_b32 v252, 1, v253", f"v_lshl_add_u32 v252, v{vL}, 2, v252", "v_add_u32 v252, 0x20000, v252", "buffer_store_dword v254, v252, s[84:87], 0 offen")
    a(stamp(13))
    a.c("---- final: out = x + S' * acc / (1 + 2^acc)")
    a(render(epi, cnt))
    a(stamp(14))
    a("s_endpgm")
    a("L2_chk:", f"v_readfirstlane_b32 s3, v{vFv}", f"s_sub_u32 s{sX0}, s{sE+2}, 4096", f"s_add_u32 s{sX1}, s{sX0}, {HO_TB}", "s_cmp_ge_u32 s3, 16", "s_cbranch_scc1 L2_chk_r",
      poll("L2_opoll", vFv, vFo, sFL, 16), "s_branch L2_chk_r")
    a("L2_osig:", f"buffer_atomic_add v{vOs+1}, v{vOs}, s[{sFL}:{sFL+3}], 0 offen sc1", "s_branch L2_osig_r")
    a("L2_sw:", srd(sB, sP + 6, -4096, 1024 * 2048 + 4096), f"s_mov_b32 s{sSo}, 0", f"s_mov_b32 s{sStr}, 0x40000", f"s_lshl_b32 s3, s{sW}, 15",
      f"v_add_u32 v{vDo}, s3, v{vDo}", f"v_add_u32 v{vDo+1}, {16384-1024}, v{vDo}", f"v_add_u32 v{vDo+2}, {2*16384-2048}, v{vDo}", f"v_add_u32 v{vDo+3}, {3*16384-3072}, v{vDo}",
      "s_branch L2_sw_r")
    a("L2_pp:", poll("L2_ppoll2", vFv, vFo, sFL, 1), "s_branch L2_ppoll_ok")

def kernel():
    a = Asm()
    a.label(KNAME)
    a("s_cmp_ge_u32 s2, 256", "s_cbranch_scc1 L_end")
    a(f"s_load_dwordx16 s[{sP}:{sP+15}], s[0:1], 0", f"s_load_dwordx4 s[{sP+16}:{sP+19}], s[0:1], 64")
    a(f"v_and_b32 v{vL}, 63, v0", "v_lshrrev_b32 v1, 6, v0", f"v_readfirstlane_b32 s{sW}, v1")
    if OPT["ctouch"]:
        a("s_getpc_b64 s[4:5]", "L_pc:", f"s_sub_u32 s4, s4, L_pc-{KNAME}", "s_subb_u32 s5, s5, 0",
          "s_lshr_b32 s3, s2, 3", "s_lshl_b32 s3, s3, 2", f"s_add_u32 s3, s3, s{sW}", "s_and_b32 s3, s3, 15", "s_lshl_b32 s3, s3, 13",
          f"v_lshlrev_b32 v1, 7, v{vL}", "v_add_u32 v1, s3, v1", f"v_min_u32 v1, L_end-{KNAME}, v1", f"global_load_dword v{vPF+1}, v1, s[4:5]")
    a("s_and_b32 s3, s2, 1", f"s_lshl_b32 s{sMT}, s3, 2", "s_bfe_u32 s3, s2, 0x20003", f"s_add_u32 s{sMT}, s{sMT}, s3",
      "s_bfe_u32 s3, s2, 0x20001", f"s_lshl_b32 s{sIDX}, s3, 2", "s_bfe_u32 s3, s2, 0x20005", f"s_add_u32 s{sIDX}, s{sIDX}, s3",
      f"s_lshr_b32 s{sTH}, s{sW}, 1", f"s_and_b32 s{sNH}, s{sW}, 1", f"s_bfe_u32 s{sTY}, s2, 0x10007")
    a("s_and_b32 s3, s2, 3", f"s_lshl_b32 s{sMT2}, s3, 2", "s_bfe_u32 s3, s2, 0x20003", f"s_add_u32 s{sMT2}, s{sMT2}, s3",
      "s_bfe_u32 s3, s2, 0x10002", f"s_lshl_b32 s{sNT2}, s3, 2", "s_bfe_u32 s3, s2, 0x20005", f"s_add_u32 s{sNT2}, s{sNT2}, s3")
    if OPT.get("exp", 0) & 16: a(f"s_and_b32 s{sMT2}, s{sMT2}, 12")
    if OPT.get("exp", 0) & 32: a(f"s_and_b32 s{sNT2}, s{sNT2}, 4")
    a(f"s_lshl_b32 s3, s{sTY}, 4", f"s_add_u32 s3, s3, s{sIDX}", "s_lshl_b32 s3, s3, 14", f"s_lshl_b32 s4, s{sW}, 12", "s_add_u32 s3, s3, s4",
      f"v_lshl_add_u32 v199, v{vL}, 4, s3")
    a(f"v_lshrrev_b32 v{vT}, 3, v{vL}", f"s_lshl_b32 s3, s{sW}, 6", f"v_add_u32 v{vT}, s3, v{vT}", f"v_lshlrev_b32 v{vT}, 11, v{vT}",
      f"v_lshrrev_b32 v{vT+1}, 4, v{vL}", f"v_and_b32 v{vT+2}, 7, v{vL}", f"v_xor_b32 v{vT+1}, v{vT+1}, v{vT+2}",
      f"v_lshl_add_u32 v{vAoff}, v{vT+1}, 4, v{vT}", f"v_xor_b32 v{vT+3}, 64, v{vAoff}")
    for i in range(1, 8):
        a(f"v_add_u32 v{vAoff+i}, {i*16384-(i&3)*1024}, v{vAoff if i % 2 == 0 else vT+3}")
    a(f"v_and_b32 v{vT}, 15, v{vL}", f"s_lshl_b32 s3, s{sTH}, 7", f"v_add_u32 v{vT}, s3, v{vT}", f"v_lshlrev_b32 v{vT}, 7, v{vT}",
      f"v_lshrrev_b32 v{vT+1}, 4, v{vL}", f"v_bfe_u32 v{vT+2}, v{vL}, 1, 3", f"v_xor_b32 v{vT+1}, v{vT+1}, v{vT+2}",
      f"v_lshl_add_u32 v{vXa}, v{vT+1}, 4, v{vT}", f"v_xor_b32 v{vXa+1}, 64, v{vXa}")
    a("s_waitcnt lgkmcnt(0)")
    a(f"s_lshl_b32 s3, s{sMT}, 19")
    a(srd(sA, sP + 0, "s3", 256 * 2048))
    a(srd(sHO, sP + 18, WS_HO, HO_SIZE), srd(sFL, sP + 18, WS_FLAG, FLAG_SIZE), srd(sSM, sP + 18, WS_SM, SM_SIZE), srd(sDBG, sP + 16, 0, 256))
    if OPT["stamp"]:
        a(srd(84, sP + 18, WS_STAMP + 0x40000, 0x60000))
        a("s_lshl_b32 s3, s2, 2", f"s_add_u32 s3, s3, s{sW}", "s_lshl_b32 s3, s3, 7", "v_mov_b32 v253, s3")
        a(stamp(0))
    a(f"s_cmp_eq_u32 s{sTY}, 1", "s_cbranch_scc1 L1_ffn")
    ool = role_qkv(a)
    phase2(a)
    a(ool)
    role_ffn(a)
    a.label("L_end")
    a("s_endpgm")
    return a

def pre_kernel(mask):
    a = Asm()
    a.label("pre_kernel")
    a("s_cmp_ge_u32 s2, 256", "s_cbranch_scc1 pre_end")
    regs = []
    if mask & 2: regs += [(0, 0, 1 << 22), (1, 0, 1024 * 6144), (5, 0, 1024 * 7168)]
    if mask & 4: regs += [(6, 0, 3584 * 2048), (3, 0, 1 << 21)]
    if mask & 8: regs += [(9, WS_HO, HO_SIZE), (9, WS_KV, 0x400000), (9, WS_PART, PART_SIZE), (7, 0, 1 << 22)]
    for pi, off, size in regs:
        a(f"s_load_dwordx2 s[4:5], s[0:1], {8*pi}", "s_waitcnt lgkmcnt(0)", srd(8, 4, off, size))
        per = size // 256
        sh = 7 if not (mask & 16) else 12
        a(f"s_mul_i32 s3, s2, {per}", f"v_lshlrev_b32 v1, {sh}, v0", "v_add_u32 v1, s3, v1")
        for i in range(-(-per // (256 << sh))):
            a("buffer_load_dword v4, v1, s[8:11], 0 offen", f"v_add_u32 v1, {hex(256 << sh)}, v1")
    if mask & 1:
        a("s_getpc_b64 s[4:5]", "pre_pc:", f"s_sub_u32 s4, s4, pre_pc-{KNAME}", "s_subb_u32 s5, s5, 0", "v_lshlrev_b32 v1, 7, v0")
        for i in range(3):
            a(f"v_min_u32 v2, L_end-{KNAME}, v1", "global_load_dword v4, v2, s[4:5]", "v_add_u32 v1, 0x8000, v1")
    a("s_waitcnt vmcnt(0)")
    a.label("pre_end")
    a("s_endpgm")
    return a

def build():
    a = kernel()
    a.lines = autonop(a.lines)
    bad = check_hazards(a.lines)
    for p in bad:
        print("HAZARD", p, file=sys.stderr)
    out = ["; generated by gen/gen4.py: one persistent kernel, 256 workgroups (one per CU)",
           f"; @launch grid=(256,1,1) block=(256,1,1) lds={LDS_SIZE}",
           '.amdgcn_target "amdgcn-amd-amdhsa--gfx950"', ".text", f".globl {KNAME}", ".p2align 8", f".type {KNAME},@function", a.text(),
           '.section .rodata,"a"', ".p2align 6", f""".amdhsa_kernel {KNAME}
  .amdhsa_next_free_vgpr 480
  .amdhsa_next_free_sgpr 102
  .amdhsa_accum_offset 256
  .amdhsa_group_segment_fixed_size 0
  .amdhsa_kernarg_size 80
  .amdhsa_user_sgpr_count 2
  .amdhsa_user_sgpr_kernarg_segment_ptr 1
  .amdhsa_system_sgpr_workgroup_id_x 1
  .amdhsa_float_denorm_mode_32 3
.end_amdhsa_kernel
"""]
    if "pre" in OPT:
        out[1] = f"; @launch kernel=pre_kernel grid=(256,1,1) block=(256,1,1) lds=0\n; @launch kernel={KNAME} grid=(256,1,1) block=(256,1,1) lds={LDS_SIZE}"
        out[7] += ".globl pre_kernel\n.p2align 8\n.type pre_kernel,@function\n" + pre_kernel(OPT["pre"]).text()
        out.append(".p2align 6\n" + out[-1].replace(KNAME, "pre_kernel").replace("vgpr 480", "vgpr 64").replace("offset 256", "offset 64"))
    return "\n".join(out), len(bad)

if __name__ == "__main__":
    dst = f"cdna_kernels/{NAME}.s"
    for arg in sys.argv[1:]:
        k, v = arg.split("=")
        if k == "out": dst = v
        else: OPT[k] = int(v)
    txt, bad = build()
    open(dst, "w").write(txt)
    print("wrote", dst, len(txt), "bytes; hazards:", bad)
```

```python
import sys, os
sys.path.insert(0, os.path.dirname(os.path.abspath(__file__)))
from asmlib import *

NAME = "recurrent_scan__linear_kernel_hedgehog__dense_activation_silu__prompt"
KNAME = NAME + "_kernel"
WS_HO = 0x400000
HO_TB = 144 * 1024
HO_SIZE = 128 * HO_TB
WS_KV = 0x1600000; KV_SIZE = 32 * 2 * 8 * 4096
WS_SM = 0x1800000; SM_SIZE = 0x72000; SM_Z = 0; SM_ST = 0x52000; SM_CS = 0x12000
WS_FLAG = 0x1900000; FLAG_SIZE = 0x8000
FL_KV, FL_PART, FL_H, FL_O = 0, 0x2000, 0x6000, 0x6400
WS_PART = 0x1A00000; PART_SIZE = 128 * 65536
WS_STAMP = 0x3000000
LOG2E, NLOG2E, NLN2 = 0x3fb8aa3b, 0xbfb8aa3b, 0xbf317218
OPT = dict(stamp=0, pf=1, pfl=32, kw2=3, ka=56, rot=1, ctouch=1)

G1_SLOT = 36864; G2 = 3 * G1_SLOT; G2_SLOT = 12288
LDS_TOP = G2 + 4 * G2_SLOT
L_CS, L_M, L_R, L_D = LDS_TOP, LDS_TOP + 1024, LDS_TOP + 2048, LDS_TOP + 3072
LDS_SIZE = 163840
sA, sB, sHO, sU, sV = 8, 12, 16, 20, 24
sW, sTH, sNH = 28, 29, 30
sSoffA, sSoffB, sSoffH, sRd, sWr, sDelta, sM0A, sM0B, sCnt, sMT, sIDX = 31, 32, 33, 34, 35, 36, 37, 38, 39, 40, 41
sT0 = 42; sK = 46
sP = 48
sE = 68
sFL, sPoll, sTY, sMT2, sNT2 = 76, 80, 81, 82, 83
sDI, sDI1 = 88, 89
sSM, sDBG = 92, 96
sST = 100
vAoff, vBoff, vBh, vXa, vWa, vWh = 224, 232, 235, 236, 238, 240
vT = 241
vXb, vWhb = 241, 243
vPF = 250
vL = 255
F0 = 192
SETREG = 60
aWP, aCS, aONE, aX = 120, 156, 128, 160

def srd(s, base, off, size):
    o = []
    if isinstance(off, str):
        o += [f"s_add_u32 s{s}, s{base}, {off}", f"s_addc_u32 s{s+1}, s{base+1}, 0"]
    elif off == 0:
        o += [f"s_mov_b32 s{s}, s{base}", f"s_mov_b32 s{s+1}, s{base+1}"]
    elif off < 0:
        o += [f"s_sub_u32 s{s}, s{base}, {-off}", f"s_subb_u32 s{s+1}, s{base+1}, 0"]
    else:
        o += [f"s_add_u32 s{s}, s{base}, {hex(off)}", f"s_addc_u32 s{s+1}, s{base+1}, 0"]
    return o + [f"s_mov_b32 s{s+2}, {hex(size)}", f"s_mov_b32 s{s+3}, 0x20000"]

DBGMAP = {2: 1, 3: 2, 5: 3, 10: 4, 12: 5, 13: 6}
def stamp(idx):
    if OPT.get("dstamp"):
        if idx in DBGMAP:
            return [f"s_memrealtime s[{sST}:{sST+1}]", "s_waitcnt lgkmcnt(0)", f"v_writelane_b32 v254, s{sST}, {DBGMAP[idx]}"]
        if idx == 14:
            return ["s_waitcnt vmcnt(0)", f"s_memrealtime s[{sST}:{sST+1}]", "s_waitcnt lgkmcnt(0)", f"v_writelane_b32 v254, s{sST}, 7",
                    f"v_lshrrev_b32 v253, 3, v{vL}", f"v_add_u32 v253, s{sW}, v253", f"s_xor_b32 s3, s{sTY}, {OPT['dstamp'] & 1}", "v_add_u32 v253, s3, v253",
                    "v_lshlrev_b32 v253, 12, v253", f"v_lshl_add_u32 v253, v{vL}, 2, v253",
                    f"buffer_atomic_umax v254, v253, s[{sDBG}:{sDBG+3}], 0 offen offset:32 sc1"]
        return []
    if not OPT["stamp"]:
        return []
    return [f"s_memrealtime s[{sST}:{sST+1}]", "s_waitcnt lgkmcnt(0)", f"v_mov_b32 v254, s{sST}",
            f"buffer_store_dword v254, v253, s[84:87], 0 offen offset:{idx*4}",
            f"s_memtime s[{sST}:{sST+1}]", "s_waitcnt lgkmcnt(0)", f"v_mov_b32 v254, s{sST}",
            f"buffer_store_dword v254, v253, s[84:87], 0 offen offset:{64+idx*4}"]

def resolve(traces):
    cnt = {}
    for dyn in traces:
        issued = []
        for it in dyn:
            if isinstance(it, tuple) and it[0] == "vm":
                issued.append(it[2])
            elif isinstance(it, tuple) and it[0] == "wait":
                idx = [i for i, tg in enumerate(issued) if tg in it[2]]
                for tg in it[2]:
                    assert tg in issued, (it, tg)
                cnt[it[1]] = min(cnt.get(it[1], 63), len(issued) - 1 - max(idx))
    return cnt

def render(items, cnt):
    out = []
    for it in items:
        if isinstance(it, tuple):
            if it[0] == "vm":
                out.append(it[1])
            else:
                lg = " lgkmcnt(0)" if len(it) < 4 else "" if it[3] < 0 else f" lgkmcnt({it[3]})"
                out.append(f"s_waitcnt vmcnt({cnt[it[1]]})" + lg)
        else:
            out.append(it)
    return out

def flat(x):
    o = []
    for it in x:
        o.extend(it if isinstance(it, list) else [it])
    return o

def poll(label, dst, addr, srdreg, target, cmp="lt"):
    return [f"s_mov_b32 s{sPoll}, 0", f"{label}:", f"buffer_load_dword v{dst}, v{addr}, s[{srdreg}:{srdreg+3}], 0 offen sc1", "s_waitcnt vmcnt(0)",
            f"v_readfirstlane_b32 s3, v{dst}", f"s_add_u32 s{sPoll}, s{sPoll}, 1", f"s_cmp_ge_u32 s{sPoll}, 0x40000", f"s_cbranch_scc1 {label}_ok",
            f"s_cmp_lt_u32 s3, {target}", f"s_cbranch_scc1 {label}", f"{label}_ok:"]

def acc_reg(ffn, ng, tb):
    if ffn:
        return ("v", (tb * 6 + ng) * 4) if ng < 6 else ("a", aX + tb * 4)
    return ("v", (ng >> 1) * 64 + tb * 8 + (ng & 1) * 4)

def xrows():
    return [f"buffer_load_dwordx4 {vr(200+8*r+4*h,4)}, v199, s[{sA}:{sA+3}], 0 offen offset:{r*2048+h*1024}" for r in range(2) for h in range(2)]

def place(nm, reads, main, side):
    fill = {}
    nr = len(reads)
    spread(reads, list(range(nr)), fill)
    load = [1 if g < nr else 0 for g in range(nm)]
    k = len(main)
    lo = nr if k <= nm - nr else max(0, nm - k)
    for i, it in enumerate(main):
        g = lo + (i * (nm - lo)) // k
        fill.setdefault(g, []).extend(it if isinstance(it, list) else [it]); load[g] += 2
    k = len(side)
    if k:
        order = sorted(range(1, nm), key=lambda g: (load[g], -g))
        gaps = []
        while len(gaps) < k:
            gaps += order[:k - len(gaps)]
        free = [g for g in range(1, nm) if load[g] == 0]
        if k <= len(free):
            gaps = [free[(i * len(free)) // k] for i in range(k)]
        for it, g in zip(side, sorted(gaps)):
            fill.setdefault(g, []).extend(it if isinstance(it, list) else [it])
    return fill

def phase1(a, ffn, tail_side):
    tag = "F" if ffn else "Q"
    RS = 7168 if ffn else 6144
    ngs = 7 if ffn else 6
    nm = ngs * 8
    PF, PFL = OPT["pf"], OPT["pfl"]
    chunk = PFL * 128
    nown = OPT.get("nown", 0)
    nw2 = -(-(3584 * 2048) // (1024 * chunk))
    def R(k, n): return vr(k[1], n) if k[0] == "v" else ar(k[1], n)
    def mfmas(s):
        base = (s & 1) * SETREG
        out = []
        for ng in range(ngs):
            for tb in range(8):
                X = ar(base + tb * 4, 4); W = ar(base + 32 + ng * 4, 4); D = R(acc_reg(ffn, ng, tb), 4)
                C = "0" if s == 0 else D
                if (not ffn) and ng >= 4:
                    out.append(f"v_mfma_f32_16x16x32_bf16 {D}, {X}, {W}, {C}")
                else:
                    out.append(f"v_mfma_f32_16x16x32_bf16 {D}, {W}, {X}, {C}")
        return out
    def reads(u):
        base = (u & 1) * SETREG
        j = u & 1; slot = u & 3; g1 = (u >> 1) % 3
        xa, wh, o1 = (vXa + j, vWh, g1 * G1_SLOT) if g1 < 2 else (vXb + j, vWhb, 0)
        xs = [f"ds_read_b128 {ar(base+tb*4,4)}, v{xa} offset:{o1+tb*2048}" for tb in range(8)]
        ws = []
        for ng in range(ngs):
            for jj in range(2):
                dst = ar(base + 32 + ng * 4 + jj * 2, 2)
                if ng < 6:
                    ws.append(f"ds_read_b64_tr_b16 {dst}, v{vWa+(ng&1)} offset:{slot*G2_SLOT+(ng>>1)*1024+jj*512}")
                else:
                    ws.append(f"ds_read_b64_tr_b16 {dst}, v{wh} offset:{o1+j*2048+jj*256}")
        return ws[:2] + xs + ws[2:]
    def dma_B(u):
        out = [f"s_add_u32 m0, s{sM0B}, {(u&3)*G2_SLOT}"]
        out += [("vm", f"buffer_load_dwordx4 v{vBoff+b}, s[{sB}:{sB+3}], s{sSoffB} offen offset:{b*1024} lds", ("B", u)) for b in range(3)]
        if u < 31:
            out.append(f"s_mov_b32 s{sSoffB}, s{sT0+3}" if u == 15 else f"s_add_u32 s{sSoffB}, s{sSoffB}, {32*RS}")
        return out
    def dma_A(t, half):
        out = [f"s_add_u32 m0, s{sM0A}, {(t%3)*G1_SLOT+half*4096}"]
        out += [("vm", f"buffer_load_dwordx4 v{vAoff+half*4+i}, s[{sA}:{sA+3}], s{sSoffA} offen offset:{i*1024} lds", ("A", t)) for i in range(4)]
        if half and ffn:
            out += [f"s_add_u32 m0, s{sT0}, {(t%3)*G1_SLOT}", ("vm", f"buffer_load_dwordx4 v{vBh}, s[{sB}:{sB+3}], s{sSoffH} offen lds", ("A", t))]
            if t < 15:
                out.append(f"s_mov_b32 s{sSoffH}, s{sT0+3}" if t == 7 else f"s_add_u32 s{sSoffH}, s{sSoffH}, {64*RS}")
        if half and t < 15:
            out.append(f"s_mov_b32 s{sSoffA}, s{sT0+2}" if t == 7 else f"s_add_u32 s{sSoffA}, s{sSoffA}, 128")
        return out
    def window(u):
        o = dma_B(u + 3) if 0 <= u + 3 < 32 else []
        t = (u >> 1) + 2
        return o + (dma_A(t, u & 1) if t < 16 else [])
    def touch(k):
        o = []
        if 0 < k < nown: o = [f"s_add_u32 s{sV}, s{sV}, {256*chunk}"]
        if k == nown: o = [f"s_mov_b32 s{sU}, s{sP+12}", f"s_mov_b32 s{sU+1}, s{sP+13}", f"s_mov_b32 s{sU+2}, {hex(3584*2048)}", f"s_mov_b32 s{sV}, s{sV+2}"]
        if nown < k < nown + nw2: o = [f"s_add_u32 s{sV}, s{sV}, {1024*chunk}"]
        if k == nown + nw2: o = [f"s_mov_b32 s{sU}, s{sP+6}", f"s_mov_b32 s{sU+1}, s{sP+7}", f"s_mov_b32 s{sU+2}, {hex(1024*2048)}", f"s_mov_b32 s{sV}, s{sV+2}"]
        return o + [("vm", f"buffer_load_dword v{vPF+1}, v{vPF}, s[{sU}:{sU+3}], s{sV} offen", ("pf", k))]
    vTA, vTB = 247, 252
    def xtouch(b):
        return [f"s_xor_b32 s6, s{sT0+2}, {1024 if b < 4 else 0}" , f"s_add_u32 s6, s6, {(b&3)*256}",
                ("vm", f"buffer_load_dword v{vPF+1}, v{vTA}, s[{sA}:{sA+3}], s6 offen", ("xa", b)),
                f"s_add_u32 s6, s{sT0+1 if b < 4 else sT0+3}, {(b&3)*128*RS}",
                ("vm", f"buffer_load_dword v{vPF+1}, v{vTB}, s[{sB}:{sB+3}], s6 offen", ("xb", b))]
    tsteps = [OPT.get("t0", 1) + OPT.get("town", 4) * k for k in range(nown)] + [OPT.get("tw0", 13) + OPT.get("tw", 4) * k for k in range(nw2 + 1)]
    vCSo, vSig, vOne, vSig2, vG, vF = F0, F0 + 1, F0 + 2, F0 + 3, F0 + 4, F0 + 3
    ool = []
    def needs(u):
        return [("B", u)] + ([("A", u >> 1)] if u % 2 == 0 else [])
    def cond(name, val, body):
        ool.extend([f"L1{tag}_{name}:"] + body + [f"s_branch L1{tag}_{name}_r"])
        return [f"s_cmp_eq_u32 s{sDI}, {val}", f"s_cbranch_scc1 L1{tag}_{name}", f"L1{tag}_{name}_r:"]
    RAW = [200, 208]; HI = 216; s0, t0 = 244, 245; M = 246; RES = 248
    def row_stats(r):
        raw = RAW[r]
        def allsum():
            o = [f"v_add_f32 v{s0}, v{s0}, v{t0}"]
            for pat in ("quad_perm:[1,0,3,2]", "quad_perm:[2,3,0,1]", "row_half_mirror", "row_mirror"):
                o.append(f"v_add_f32_dpp v{s0}, v{s0}, v{s0} {pat} row_mask:0xf bank_mask:0xf")
            for pl in ("v_permlane16_swap_b32", "v_permlane32_swap_b32"):
                o += [f"v_mov_b32 v{t0}, v{s0}", f"{pl} v{s0}, v{t0}", f"v_add_f32 v{s0}, v{s0}, v{t0}"]
            return o
        rnd = [f"v_cvt_pk_bf16_f32 v{s0}, v{s0}, v{s0}", f"v_and_b32 v{s0}, 0xffff0000, v{s0}"]
        o = []
        for i in range(8):
            o += [f"v_and_b32 v{HI+i}, 0xffff0000, v{raw+i}", f"v_lshlrev_b32 v{raw+i}, 16, v{raw+i}"]
        o += [f"v_add_f32 v{s0}, v{raw}, v{raw+1}", f"v_add_f32 v{t0}, v{HI}, v{HI+1}"]
        for i in range(2, 8):
            o += [f"v_add_f32 v{s0}, v{s0}, v{raw+i}", f"v_add_f32 v{t0}, v{t0}, v{HI+i}"]
        o += allsum() + [f"v_mul_f32 v{M}, 0x3a800000, v{s0}"]
        for i in range(8):
            o += [f"v_sub_f32 v{raw+i}, v{raw+i}, v{M}", f"v_sub_f32 v{HI+i}, v{HI+i}, v{M}"]
        o += [f"v_mul_f32 v{s0}, v{raw}, v{raw}", f"v_mul_f32 v{t0}, v{HI}, v{HI}"]
        for i in range(1, 8):
            o += [f"v_fmac_f32 v{s0}, v{raw+i}, v{raw+i}", f"v_fmac_f32 v{t0}, v{HI+i}, v{HI+i}"]
        o += allsum() + [f"v_mul_f32 v{s0}, 0x3a800000, v{s0}"] + rnd + [f"v_add_f32 v{s0}, 0x3727c5ac, v{s0}"] + rnd
        return o + [f"v_sqrt_f32 v{s0}, v{s0}", f"v_lshrrev_b32 v{t0}, 3, v{vL}", f"v_cvt_pk_bf16_f32 v{RES+r}, v{M}, v{s0}"]
    stats = row_stats(0) + row_stats(1) + [f"v_lshlrev_b32 v{t0}, 20, v{t0}", f"v_lshl_add_u32 v{t0}, v{vL}, 4, v{t0}",
             ("vm", f"buffer_store_dwordx4 {vr(RES,4)}, v{t0}, s[{sSM}:{sSM+3}], s{sE+6} offen sc1", ("st",))]
    XS = OPT.get("xs", 1); ST0 = OPT.get("st0", 4); ST1 = OPT.get("st1", 10); SG = OPT.get("sg", 2)
    nst = ST1 - ST0 + 1
    def step(s):
        u = s + 1
        front, side, more = [], [], []
        main = window(-1) + window(0) if s == 0 else window(1) + window(2) if s == 1 else window(u) if s < 31 else []
        if PF and s in tsteps:
            t = touch(tsteps.index(s)); side += t[:-1]; main += t[-1:]
        if s < 16:
            base = (s & 1) * SETREG
            side.append(cond(f"d{s}", s >> 2, [f"v_mfma_f32_16x16x32_bf16 {ar(aCS,4)}, {ar(base+32+ng*4,4)}, {ar(aONE+4*ng,4)}, {'0' if s & 3 == 0 and ng == 0 else ar(aCS,4)}" for ng in range(ngs)]))
        if XS <= s < XS + 2:
            main += [("vm", x, ("xr", s - XS)) for x in xrows()[2 * (s - XS):2 * (s - XS) + 2]]
        if s == ST0:
            more.append(("xr", 0))
        if s == ST0 + nst // 2 - 1:
            more.append(("xr", 1))
        if ST0 <= s <= ST1:
            side += stats[((s - ST0) * len(stats)) // nst:((s - ST0 + 1) * len(stats)) // nst]
        def sel(k, sreg):
            return [[f"s_cmp_eq_u32 s{sDI}, {k}", f"s_cselect_b32 s4, {sreg}, s5"]]
        if s in (4, 8, 12, 16):
            main = sel(s // 4 - 1, f"s{sE+7}") + [("vm", f"buffer_store_dwordx4 {ar(aCS,4)}, v{vCSo}, s[{sSM}:{sSM+3}], s4 offen sc1", ("pub", s))] + main
        if s in (6, 10, 14, 18):
            more.append(("pub", s - 2))
            main = sel(s // 4 - 1, "0") + [("vm", f"buffer_atomic_add v{vOne}, v{vSig2}, s[{sDBG}:{sDBG+3}], s4 offen sc1", ("s2", s))] + main
        if ST1 + SG <= s <= ST1 + SG + 3:
            if s == ST1 + SG:
                more.append(("st",))
            main = sel(s - ST1 - SG, "0") + [("vm", f"buffer_atomic_add v{vOne}, v{vSig}, s[{sDBG}:{sDBG+3}], s4 offen sc1", ("s1", s))] + main
        XT = OPT.get("xt", 8)
        if XT and (s + XT) % 4 == 0 and (s + XT) // 4 < 8:
            main += xtouch((s + XT) // 4)
        if s == 23:
            side += [f"v_min_u32 v{vG}, 8, v{vL}", f"s_lshl_b32 s3, s{sTY}, 4", f"s_add_u32 s3, s3, s{sIDX}", "s_add_u32 s3, s3, 24", f"v_lshrrev_b32 v{vG+1}, 3, v{vG}",
                     f"v_mad_u32_u24 v{vG}, v{vG+1}, s3, v{vG}", f"v_mul_u32_u24 v{vG+1}, 24, v{vG+1}", f"v_lshlrev_b32 v{vG}, 2, v{vG}", f"v_sub_u32 v{vG+1}, 32, v{vG+1}"]
        if s == 24:
            main.append(("vm", f"buffer_load_dword v{vF}, v{vG}, s[{sDBG}:{sDBG+3}], 0 offen sc1", ("F",)))
        if s == 27:
            more.append(("F",))
            ool.extend([f"L1{tag}_sp0:", f"s_mov_b32 s{sPoll}, 0", f"L1{tag}_sp:",
                        f"buffer_load_dword v{vF}, v{vG}, s[{sDBG}:{sDBG+3}], 0 offen sc1", "s_waitcnt vmcnt(0)", f"v_cmp_gt_u32 vcc, v{vG+1}, v{vF}",
                        f"s_add_u32 s{sPoll}, s{sPoll}, 1", f"s_cmp_ge_u32 s{sPoll}, 0x40000", f"s_cbranch_scc1 L1{tag}_sok",
                        "s_nop 2", f"s_cbranch_vccz L1{tag}_sok", "s_sleep 8", f"s_branch L1{tag}_sp"])
            front = [[f"v_cmp_gt_u32 vcc, v{vG+1}, v{vF}"], [f"s_lshl_b32 s{sE+6}, s{sW}, 8"], ["s_nop 0"],
                     [f"s_cbranch_vccnz L1{tag}_sp0", f"L1{tag}_sok:"], [f"v_lshl_add_u32 v{vF}, v{vL}, 2, s{sE+6}"]]
            main += [f"v_and_b32 v{vG+8}, 4, v{vF}", f"v_and_b32 v{vG+7}, -8, v{vF}", f"v_lshl_add_u32 v{vG+8}, v{vG+7}, 4, v{vG+8}"]
            main.append(("vm", f"buffer_load_dword v{vG+8}, v{vG+8}, s[{sSM}:{sSM+3}], s{sE+4} offen sc1", ("G",)))
            for m_ in range(8):
                main.append(("vm", f"buffer_load_dword v{vG+m_}, v{vF}, s[{sSM}:{sSM+3}], s{sE+5} offen offset:{(m_&3)*1024} sc1", ("G",)))
                if m_ == 3: main.append(f"s_add_u32 s{sE+5}, s{sE+5}, 4096")
        if s == 29:
            main += [[("wait", "G", [("G",)], -1), f"v_add_f32 v{vG}, v{vG}, v{vG+1}"], f"v_add_f32 v{vG+2}, v{vG+2}, v{vG+3}",
                     f"v_add_f32 v{vG+4}, v{vG+4}, v{vG+5}", f"v_add_f32 v{vG+6}, v{vG+6}, v{vG+7}",
                     f"v_add_f32 v{vG}, v{vG}, v{vG+2}", f"v_add_f32 v{vG+4}, v{vG+4}, v{vG+6}",
                     f"v_and_b32 v{vG+2}, 0xffff0000, v{vG+8}", f"v_add_f32 v{vG}, v{vG}, v{vG+4}",
                     f"v_rcp_f32 v{vG+2}, v{vG+2}", f"v_lshlrev_b32 v{vG+1}, 16, v{vG+8}",
                     f"v_add_u32 v{vF}, {LDS_TOP}, v{vF}", f"ds_write_b32 v{vF}, v{vG}", f"ds_write_b32 v{vF}, v{vG+1} offset:1024",
                     f"ds_write_b32 v{vF}, v{vG+2} offset:2048", f"v_lshrrev_b32 v{vF}, 1, v{vF}",
                     f"v_add_u32 v{vF}, {L_D - LDS_TOP // 2}, v{vF}", f"ds_write_b16_d16_hi v{vF}, v{vG+8}"]
        if s >= 28:
            main += tail_side(s)
        fill = place(nm, front + (reads(u) if s < 31 else []), main, side)
        fill[-1] = ["s_waitcnt lgkmcnt(0)", "s_barrier"] if s == 31 else [("wait", s, needs(u) + more), "s_barrier"]
        if OPT.get("sstamp"):
            fill[-1] += ([f"v_writelane_b32 v254, s{sST}, {s-1}"] if s else []) + [f"s_memtime s[{sST}:{sST+1}]"]
        return weave(mfmas(s), fill)

    a(f"s_lshl_b32 s{sT0}, s{sW}, 10", f"s_add_u32 s{sT0}, s{sT0}, 32768", f"s_lshl_b32 s{sM0A}, s{sW}, 13",
      f"s_mul_i32 s{sM0B}, s{sW}, 3072", f"s_add_u32 s{sM0B}, s{sM0B}, {G2}", f"s_lshr_b32 s3, s{sMT}, 2",
      f"s_lshl_b32 s{sSoffA}, s3, 10", f"s_mul_i32 s{sSoffB}, s3, {512*RS}", f"s_mov_b32 s{sSoffH}, s{sSoffB}",
      f"s_xor_b32 s{sT0+2}, s{sSoffA}, 1024", f"s_mov_b32 s{sT0+1}, s{sSoffB}", "s_mov_b32 s5, 0x40000000", f"s_sub_u32 s{sT0+3}, {512*RS}, s{sSoffB}")
    pro = window(-4) + window(-3) + window(-2)
    if OPT.get("xt", 8):
        pro += [f"s_and_b32 s3, s{sIDX}, 3", f"s_lshl_b32 s4, s{sTY}, 2", "s_add_u32 s3, s3, s4", "s_lshl_b32 s3, s3, 2", f"s_add_u32 s3, s3, s{sW}", "s_lshl_b32 s3, s3, 14",
                f"v_lshrrev_b32 v2, 1, v{vL}", f"v_lshlrev_b32 v{vTA}, 11, v2", f"v_and_b32 v2, 1, v{vL}", f"v_lshl_add_u32 v{vTA}, v2, 7, v{vTA}",
                f"v_lshrrev_b32 v2, 4, v{vL}", f"v_lshl_add_u32 v{vTA}, v2, 28, v{vTA}", f"v_add_u32 v{vTA}, s3, v{vTA}",
                f"s_and_b32 s3, s{sMT}, 3", "s_lshl_b32 s3, s3, 2", f"s_add_u32 s3, s3, s{sW}", f"s_mul_i32 s3, s3, {8*RS}",
                f"v_lshrrev_b32 v2, 2, v{vL}", f"v_mul_u32_u24 v{vTB}, {RS}, v2", f"v_and_b32 v2, 3, v{vL}", f"v_lshl_add_u32 v{vTB}, v2, {7 if ffn else 11}, v{vTB}"]
        if ffn:
            pro += [f"s_mul_i32 s4, s{sIDX}, 448", "s_and_b32 s4, s4, -128", f"v_lshrrev_b32 v2, 5, v{vL}"]
        else:
            pro += [f"s_lshl_b32 s4, s{sIDX}, 7", "v_add_u32 v2, 1, v2", "v_lshrrev_b32 v2, 2, v2", f"v_lshrrev_b32 v3, 5, v{vL}", "v_or_b32 v2, v2, v3"]
        pro += ["s_add_u32 s3, s3, s4", "s_add_u32 s3, s3, 4096", f"v_lshl_add_u32 v{vTB}, v2, 28, v{vTB}", f"v_add_u32 v{vTB}, s3, v{vTB}"]
        for b in range(OPT.get("xt0", 0), (OPT.get("xt", 8) + 3) // 4):
            pro += xtouch(b)
    pro += [f"v_add_u32 v{vXb}, {2*G1_SLOT}, v{vXa}", f"v_add_u32 v{vXb+1}, {2*G1_SLOT}, v{vXa+1}"] + ([f"v_add_u32 v{vWhb}, {2*G1_SLOT}, v{vWh}"] if ffn else [])
    pro += [f"v_mov_b32 v{28+i}, 0" for i in range(4)]
    pro += [f"v_lshrrev_b32 v2, 3, v0", "v_lshlrev_b32 v2, 20, v2", "v_and_b32 v3, 7, v0", "v_lshl_add_u32 v2, v3, 4, v2", "s_lshl_b32 s3, s2, 7",
            ("vm", f"buffer_store_dwordx4 v[28:31], v2, s[{sFL}:{sFL+3}], s3 offen sc1", ("z",))]
    pro += [f"s_lshl_b32 s3, s{sTY}, 4", f"s_add_u32 s3, s3, s{sIDX}", f"s_lshl_b32 s{sE+5}, s3, 13", f"s_add_u32 s{sE+5}, s{sE+5}, {SM_CS}",
            f"s_lshl_b32 s{sE+7}, s{sMT}, 10", f"s_add_u32 s{sE+7}, s{sE+7}, s{sE+5}", f"s_lshl_b32 s{sE+4}, s{sMT}, 14", f"s_add_u32 s{sE+4}, s{sE+4}, {SM_ST}", f"s_and_b32 s{sDI}, s{sMT}, 3",
            "s_lshl_b32 s3, s3, 9", f"s_add_u32 s3, s3, s{sE+4}", f"s_lshl_b32 s{sE+6}, s{sW}, 7", f"s_add_u32 s{sE+6}, s{sE+6}, s3"]
    if OPT.get("pretouch", 0):
        pro += [f"v_lshlrev_b32 v2, 7, v{vL}", f"v_add_u32 v2, s{sE+7}, v2", f"v_mov_b32 v3, s{sE+6}", f"v_cmp_gt_u32 vcc, 8, v{vL}", "v_cndmask_b32 v2, v3, v2, vcc"]
        if not ffn:
            pro += [f"s_lshl_b32 s3, s{sIDX}, 2", f"s_lshl_b32 s4, s{sNH}, 1", "s_add_u32 s3, s3, s4", f"s_add_u32 s3, s3, s{sTH}", "s_lshl_b32 s3, s3, 3",
                    f"s_add_u32 s3, s3, s{sMT}", "s_lshl_b32 s3, s3, 7", f"s_add_u32 s3, s3, {SM_Z}", "v_mov_b32 v3, s3", f"v_cmp_gt_u32 vcc, 32, v{vL}", "v_cndmask_b32 v2, v3, v2, vcc"]
        pro += [("vm", f"buffer_load_dword v{vPF+1}, v2, s[{sSM}:{sSM+3}], 0 offen", ("pt",))]
    if PF:
        pro += [f"s_mov_b32 s{sU}, s{sB}", f"s_mov_b32 s{sU+1}, s{sB+1}", f"s_mov_b32 s{sU+2}, s{sB+2}", f"s_mov_b32 s{sU+3}, 0x20000",
                f"s_lshr_b32 s3, s{sMT}, 2", f"s_mul_i32 s{sV}, s3, {512*RS}", f"s_add_u32 s{sV}, s{sV}, {4096+128*RS}",
                f"s_add_u32 s3, s3, {2 if ffn else 0}", f"s_mul_i32 s{sV+2}, s3, {256*chunk}",
                f"s_lshl_b32 s3, s{sIDX}, 2", f"s_add_u32 s3, s3, s{sDI}",
                "s_lshl_b32 s3, s3, 2", f"s_add_u32 s3, s3, s{sW}", f"s_mul_i32 s3, s3, {chunk}", f"v_lshlrev_b32 v{vPF}, 7, v{vL}"]
        if PFL < 64:
            pro += [f"v_lshrrev_b32 v3, {PFL.bit_length()-1}, v{vL}", f"v_lshl_add_u32 v{vPF}, v3, 28, v{vPF}"]
        pro += [f"v_add_u32 v{vPF}, s3, v{vPF}"]
    pro += [f"v_and_b32 v3, 15, v{vL}", "v_mov_b32 v4, 0x3f803f80"]
    for ng in range(ngs):
        pro += [f"v_cmp_eq_u32 vcc, {ng}, v3", f"v_cndmask_b32 v{8+ng}, 0, v4, vcc"]
    for ng in range(ngs):
        pro += [f"v_accvgpr_write_b32 a{aONE+4*ng+i}, v{8+ng}" for i in range(4)]
    pro += ["v_lshrrev_b32 v4, 1, v3", f"v_lshlrev_b32 v{vCSo}, 8, v4", "v_and_b32 v4, 1, v3", f"v_lshl_add_u32 v{vCSo}, v4, 6, v{vCSo}",
            f"v_lshrrev_b32 v4, 4, v{vL}", f"v_lshl_add_u32 v{vCSo}, v4, 4, v{vCSo}", f"s_lshl_b32 s3, s{sNH}, 7", f"s_lshl_b32 s4, s{sTH}, 24", "s_add_u32 s3, s3, s4",
            f"v_add_u32 v{vCSo}, s3, v{vCSo}", f"v_add_u32 v4, {16-ngs-(ngs&1)}, v3", "v_lshrrev_b32 v4, 4, v4", f"v_lshl_add_u32 v{vCSo}, v4, 20, v{vCSo}",
            f"v_lshlrev_b32 v{vSig}, 12, v0", f"s_lshl_b32 s3, s{sTY}, 4", f"s_add_u32 s3, s3, s{sIDX}", "s_add_u32 s3, s3, 32", "s_lshl_b32 s3, s3, 2",
            f"v_add_u32 v{vSig2}, s3, v{vSig}", f"s_lshl_b32 s3, s{sMT}, 2", f"v_add_u32 v{vSig}, s3, v{vSig}", f"v_mov_b32 v{vOne}, 1"]
    pro += stamp(1)
    pro += [("wait", "pro", needs(0), -1), "s_barrier"] + stamp(2) + reads(0)
    if not ffn:
        pro += [f"ds_read_b64_tr_b16 {ar(aWP+s*4+jj*2,2)}, v{vWh} offset:{s*1024+jj*256}" for s in range(2) for jj in range(2)]
    for s in range(32):
        if ffn and OPT.get("lstamp") and s in (3, 8, 16, 24):
            pro += stamp({3: 6, 8: 7, 16: 8, 24: 9}[s])
        pro += step(s)
    if OPT.get("sstamp"):
        pro += ["s_waitcnt lgkmcnt(0)", f"v_writelane_b32 v254, s{sST}, 31", f"s_memtime s[{sST}:{sST+1}]", "s_waitcnt lgkmcnt(0)", f"v_writelane_b32 v254, s{sST}, 32",
                f"v_lshlrev_b32 v241, 1, v253", f"v_lshl_add_u32 v241, v{vL}, 2, v241", "v_add_u32 v241, 0x20000, v241", "buffer_store_dword v254, v241, s[84:87], 0 offen"]
    a(render(pro, resolve([pro])))
    a(stamp(3))
    return ool

def b_offsets(RS, blockstride, scol, ffn):
    o = [f"v_lshrrev_b32 v{vT}, 3, v{vL}", f"s_lshl_b32 s3, s{sW}, 3", f"v_add_u32 v{vT}, s3, v{vT}",
         f"s_movk_i32 s3, {RS}", f"v_mul_lo_u32 v{vBoff}, v{vT}, s3",
         f"v_bfe_u32 v{vT}, v{vL}, 4, 1", f"v_lshlrev_b32 v{vT}, 2, v{vT}", f"s_lshl_b32 s3, s{sNH}, {0 if ffn else 1}", f"v_or_b32 v{vT}, s3, v{vT}",
         f"v_and_b32 v{vT+1}, 7, v{vL}", f"v_xor_b32 v{vT}, v{vT}, v{vT+1}",
         f"v_lshl_add_u32 v{vBoff}, v{vT}, 4, v{vBoff}", f"s_add_u32 s3, s{scol}, 4096", f"v_add_u32 v{vBoff}, s3, v{vBoff}"]
    for b in (1, 2):
        o.append(f"v_add_u32 v{vBoff+b}, {hex((b*blockstride-b*1024) & 0xffffffff)}, v{vBoff}")
    o += [f"v_lshrrev_b32 v{vT}, 4, v{vL}", f"v_mul_u32_u24 v{vWa}, 3072, v{vT}", f"v_and_b32 v{vT}, 1, v{vT}", f"v_bfe_u32 v{vT+1}, v{vL}, 3, 1"]
    if ffn:
        o += [f"v_lshl_or_b32 v{vT}, v{vT+1}, 2, v{vT}", f"s_lshl_b32 s3, s{sNH}, 2", f"v_xor_b32 v{vT}, s3, v{vT}",
              f"v_and_b32 v{vT+1}, 2, v{vL}", f"v_xor_b32 v{vT}, v{vT}, v{vT+1}", f"v_lshl_add_u32 v{vWa}, v{vT}, 4, v{vWa}",
              f"v_and_b32 v{vT+1}, 1, v{vL}", f"v_lshl_add_u32 v{vWa}, v{vT+1}, 3, v{vWa}"]
    else:
        o += [f"v_lshl_or_b32 v{vT}, v{vT+1}, 1, v{vT}", f"s_lshl_b32 s3, s{sNH}, 1", f"v_xor_b32 v{vT}, s3, v{vT}", f"v_lshl_add_u32 v{vWa}, v{vT}, 5, v{vWa}",
              f"v_and_b32 v{vT+1}, 3, v{vL}", f"v_lshl_add_u32 v{vWa}, v{vT+1}, 3, v{vWa}"]
    o += [f"v_bfe_u32 v{vT+1}, v{vL}, 2, 2", f"v_lshl_add_u32 v{vWa}, v{vT+1}, 7, v{vWa}",
          f"v_add_u32 v{vWa}, {G2}, v{vWa}", f"v_xor_b32 v{vWa+1}, {16 if ffn else 32}, v{vWa}"]
    return o

vDo = 244
sX0, sX1, sSo, sM0, sLast, sNx, sChk = 31, 32, 33, 34, 35, 36, 45
def p2_dma_setup(t0, t1):
    KA = OPT["ka"]
    o = srd(sB, sP + 12, -4096, 3584 * 2048 + 4096)
    o += [f"v_lshrrev_b32 v{t0}, 3, v{vL}", f"s_lshl_b32 s3, s{sW}, 4", f"v_add_u32 v{t0}, s3, v{t0}", f"v_lshlrev_b32 v{vDo}, 11, v{t0}",
          f"v_lshrrev_b32 v{t0}, 4, v{vL}", f"v_lshlrev_b32 v{t0}, 1, v{t0}", f"v_and_b32 v{t1}, 7, v{vL}", f"v_xor_b32 v{t0}, v{t0}, v{t1}",
          f"v_lshl_add_u32 v{vDo}, v{t0}, 4, v{vDo}", f"s_lshl_b32 s3, s{sNT2}, 8", "s_add_u32 s3, s3, 4096", f"s_lshl_b32 s4, s{sTY}, 7",
          f"s_sub_u32 s6, s3, s4", "s_add_u32 s3, s3, s4", f"v_add_u32 v{vDo+1}, s6, v{vDo}", f"v_add_u32 v{vDo}, s3, v{vDo}",
          f"v_add_u32 v{vDo+1}, {hex((128-1024) & 0xffffffff)}, v{vDo+1}", f"v_add_u32 v{vDo+2}, {16384-2048}, v{vDo}", f"v_add_u32 v{vDo+3}, {16384-2048}, v{vDo+1}"]
    o += [f"s_mul_i32 s{sSo}, s{sTY}, {KA*32*2048}", f"s_lshl_b32 s{sM0}, s{sW}, 12"]
    return o
def p2_dma(i):
    return f"buffer_load_dwordx4 v{vDo+i}, s[{sB}:{sB+3}], s{sSo} offen offset:{i*1024} lds"
def p2_dma_prologue(slots):
    o = []
    for t in slots:
        for i in range(4 if t < 6 else 2):
            it = [f"s_add_u32 m0, s{sM0}, {t*16384}", f"s_add_u32 s{sLast}, s{sSo}, {t*0x20000}"] if i == 0 else []
            o.append(it + [p2_dma(i).replace(f"s{sSo} offen", f"s{sLast} offen")])
    return o
vFo, vFv = 242, 243
def wg_signal(base, sidx, t0):
    return [f"s_lshl_b32 s3, s{sidx}, 7", f"s_add_u32 s3, s3, {base}", f"v_lshlrev_b32 v{t0}, 20, v{vL}", f"s_lshl_b32 s{sE+6}, s{sW}, 26",
            f"s_add_u32 s3, s3, s{sE+6}", f"v_add_u32 v{t0}, s3, v{t0}", f"v_mov_b32 v{t0+1}, 1",
            "s_waitcnt vmcnt(0)", "s_barrier", f"buffer_atomic_add v{t0+1}, v{t0}, s[{sFL}:{sFL+3}], 0 offen sc1"]

def role_ffn(a):
    a.label("L1_ffn")
    a(srd(sB, sP + 10, -4096, 1024 * 7168 + 4096))
    a(f"s_mul_i32 s{sE}, s{sIDX}, 448", f"s_and_b32 s{sE+1}, s{sIDX}, 1",
      f"s_lshl_b32 s{sE+2}, s{sE+1}, 6", f"s_add_u32 s{sE+2}, s{sE+2}, s{sE}",
      f"s_mul_i32 s{sE+1}, s{sE+1}, 384", f"s_sub_u32 s{sE+3}, s{sE}, s{sE+1}", f"s_add_u32 s{sE+3}, s{sE+3}, 384")
    a(b_offsets(7168, 128, sE + 2, True))
    a(f"v_lshrrev_b32 v{vT}, 2, v{vL}", f"s_lshl_b32 s3, s{sW}, 4", f"v_add_u32 v{vT}, s3, v{vT}",
      f"s_movk_i32 s3, 7168", f"v_mul_lo_u32 v{vBh}, v{vT}, s3",
      f"v_lshrrev_b32 v{vT}, 5, v{vL}", f"v_lshlrev_b32 v{vT}, 1, v{vT}", f"v_and_b32 v{vT+1}, 3, v{vL}", f"v_xor_b32 v{vT}, v{vT}, v{vT+1}",
      f"v_lshl_add_u32 v{vBh}, v{vT}, 4, v{vBh}", f"s_add_u32 s3, s{sE+3}, 4096", f"v_add_u32 v{vBh}, s3, v{vBh}")
    a(f"v_lshrrev_b32 v{vT}, 4, v{vL}", f"v_lshlrev_b32 v{vWh}, 9, v{vT}",
      f"v_and_b32 v{vT}, 1, v{vT}", f"v_xor_b32 v{vT}, s{sNH}, v{vT}", f"v_lshl_add_u32 v{vWh}, v{vT}, 5, v{vWh}",
      f"v_bfe_u32 v{vT}, v{vL}, 2, 2", f"v_lshl_add_u32 v{vWh}, v{vT}, 6, v{vWh}",
      f"v_and_b32 v{vT}, 3, v{vL}", f"v_lshl_add_u32 v{vWh}, v{vT}, 3, v{vWh}", f"v_add_u32 v{vWh}, 0x8000, v{vWh}")
    a(f"s_lshr_b32 s{sE}, s{sE+2}, 6", f"s_add_u32 s{sE}, s{sE}, s{sNH}", f"s_lshl_b32 s{sE}, s{sE}, 10",
      f"s_lshr_b32 s{sE+1}, s{sE+3}, 6", f"s_lshl_b32 s{sE+1}, s{sE+1}, 10", f"s_lshl_b32 s3, s{sNH}, 9", f"s_add_u32 s{sE+1}, s{sE+1}, s3",
      f"s_lshl_b32 s3, s{sMT}, 4", f"s_lshl_b32 s{sE+2}, s{sTH}, 3", f"s_add_u32 s3, s3, s{sE+2}", f"s_mul_i32 s3, s3, {HO_TB}",
      f"s_add_u32 s{sE}, s{sE}, s3", f"s_add_u32 s{sE+1}, s{sE+1}, s3")
    vM, vR, vC, tmp, vSt = 192, 200, 208, 236, 252
    def tail_reads(s):
        if s == 28:
            return [f"v_and_b32 v248, 15, v{vL}", f"s_lshl_b32 s3, s{sTH}, 9", f"s_add_u32 s3, s3, {L_M}", "v_lshl_add_u32 v248, v248, 2, s3",
                    f"v_lshrrev_b32 v249, 4, v{vL}", f"s_lshl_b32 s3, s{sNH}, 7", f"s_add_u32 s3, s3, {L_CS}", "v_lshl_add_u32 v249, v249, 4, s3",
                    f"v_lshlrev_b32 v{vSt}, 4, v{vL}"]
        if s == 30:
            return [f"ds_read_b32 v{vR+tb}, v248 offset:{1024+tb*64}" for tb in range(8)] + [f"ds_read_b32 v{vM+tb}, v248 offset:{tb*64}" for tb in range(8)] + \
                   [f"ds_read_b128 {vr(vC+4*ng,4)}, v249 offset:{(ng>>1)*256+(ng&1)*64}" for ng in range(7)]
        if s == 31:
            return [f"v_mul_f32 v{vR+tb}, {hex(NLOG2E)}, v{vR+tb}" for tb in range(8)] + p2_dma_setup(vT, vT + 1)
        return []
    ool = phase1(a, True, tail_reads)
    a.c("---- FFN epilogue: h' = -log2e * silu(LN(x) w1) -> fragment-major bf16")
    def bc(reg):
        return (vr(reg, 2), 0) if reg % 2 == 0 else (vr(reg - 1, 2), 1)
    def silu(regs, c, tb, t, dst):
        n = len(regs); o = []
        mp, ms = bc(vM + tb); rp, rs = bc(vR + tb)
        for i in range(0, n, 2):
            o.append(f"v_pk_fma_f32 {vr(regs[i],2)}, {vr(c+i,2)}, {mp}, {vr(regs[i],2)} op_sel:[0,{ms},0] op_sel_hi:[1,{ms},1] neg_lo:[1,0,0] neg_hi:[1,0,0]")
        for i in range(0, n, 2):
            o.append(f"v_pk_mul_f32 {vr(regs[i],2)}, {vr(regs[i],2)}, {rp} op_sel:[0,{rs}] op_sel_hi:[1,{rs}]")
        o += [f"v_exp_f32 v{t+i}, v{regs[i]}" for i in range(n)]
        o += [f"v_pk_add_f32 {vr(t+i,2)}, {vr(t+i,2)}, 1.0 op_sel_hi:[1,0]" for i in range(0, n, 2)]
        o += [f"v_rcp_f32 v{t+i}, v{t+i}" for i in range(n)]
        o += [f"v_pk_mul_f32 {vr(t+i,2)}, {vr(t+i,2)}, {vr(regs[i],2)}" for i in range(0, n, 2)]
        o += [f"v_cvt_pk_bf16_f32 v{dst+i//2}, v{t+i}, v{t+i+1}" for i in range(0, n, 2)]
        return o
    e = []
    for tb in range(8):
        base = tb * 24
        e += [f"v_accvgpr_read_b32 v{248+i}, a{aX+tb*4+i}" for i in range(4)]
        for b in range(3):
            e += silu(list(range(base + b * 8, base + b * 8 + 8)), vC + 8 * b, tb, tmp, base + b * 8)
            if b == 2:
                e.append(f"s_add_u32 s{sE+2}, s{sE}, 4096")
            so, imm = (sE, b * 2048) if b < 2 else (sE + 2, 0)
            e.append(f"buffer_store_dwordx4 {vr(base+b*8,4)}, v{vSt}, s[{sHO}:{sHO+3}], s{so} offen offset:{imm} sc1")
        hb = (tb & 6) * 24 + 4
        e += silu([248, 249, 250, 251], vC + 24, tb, tmp, hb + 2 * (tb & 1))
        if tb == 0:
            e += [f"v_lshrrev_b32 v13, 5, v{vL}", f"s_mov_b32 s3, {HO_TB}", "v_mul_lo_u32 v12, v13, s3", f"v_and_b32 v13, 31, v{vL}", "v_lshl_add_u32 v12, v13, 4, v12"]
        if tb & 1:
            e += [f"v_permlane32_swap_b32 v{hb}, v{hb+2}", f"v_permlane32_swap_b32 v{hb+1}, v{hb+3}",
                  f"buffer_store_dwordx4 {vr(hb,4)}, v12, s[{sHO}:{sHO+3}], s{sE+1} offen sc1", f"s_add_u32 s{sE+1}, s{sE+1}, {2*HO_TB}"]
        if tb < 7:
            e += [f"s_add_u32 s{sE}, s{sE}, {HO_TB}"]
    a(sprinkle(e, p2_dma_prologue(range(7)), start=4, end=int(len(e) * 0.8)))
    a(stamp(4))
    a([f"v_mov_b32 v{i}, 0" for i in range(64)], f"v_mov_b32 v{vFv}, 0")
    a(wg_signal(FL_H, sMT, 236))
    a(stamp(5))
    a("s_branch L_P2")
    a(ool)

def softmax_pair(P, E, t, rreg, dstp, dstm, kscale):
    t0, t1, t2, t3, c0 = t, t + 1, t + 2, t + 3, t + 4
    o = [f"v_max3_f32 v{t0}, v{P}, v{P+1}, v{P+2}", f"v_max3_f32 v{t1}, -v{P}, -v{P+1}, -v{P+2}"]
    for i in range(3, 15, 2):
        o += [f"v_max3_f32 v{t0}, v{t0}, v{P+i}, v{P+i+1}", f"v_max3_f32 v{t1}, v{t1}, -v{P+i}, -v{P+i+1}"]
    o += [f"v_max_f32 v{t0}, v{t0}, v{P+15}", f"v_max_f32_e64 v{t1}, v{t1}, -v{P+15}", f"v_mul_f32 v{c0}, {hex(LOG2E)}, v{rreg}",
          f"v_permlane32_swap_b32 v{t0}, v{t1}", f"v_max_f32 v{t0}, v{t0}, v{t1}",
          f"v_mul_f32 v{t0}, v{c0}, v{t0}", f"v_mov_b32 v{t2}, v{t0}", f"v_permlane32_swap_b32 v{t0}, v{t2}"]
    o += [f"v_pk_fma_f32 {vr(E[i],2)}, {vr(P+i,2)}, {vr(c0,2)}, {vr(t0,2)} op_sel_hi:[1,0,0] neg_lo:[0,0,1] neg_hi:[0,0,1]" for i in range(0, 16, 2)]
    o += [f"v_pk_fma_f32 {vr(P+i,2)}, {vr(P+i,2)}, {vr(c0,2)}, {vr(t2,2)} op_sel_hi:[1,0,0] neg_lo:[1,0,1] neg_hi:[1,0,1]" for i in range(0, 16, 2)]
    o += [f"v_exp_f32 v{E[i]}, v{E[i]}" for i in range(16)] + [f"v_exp_f32 v{P+i}, v{P+i}" for i in range(16)]
    o += [f"v_pk_add_f32 {vr(t0,2)}, {vr(E[0],2)}, {vr(E[2],2)}", f"v_pk_add_f32 {vr(t2,2)}, {vr(P,2)}, {vr(P+2,2)}"]
    for i in range(4, 16, 2):
        o += [f"v_pk_add_f32 {vr(t0,2)}, {vr(t0,2)}, {vr(E[i],2)}", f"v_pk_add_f32 {vr(t2,2)}, {vr(t2,2)}, {vr(P+i,2)}"]
    o += [f"v_add_f32 v{t0}, v{t0}, v{t1}", f"v_add_f32 v{t2}, v{t2}, v{t3}",
          f"v_permlane32_swap_b32 v{t0}, v{t2}", f"v_add_f32 v{t0}, v{t0}, v{t2}", f"v_rcp_f32 v{t0}, v{t0}"]
    if kscale:
        o += [f"v_mul_f32 v{t0}, v{t0}, v{rreg}"]
    o += [f"v_mov_b32 v{t2}, v{t0}", f"v_permlane32_swap_b32 v{t0}, v{t2}"]
    o += [f"v_pk_mul_f32 {vr(P+i,2)}, {vr(P+i,2)}, {vr(t2,2)} op_sel_hi:[1,0]" for i in range(0, 16, 2)]
    o += [f"v_pk_mul_f32 {vr(E[i],2)}, {vr(E[i],2)}, {vr(t0,2)} op_sel_hi:[1,0]" for i in range(0, 16, 2)]
    o += [f"v_cvt_pk_bf16_f32 v{dstm+i}, v{P+2*i}, v{P+2*i+1}" for i in range(7, -1, -1)]
    o += [f"v_cvt_pk_bf16_f32 v{dstp+i}, v{E[2*i]}, v{E[2*i+1]}" for i in range(8)]
    return o

def role_qkv(a):
    a.label("L1_qkv")
    a(srd(sB, sP + 2, -4096, 1024 * 6144 + 4096))
    a(f"s_lshl_b32 s{sE}, s{sIDX}, 7")
    a(b_offsets(6144, 2048, sE, False))
    a(srd(sU, sP + 4, 0, 65536))
    a(f"s_lshl_b32 s3, s{sIDX}, 12", f"s_lshl_b32 s{sE}, s{sW}, 10", f"s_add_u32 s3, s3, s{sE}",
      f"s_add_u32 m0, s{sE}, {LDS_TOP}", f"v_lshlrev_b32 v{vT}, 4, v{vL}",
      f"buffer_load_dwordx4 v{vT}, s[{sU}:{sU+3}], s3 offen lds")
    a(f"v_lshrrev_b32 v{vT+1}, 5, v{vL}", f"v_lshlrev_b32 v{vWh}, 9, v{vT+1}",
      f"v_bfe_u32 v{vT+1}, v{vL}, 2, 2", f"v_lshl_add_u32 v{vWh}, v{vT+1}, 6, v{vWh}",
      f"v_bfe_u32 v{vT+1}, v{vL}, 4, 1", f"v_lshl_add_u32 v{vWh}, v{vT+1}, 5, v{vWh}",
      f"v_and_b32 v{vT+1}, 3, v{vL}", f"v_lshl_add_u32 v{vWh}, v{vT+1}, 3, v{vWh}",
      f"s_lshl_b32 s3, s{sNH}, 11", f"s_add_u32 s3, s3, {LDS_TOP}", f"v_add_u32 v{vWh}, s3, v{vWh}")
    Q, K, V = 0, 64, 128
    vM, vCK, vCQ, vCV, vMV, vRr = 192, 200, 208, 216, 218, 248
    vPW, vPR, vLin, vZo = 236, 240, 238, 239
    aD = aX
    p1, p2, p3, pV, pR, pD = 244, 245, 246, 247, 252, 243
    def tail_reads(s):
        if s == 28:
            return [f"v_and_b32 v{p1}, 15, v{vL}", f"s_lshl_b32 s3, s{sTH}, 9", f"s_add_u32 s3, s3, {L_M}", f"v_lshl_add_u32 v{p1}, v{p1}, 2, s3",
                    f"v_lshrrev_b32 v{p2}, 4, v{vL}", f"v_lshl_add_u32 v{p3}, v{p2}, 4, s3",
                    f"s_lshl_b32 s3, s{sNH}, 7", f"s_add_u32 s3, s3, {L_CS}", f"v_lshl_add_u32 v{p2}, v{p2}, 4, s3",
                    f"v_and_b32 v{pV}, 15, v{vL}", f"v_lshl_add_u32 v{pV}, v{pV}, 2, s3",
                    f"v_and_b32 v{pR}, 31, v{vL}", f"s_lshl_b32 s3, s{sTH}, 9", f"s_add_u32 s3, s3, {L_R}", f"v_lshl_add_u32 v{pR}, v{pR}, 2, s3",
                    f"v_lshrrev_b32 v{pD}, 5, v{vL}", f"s_lshl_b32 s3, s{sTH}, 8", f"s_add_u32 s3, s3, {L_D}", f"v_lshl_add_u32 v{pD}, v{pD}, 4, s3"]
        if s == 30:
            return [f"ds_read_b32 v{vM+tb}, v{p1} offset:{tb*64}" for tb in range(8)] + \
                   [f"ds_read_b128 {vr(vCK+4*dt,4)}, v{p2} offset:{256+dt*64}" for dt in range(2)] + \
                   [f"ds_read_b128 {vr(vCQ+4*dt,4)}, v{p2} offset:{dt*64}" for dt in range(2)] + \
                   [f"ds_read_b32 v{vCV+dt}, v{pV} offset:{512+dt*64}" for dt in range(2)] + \
                   [f"ds_read_b128 {vr(vMV+4*tb,4)}, v{p3} offset:{tb*64}" for tb in range(4)] + \
                   [f"ds_read_b32 v{vRr+p}, v{pR} offset:{p*128}" for p in range(4)]
        if s == 31:
            return [f"ds_read_b128 {ar(aD+4*f,4)}, v{pD} offset:{f*32}" for f in range(8)] + srd(sU, sP + 18, WS_KV, KV_SIZE)
        return []
    ool = phase1(a, False, tail_reads)
    a.c("---- QKV epilogue")
    def bc(reg):
        return (vr(reg, 2), 0) if reg % 2 == 0 else (vr(reg - 1, 2), 1)
    def corr_qk(X, c, p):
        o = []
        for tbb in range(2):
            mp, ms = bc(vM + 2 * p + tbb)
            for i in range(0, 8, 2):
                r = X + 16 * p + 8 * tbb + i
                o.append(f"v_pk_fma_f32 {vr(r,2)}, {vr(c+i,2)}, {mp}, {vr(r,2)} op_sel:[0,{ms},0] op_sel_hi:[1,{ms},1] neg_lo:[1,0,0] neg_hi:[1,0,0]")
        return o
    def corr_v(tb, m):
        o = []
        for dt in range(2):
            for i in range(0, 4, 2):
                r = V + 8 * tb + 4 * dt + i
                o.append(f"v_pk_fma_f32 {vr(r,2)}, {vr(m+i,2)}, {vr(vCV,2)}, {vr(r,2)} op_sel:[0,{dt},0] op_sel_hi:[1,{dt},1] neg_lo:[1,0,0] neg_hi:[1,0,0]")
        return o
    def frags_qk(src, T0):
        o = []
        for tbb in range(2):
            for dt in range(2):
                s = src + tbb * 8 + dt * 4; d = T0 + dt * 4 + tbb * 2
                o += [f"v_cvt_pk_bf16_f32 v{d}, v{s}, v{s+1}", f"v_cvt_pk_bf16_f32 v{d+1}, v{s+2}, v{s+3}"]
        for f in range(2):
            o += [f"v_permlane16_swap_b32 v{T0+4*f}, v{T0+4*f+2}", f"v_permlane16_swap_b32 v{T0+4*f+1}, v{T0+4*f+3}"]
        o += [f"v_mfma_f32_32x32x16_bf16 {vr(src,16)}, {ar(aWP,4)}, {vr(T0,4)}, 0",
              f"v_mfma_f32_32x32x16_bf16 {vr(src,16)}, {ar(aWP+4,4)}, {vr(T0+4,4)}, {vr(src,16)}"]
        return o
    def frags_v(p):
        src = V + 16 * p; o = []
        for i in range(8):
            o.append(f"v_cvt_pk_bf16_f32 v{src+i}, v{src+2*i}, v{src+2*i+1}")
        for f in range(2):
            o += [f"v_permlane16_swap_b32 v{src+4*f}, v{src+4*f+2}", f"v_permlane16_swap_b32 v{src+4*f+1}, v{src+4*f+3}"]
        return o
    e = []
    TA, TB = 236, 200
    e += corr_qk(K, vCK, 0) + corr_qk(K, vCK, 1) + corr_qk(K, vCK, 2) + corr_qk(K, vCK, 3)
    e += flat([corr_v(tb, vMV + 4 * tb) for tb in range(4)])
    e += [f"ds_read_b128 {vr(vMV+4*tb,4)}, v{p3} offset:{(tb+4)*64}" for tb in range(4)]
    e += frags_qk(K, TB) + frags_qk(K + 16, TA) + frags_v(0) + frags_qk(K + 32, TB) + frags_v(1) + frags_qk(K + 48, TA)
    e += ["s_waitcnt lgkmcnt(0)"] + flat([corr_v(tb + 4, vMV + 4 * tb) for tb in range(4)]) + frags_v(2) + frags_v(3)
    t = 218
    ad = [f"v_and_b32 v{t}, 31, v{vL}", f"v_lshrrev_b32 v{t+1}, 5, v{vL}",
          f"v_bfe_u32 v{t+2}, v{vL}, 1, 1", f"v_lshlrev_b32 v{t+2}, 2, v{t+2}",
          f"v_bfe_u32 v{t+3}, v{vL}, 2, 1", f"v_lshl_or_b32 v{t+2}, v{t+3}, 1, v{t+2}",
          f"v_and_b32 v{t+3}, 1, v{vL}", f"v_or_b32 v{t+2}, v{t+3}, v{t+2}",
          f"v_xor_b32 v{t+2}, v{t+2}, v{t+1}", f"v_lshlrev_b32 v{t+2}, 4, v{t+2}",
          f"v_lshl_add_u32 v{vPW}, v{t}, 7, v{t+2}", f"s_lshl_b32 s3, s{sW}, 14", f"v_add_u32 v{vPW}, s3, v{vPW}"]
    ad += [f"v_xor_b32 v{vPW+i}, {i*32}, v{vPW}" for i in range(1, 4)]
    ad += [f"v_bfe_u32 v{t}, v{vL}, 2, 2", f"v_lshlrev_b32 v{vPR}, 10, v{t+1}", f"v_lshl_add_u32 v{vPR}, v{t}, 7, v{vPR}",
           f"v_lshrrev_b32 v{t+2}, 1, v{t}", f"v_lshlrev_b32 v{t+2}, 2, v{t+2}", f"v_and_b32 v{t+3}, 1, v{t}", f"v_or_b32 v{t+2}, v{t+2}, v{t+3}",
           f"v_bfe_u32 v{t+3}, v{vL}, 4, 1", f"v_lshlrev_b32 v{t+3}, 1, v{t+3}", f"v_xor_b32 v{t+2}, v{t+2}, v{t+3}",
           f"v_and_b32 v{t+3}, 1, v{vL}", f"v_xor_b32 v{t+2}, v{t+2}, v{t+3}", f"v_lshl_add_u32 v{vPR}, v{t+2}, 4, v{vPR}",
           f"v_bfe_u32 v{t+3}, v{vL}, 1, 1", f"v_lshl_add_u32 v{vPR}, v{t+3}, 3, v{vPR}", f"v_add_u32 v{vPR}, s3, v{vPR}"]
    ad += [f"v_xor_b32 v{vPR+i}, {i*32}, v{vPR}" for i in range(1, 4)]
    e += ad + p2_dma_setup(218, 219)
    EA = list(range(V + 8, V + 16)) + list(range(V + 24, V + 32))
    EB = list(range(V + 40, V + 48)) + list(range(V + 56, V + 64))
    tA, tB = 218, 224
    KVa, Za = [128, 144], [192, 208]
    def ksoft(p):
        E = EA if p % 2 == 0 else EB
        P = K + 16 * p
        o = softmax_pair(P, E, tA if p % 2 == 0 else tB, vRr + p, E[0], P + 8, True)
        for sign in range(2):
            for qq in range(2):
                o.append(f"ds_write_b128 v{vPW+sign*2+qq}, {vr((E[0] if sign == 0 else P + 8) + qq*4, 4)} offset:{p*4096}")
        return o
    def kreads(p):
        fb = (p & 1) * 16
        return [f"ds_read_b64_tr_b16 {ar(fb+sign*8+ks*4+jj*2,2)}, v{vPR+sign*2+jj} offset:{p*4096+ks*2048+jj*512}"
                for sign in range(2) for ks in range(2) for jj in range(2)]
    def kmfma(p):
        fb = (p & 1) * 16; o = []
        for ks in range(2):
            for sign in range(2):
                A = ar(fb + sign * 8 + ks * 4, 4); first = (p == 0 and ks == 0)
                o.append(f"v_mfma_f32_32x32x16_bf16 {ar(KVa[sign],16)}, {A}, {vr(V+16*p+4*ks,4)}, {'0' if first else ar(KVa[sign],16)}")
                o.append(f"v_mfma_f32_32x32x16_bf16 {ar(Za[sign],16)}, {A}, {ar(aD+8*p+4*ks,4)}, {'0' if first else ar(Za[sign],16)}")
        return o
    e += sprinkle(zipper(ksoft(0), ksoft(1)), p2_dma_prologue(range(4, 7)), start=4)
    s23 = zipper(ksoft(2), ksoft(3))
    mid = [["s_waitcnt lgkmcnt(0)"] + kreads(0) + kreads(1), ["s_waitcnt lgkmcnt(0)"]] + kmfma(0) + kmfma(1)
    e += sprinkle(s23, mid, start=30, end=len(s23) - 40)
    qpre = flat([corr_qk(Q, vCQ, p) for p in range(4)]) + frags_qk(Q, TB) + frags_qk(Q + 16, 218) + frags_qk(Q + 32, TB) + frags_qk(Q + 48, 218)
    mid = [["s_waitcnt lgkmcnt(0)"] + kreads(2) + kreads(3), ["s_waitcnt lgkmcnt(0)"]] + kmfma(2) + kmfma(3)
    e += sprinkle(qpre, mid, start=OPT.get("qs", 12), end=len(qpre) - 8)
    e += stamp(6)
    XR = 131072; X2 = XR + 4 * 4352
    t = 226
    e += [f"v_lshlrev_b32 v{vLin}, 4, v{vL}", f"s_mul_i32 s3, s{sW}, 4352", f"s_add_u32 s3, s3, {XR}", f"v_add_u32 v{t}, s3, v{vLin}",
          f"v_lshrrev_b32 v{vZo}, 5, v{vL}", f"v_lshlrev_b32 v{vZo}, 6, v{vZo}", f"v_add_u32 v{t+2}, s3, v{vZo}",
          f"s_xor_b32 s3, s{sW}, 2", "s_mul_i32 s3, s3, 4352", f"s_add_u32 s3, s3, {XR}", f"v_add_u32 v{t+1}, s3, v{vLin}", f"v_add_u32 v{t+3}, s3, v{vZo}",
          f"s_lshl_b32 s{sE}, s{sIDX}, 2", f"s_lshl_b32 s3, s{sNH}, 1", f"s_add_u32 s{sE}, s{sE}, s3", f"s_add_u32 s{sE}, s{sE}, s{sTH}",
          f"s_lshl_b32 s{sE+1}, s{sE}, 3", f"s_add_u32 s{sE+1}, s{sE+1}, s{sMT}", f"s_lshl_b32 s{sE+2}, s{sE+1}, 11", f"s_lshl_b32 s{sE+3}, s{sE+1}, 7",
          f"v_bfe_u32 v{t+4}, v{vL}, 2, 3", f"v_lshl_add_u32 v{vZo}, v{t+4}, 24, v{vZo}", f"v_and_b32 v{t+4}, 3, v{vL}", f"v_lshl_add_u32 v{vZo}, v{t+4}, 4, v{vZo}",
          f"s_cmp_eq_u32 s{sTH}, 0", "s_cbranch_scc1 L1q_th0"]
    for th in (1, 0):
        if th == 0:
            e += ["L1q_th0:", "s_nop 7"]
        e += [f"ds_write_b128 v{t}, {ar(KVa[1-th]+4*i,4)} offset:{i*1024}" for i in range(4)]
        e += [f"ds_write_b128 v{t+2}, {ar(Za[1-th]+4*i,4)} offset:{4096+i*16}" for i in range(4)]
        e += [f"v_accvgpr_read_b32 v{K+i}, a{KVa[th]+i}" for i in range(16)] + [f"v_accvgpr_read_b32 v{K+16+i}, a{Za[th]+i}" for i in range(16)]
        if th == 1:
            e += ["s_branch L1q_thj"]
    e += ["L1q_thj:", "s_waitcnt lgkmcnt(0)", "s_barrier"]
    e += [f"ds_read_b128 {vr(K+32+4*i,4)}, v{t+1} offset:{i*1024}" for i in range(4)] + [f"ds_read_b128 {vr(K+48+4*i,4)}, v{t+3} offset:{4096+i*16}" for i in range(4)]
    vAt, vPo, vDat = 236, 237, 252
    e += [f"s_lshl_b32 s3, s{sE}, 7", f"v_lshlrev_b32 v{vAt}, 20, v{vL}", f"v_add_u32 v{vAt}, s3, v{vAt}", f"v_mov_b32 v{vPo}, s3", f"v_mov_b32 v{vDat}, 1"]
    for i in range(8):
        e += [f"s_waitcnt lgkmcnt({7-i})", f"v_pk_add_f32 {vr(K+4*i,2)}, {vr(K+4*i,2)}, {vr(K+32+4*i,2)}", f"v_pk_add_f32 {vr(K+4*i+2,2)}, {vr(K+4*i+2,2)}, {vr(K+32+4*i+2,2)}"]
        if i < 4:
            e += [f"v_cvt_pk_bf16_f32 v{K+2*i}, v{K+4*i}, v{K+4*i+1}", f"v_cvt_pk_bf16_f32 v{K+2*i+1}, v{K+4*i+2}, v{K+4*i+3}"]
            if i & 1:
                e.append(f"buffer_store_dwordx4 {vr(K+2*i-2,4)}, v{vLin}, s[{sU}:{sU+3}], s{sE+2} offen offset:{(i>>1)*1024} sc1")
        elif i > 4:
            e += [f"v_cmp_eq_u32 vcc, {i-4}, v{t+4}"] + [f"v_cndmask_b32 v{K+16+j}, v{K+16+j}, v{K+4*i+j}, vcc" for j in range(4)]
    e.append(f"buffer_store_dwordx4 {vr(K+16,4)}, v{vZo}, s[{sSM}:{sSM+3}], s{sE+3} offen sc1")
    E0 = list(range(192, 208)); E1 = list(range(208, 224))
    def qsoft(p):
        P = Q + 16 * p
        return softmax_pair(P, E0 if p % 2 == 0 else E1, 224 if p % 2 == 0 else 230, vRr + p, P, P + 8, False)
    q01 = zipper(qsoft(0), qsoft(1))
    k = int(len(q01) * OPT.get("atpos", 55) / 100)
    e += q01[:k] + ["s_waitcnt vmcnt(0)", f"buffer_atomic_add v{vDat}, v{vAt}, s[{sFL}:{sFL+3}], 0 offen sc1"] + stamp(7) + sprinkle(q01[k:], p2_dma_prologue(range(4)))
    q23 = zipper(qsoft(2), qsoft(3))
    k = int(len(q23) * OPT.get("popos", 30) / 100)
    e += q23[:k] + poll("L1q_poll", vDat, vPo, sFL, 8) + stamp(8)
    vZ = 240
    g = [f"s_lshl_b32 s{sE+2}, s{sE}, 14", f"s_lshl_b32 s{sE+3}, s{sE}, 10",
         f"buffer_load_dwordx4 {vr(vZ,4)}, v{vLin}, s[{sSM}:{sSM+3}], s{sE+3} offen sc1"]
    for m in range(8):
        g += [f"buffer_load_dwordx4 {vr(V+8*m+4*i,4)}, v{vLin}, s[{sU}:{sU+3}], s{sE+2} offen offset:{(m&1)*2048+i*1024} sc1" for i in range(2)]
        if m & 1 and m < 7:
            g.append(f"s_add_u32 s{sE+2}, s{sE+2}, 4096")
    e += sprinkle(q23[k:], g, start=0, end=int((len(q23) - k) * 0.4))
    t = 224; T = 192
    e += [f"s_mul_i32 s3, s{sNH}, 4352", f"s_add_u32 s3, s3, {X2}", f"s_lshl_b32 s{sE+1}, s{sTH}, 11", f"s_add_u32 s{sE+1}, s{sE+1}, s3",
          f"v_add_u32 v{t}, s{sE+1}, v{vLin}", f"v_add_u32 v{t+1}, s3, v{vLin}",
          f"s_lshl_b32 s{sE+1}, s{sTH}, 6", f"s_add_u32 s{sE+1}, s{sE+1}, s3", f"s_add_u32 s{sE+1}, s{sE+1}, 4096",
          f"v_and_b32 v{t+2}, 7, v{vL}", f"v_lshlrev_b32 v{t+2}, 3, v{t+2}", f"v_add_u32 v{t+2}, s{sE+1}, v{t+2}",
          f"v_lshrrev_b32 v{t+3}, 5, v{vL}", f"v_lshlrev_b32 v{t+3}, 5, v{t+3}", "s_add_u32 s3, s3, 4096", f"v_add_u32 v{t+3}, s3, v{t+3}",
          "s_mov_b32 s46, 0x3f80", "s_mov_b32 s47, 0x3f800000"]
    e += ["s_waitcnt vmcnt(16)"] + [f"v_add_f32_dpp v{vZ+i}, v{vZ+i}, v{vZ+i} row_ror:8 row_mask:0xf bank_mask:0xf" for i in range(4)]
    for pl in ("v_permlane16_swap_b32", "v_permlane32_swap_b32"):
        e += [f"v_mov_b32 v{T+i}, v{vZ+i}" for i in range(4)] + [f"{pl} v{vZ+i}, v{T+i}" for i in range(4)] + [f"v_add_f32 v{vZ+i}, v{vZ+i}, v{T+i}" for i in range(4)]
    e += [f"v_cvt_pk_bf16_f32 v{vZ}, v{vZ}, v{vZ+1}", f"v_cvt_pk_bf16_f32 v{vZ+1}, v{vZ+2}, v{vZ+3}", f"ds_write_b64 v{t+2}, {vr(vZ,2)}"]
    e += ["s_waitcnt vmcnt(14)"] + flat([[f"v_lshlrev_b32 v{K+2*i}, 16, v{V+i}", f"v_and_b32 v{K+2*i+1}, 0xffff0000, v{V+i}"] for i in range(8)])
    for m in range(1, 8):
        e += [f"s_waitcnt vmcnt({14-2*m})"] + flat([[f"v_dot2c_f32_bf16 v{K+2*i}, s46, v{V+8*m+i}", f"v_dot2c_f32_bf16 v{K+2*i+1}, s47, v{V+8*m+i}"] for i in range(8)])
    e += [f"s_lshr_b32 s3, s{sMT2}, 1", "s_lshl_b32 s3, s3, 7", f"s_add_u32 s3, s3, {FL_H}", f"v_mov_b32 v{vFo}, s3"]
    e += [f"v_cvt_pk_bf16_f32 v{T+i}, v{K+2*i}, v{K+2*i+1}" for i in range(8)]
    e += [f"ds_write_b128 v{t}, {vr(T,4)}", f"ds_write_b128 v{t}, {vr(T+4,4)} offset:1024",
          f"buffer_load_dword v{vFv}, v{vFo}, s[{sFL}:{sFL+3}], 0 offen sc1", "s_waitcnt lgkmcnt(0)", "s_barrier"]
    for sign in range(2):
        for s in range(2):
            e += [f"ds_read_b128 {ar(sign*8+s*4,4)}, v{t+1} offset:{sign*2048+s*1024}", f"ds_read_b128 {ar(16+sign*8+s*4,4)}, v{t+3} offset:{sign*64+s*16}"]
    e += stamp(9)
    t = 228
    e += [f"v_bfe_u32 v{t}, v{vL}, 4, 1", f"s_mov_b32 s3, {HO_TB}", f"v_mul_lo_u32 v{t}, v{t}, s3",
          f"v_lshrrev_b32 v{t+1}, 5, v{vL}", f"v_lshl_add_u32 v{t}, v{t+1}, 8, v{t}",
          f"v_and_b32 v{t+1}, 15, v{vL}", f"v_lshl_add_u32 v{t}, v{t+1}, 4, v{t}",
          f"s_lshl_b32 s3, s{sMT}, 4", f"s_lshl_b32 s{sE+1}, s{sTH}, 3", f"s_add_u32 s3, s3, s{sE+1}", f"s_mul_i32 s3, s3, {HO_TB}",
          f"s_lshl_b32 s{sE+1}, s{sIDX}, 1", f"s_add_u32 s{sE+1}, s{sE+1}, s{sNH}", f"s_add_u32 s{sE+1}, s{sE+1}, 112", f"s_lshl_b32 s{sE+1}, s{sE+1}, 10",
          f"s_add_u32 s{sE+1}, s{sE+1}, s3", f"s_mov_b32 s{sE+2}, 0x358637bd"]
    e += ["s_waitcnt lgkmcnt(0)"]
    def nd(p):
        N = K + 32 * p; D = N + 16; o = []; k = 0
        for sign in range(2):
            for s in range(2):
                B = vr(Q + 16 * p + sign * 8 + s * 4, 4)
                o.append(f"v_mfma_f32_32x32x16_bf16 {vr(N,16)}, {ar(sign*8+s*4,4)}, {B}, {'0' if k == 0 else vr(N,16)}")
                o.append(f"v_mfma_f32_32x32x16_bf16 {vr(D,16)}, {ar(16+sign*8+s*4,4)}, {B}, {'0' if k == 0 else vr(D,16)}")
                k += 1
        return o
    def fin(p):
        N = K + 32 * p; D = N + 16
        o = [f"v_add_f32 v{D}, s{sE+2}, v{D}", f"v_rcp_f32 v{D}, v{D}", f"v_mul_f32 v{D}, {hex(NLN2)}, v{D}"]
        o += [f"v_pk_mul_f32 {vr(N+i,2)}, {vr(N+i,2)}, {vr(D,2)} op_sel_hi:[1,0]" for i in range(0, 16, 2)]
        o += [f"v_cvt_pk_bf16_f32 v{N+i}, v{N+2*i}, v{N+2*i+1}" for i in range(8)]
        o += [f"buffer_store_dwordx4 {vr(N+4*s,4)}, v{t}, s[{sHO}:{sHO+3}], s{sE+1} offen offset:{s*512} sc1" for s in range(2)]
        return o + [f"s_add_u32 s{sE+1}, s{sE+1}, {2*HO_TB}"]
    e += nd(0) + nd(1) + zipper(fin(0), nd(2)) + zipper(fin(1), nd(3)) + fin(2) + [f"v_mov_b32 v{i}, 0" for i in range(32)] + fin(3) + [f"v_mov_b32 v{i}, 0" for i in range(32, 64)]
    a(e)
    a(stamp(4))
    a("s_waitcnt vmcnt(8)")
    a(stamp(5))
    return ool

def phase2(a):
    KA = OPT["ka"]; NH = [KA, 112 - KA]
    NIT = [n // 8 for n in NH]
    sXs, sO, sPT = sU, sV, sHO
    vR1, vR2, vXo, vXg, vEw, vEr, vOs = 224, 228, 232, 233, 234, 238, 240
    T = 252
    OUT, S, XR, P, E = 0, 64, 96, 112, 144
    WF = 64
    sStr, sSw, sPo, sPi, sFi, sFo = 42, 43, 44, 46, 47, 36
    a.label("L_P2")
    a(f"v_bfe_u32 v{T}, v{vL}, 2, 3", f"v_lshlrev_b32 v{vR1}, 7, v{T}", f"v_lshrrev_b32 v{T}, 1, v{T}", f"v_lshl_add_u32 v{vR1}, v{T}, 5, v{vR1}",
      f"v_and_b32 v{T}, 3, v{vL}", f"v_lshl_add_u32 v{vR1}, v{T}, 3, v{vR1}",
      f"v_lshrrev_b32 v{T}, 5, v{vL}", f"v_lshl_add_u32 v{vR2}, v{T}, 11, v{vR1}", f"v_lshl_add_u32 v{vR1}, v{T}, 12, v{vR1}")
    for q in range(1, 4):
        a(f"v_xor_b32 v{vR1+q}, {q*32}, v{vR1}")
    X = lambda pos, tb: ar((pos & 7) * 8 + tb * 4, 4)
    def xload(S_):
        return [("vm", f"buffer_load_dwordx4 {X(S_, tb)}, v{vXo}, s[{sA}:{sA+3}], s{sX0+tb} offen offset:{(S_&3)*1024} sc1", ("X", S_, tb)) for tb in range(2)]
    def xadv():
        return [f"s_add_u32 s{sX0}, s{sX0}, 4096", f"s_add_u32 s{sX1}, s{sX1}, 4096"]
    def dma(t, i):
        return ("vm", p2_dma(i), ("D", t))
    def hreads(S_):
        t, j = (S_ >> 1) & 3, S_ & 1
        return [f"ds_read_b64_tr_b16 {ar(WF+j*32+q8*4+jj*2,2)}, v{vR1+(q8&3)} offset:{t*16384+j*8192+jj*2048+(q8>>2)*1024}" for q8 in range(8) for jj in range(2)]
    def oreads(k):
        return [f"ds_read_b64_tr_b16 {ar(WF+(k&3)*16+q*4+jj*2,2)}, v{vR2+q} offset:{((k>>2)&3)*16384+(k&3)*4096+jj*1024}" for q in range(4) for jj in range(2)]
    a(hreads(0))
    a(f"v_lshlrev_b32 v{vXo}, 4, v{vL}", f"s_lshr_b32 s3, s{sMT2}, 1", "s_lshl_b32 s3, s3, 7", f"s_add_u32 s{sE}, s3, {FL_O}", f"s_add_u32 s3, s3, {FL_H}", f"v_mov_b32 v{vFo}, s3")
    a(srd(sA, sP + 18, WS_HO, HO_SIZE))
    a(f"s_lshl_b32 s3, s{sMT2}, 3", f"s_lshl_b32 s{sE+1}, s{sW}, 1", f"s_add_u32 s3, s3, s{sE+1}", f"s_mul_i32 s{sX0}, s3, {HO_TB}",
      f"s_add_u32 s{sE+2}, s{sX0}, {112*1024}",
      f"s_mul_i32 s{sE+1}, s{sTY}, {KA*1024}", f"s_add_u32 s{sX0}, s{sX0}, s{sE+1}", f"s_add_u32 s{sX1}, s{sX0}, {HO_TB}")
    a(f"v_readfirstlane_b32 s3, v{vFv}", "s_cmp_ge_u32 s3, 16", "s_cbranch_scc1 L2_hpoll_ok")
    a(poll("L2_hpoll", vFv, vFo, sFL, 16))
    a(stamp(10))
    pro = []
    for s in range(7):
        pro += xload(s)
        if s == 3: pro += xadv()
    rows = [sE + 3, sE + 4, sE + 5]
    pro += [f"v_mov_b32 v{vFo}, s{sE}", f"s_add_u32 m0, s{sM0}, {6*16384}", f"s_add_u32 s{sSo}, s{sSo}, {6*0x20000}", f"s_mov_b32 s{sCnt}, 1", f"s_mov_b32 s{sStr}, 0x20000",
            f"s_lshl_b32 s3, s{sMT}, 7", f"s_add_u32 s3, s3, {FL_O}", f"v_add_u32 v{vOs}, s{sW}, v{vL}", f"v_lshlrev_b32 v{vOs}, 20, v{vOs}",
            f"v_add_u32 v{vOs}, s3, v{vOs}", f"v_mov_b32 v{vOs+1}, 1",
            f"s_add_u32 s{sM0}, s{sM0}, 0x1c000"]
    pro += srd(sXs, sP + 0, 0, 2048 * 2048) + srd(sO, sP + 14, 0, 2048 * 2048) + srd(sPT, sP + 18, WS_PART, PART_SIZE)
    pro += [f"s_cmp_eq_u32 s{sTY}, 0", f"s_cselect_b32 s{sLast}, {NIT[0]-1}, {NIT[1]-1}", f"s_cselect_b32 s4, {(NIT[0]&1)*0x10000}, {(NIT[1]&1)*0x10000}",
            f"s_sub_u32 s{sSw}, s{sLast}, 1", f"v_add_u32 v{vR2}, s4, v{vR2}",
            f"s_lshl_b32 s3, s{sMT2}, 3", f"s_add_u32 s3, s3, s{sNT2}", f"s_lshl_b32 s{sPo}, s3, 16", f"s_lshl_b32 s4, s{sW}, 13", f"s_add_u32 s{sPo}, s{sPo}, s4",
            f"s_lshl_b32 s4, s{sTY}, 15", f"s_add_u32 s{sPo}, s{sPo}, s4", f"s_xor_b32 s{sPi}, s{sPo}, 0x8000",
            f"s_lshl_b32 s{sFo}, s3, 7", f"s_lshl_b32 s4, s{sW}, 2", f"s_add_u32 s{sFo}, s{sFo}, s4", f"s_add_u32 s{sFo}, s{sFo}, {FL_PART}",
            f"s_lshl_b32 s4, s{sTY}, 4", f"s_add_u32 s{sFo}, s{sFo}, s4", f"s_xor_b32 s{sFi}, s{sFo}, 16"]
    pro += [f"v_xor_b32 v{vR2+q}, {q*32}, v{vR2}" for q in range(1, 4)]
    pro += [f"v_lshrrev_b32 v{T}, 3, v{vL}", f"v_lshlrev_b32 v{vXg}, 11, v{T}", f"v_and_b32 v{E}, 7, v{vL}", f"v_lshl_add_u32 v{vXg}, v{E}, 4, v{vXg}",
            f"s_lshl_b32 s3, s{sNT2}, 8", f"s_lshl_b32 s4, s{sTY}, 7", "s_add_u32 s3, s3, s4", f"s_lshl_b32 s4, s{sMT2}, 18", "s_add_u32 s3, s3, s4",
            f"s_lshl_b32 s4, s{sW}, 16", "s_add_u32 s3, s3, s4", f"v_add_u32 v{vXg}, s3, v{vXg}",
            f"v_xor_b32 v{E+1}, v{T}, v{E}", f"v_lshlrev_b32 v{vEr}, 7, v{T}", f"v_lshl_add_u32 v{vEr}, v{E+1}, 4, v{vEr}",
            f"s_lshl_b32 s3, s{sW}, 12", "s_add_u32 s3, s3, 0x20000", f"v_add_u32 v{vEr}, s3, v{vEr}",
            f"v_lshrrev_b32 v{T}, 5, v{vL}", f"v_xor_b32 v{T}, v{T}, v{E}", f"v_and_b32 v{E+1}, 15, v{vL}", f"v_lshlrev_b32 v{vEw}, 7, v{E+1}",
            f"v_lshl_add_u32 v{vEw}, v{T}, 4, v{vEw}", f"v_bfe_u32 v{T}, v{vL}, 4, 1", f"v_lshl_add_u32 v{vEw}, v{T}, 3, v{vEw}", f"v_add_u32 v{vEw}, s3, v{vEw}"]
    pro += [f"v_xor_b32 v{vEw+q}, {q*32}, v{vEw}" for q in range(1, 4)] + [f"s_mov_b32 s{rows[g]}, {(g+1)*16384}" for g in range(3)]
    pst = lambda: ["s_mov_b32 s6, m0", "s_mov_b32 m0, s7", "s_nop 0", f"v_writelane_b32 v254, s{sST}, m0", "s_mov_b32 m0, s6", "s_add_u32 s7, s7, 1",
                   f"s_memtime s[{sST}:{sST+1}]", "s_waitcnt lgkmcnt(0)"] if OPT.get("p2stamp") else []
    def acc(base, nq, tb, q): return vr(base + (tb * nq + q) * 4, 4)
    def hstep(S_):
        s = S_ & 7; Tt = S_ >> 1; j = S_ & 1
        m = [f"v_mfma_f32_16x16x32_bf16 {acc(OUT+(q>>2)*32,4,tb,q&3)}, {ar(WF+j*32+q*4,4)}, {X(s,tb)}, {acc(OUT+(q>>2)*32,4,tb,q&3)}" for q in range(8) for tb in range(2)]
        fill = {}
        need = [("X", S_, 0), ("X", S_, 1)]
        if j == 1 and Tt + 1 >= 6: need.append(("D", Tt + 1))
        if s == 0 and S_ > 0: need.append(("O", S_ - 8))
        fill[-1] = [("wait", ("h", s, S_ < 8), need, 8)] + (["s_barrier"] + pst() if j == 1 else [])
        spread(hreads(S_ + 1), list(range(16)), fill)
        fill[7].append("s_waitcnt lgkmcnt(8)")
        if s == 0:
            spread([[f"s_cmp_eq_u32 s{sCnt}, s{sLast}", "s_cbranch_scc1 L2_chk", "L2_chk_r:"] if S_ else [],
                    [("vm", f"buffer_load_dword v{vFv}, v{vFo}, s[{sFL}:{sFL+3}], 0 offen sc1", ("O", S_))]], [3, 4], fill)
        x = xload(S_ + 7)
        spread(x, [1, 5] if s else [0, 2], fill)
        if (s & 3) == 0:
            spread(xadv(), [8, 9] if s else [5, 6], fill)
        if S_ == 3:
            spread([[f"s_cmp_eq_u32 s{sTY}, 0", "s_cbranch_scc1 L2_osig", "L2_osig_r:"]], [3], fill)
        if j == 1:
            if s == 3 and S_ > 8:
                spread([[f"s_cmp_eq_u32 s{sCnt}, s{sSw}", "s_cbranch_scc1 L2_sw", "L2_sw_r:"]], [6], fill)
            spread([f"s_add_u32 s4, s{sM0}, {(Tt&3)*16384}", "s_and_b32 m0, s4, 0x1ffff", dma(Tt + 7, 0), dma(Tt + 7, 1)], [8, 9, 11, 14], fill)
            if s == 7:
                spread([f"s_xor_b32 s{sM0}, s{sM0}, 0x10000"], [12], fill)
        else:
            spread([dma(Tt + 6, 2), dma(Tt + 6, 3), f"s_add_u32 s{sSo}, s{sSo}, s{sStr}"], [11, 14, 15], fill)
        if s == 6:
            for q in range(4):
                fill[9 + 2 * q].append(f"v_xor_b32 v{vR1+q}, 0x10000, v{vR1+q}")
        return weave(m, fill)
    PS = OPT.get("ps", 22)
    def ostep(k, nh):
        S_ = nh + k; NS = nh // 2
        m = [f"v_mfma_f32_16x16x32_bf16 {acc(S,4,tb,q)}, {ar(WF+(k&3)*16+q*4,4)}, {X(k,tb)}, {'0' if k == 0 else acc(S,4,tb,q)}" for q in range(4) for tb in range(2)]
        fill = {}
        need = [("X", S_, 0), ("X", S_, 1)]
        bar = []
        if k == 14:
            need += [("D", NS + 7)]; bar = ["s_barrier"]
        if k == PS: need.append(("F",))
        fill[-1] = [("wait", ("o", k), need, 8 if k < 31 else 0)] + bar + (pst() if k % 4 == 3 else [])
        if k + 2 < 32:
            spread(oreads(k + 2), list(range(8)), fill)
        if k == 13:
            for q in range(4):
                fill[2 * q + 1].append(f"v_xor_b32 v{vR2+q}, 0x10000, v{vR2+q}")
        if k + 7 < 32:
            spread(xload(S_ + 7), [1, 5], fill)
            if (k & 3) == 0:
                spread(xadv(), [6, 7], fill)
        if k == 0:
            spread([dma(NS + 6, 2), dma(NS + 6, 3), f"s_add_u32 s{sSo}, s{sSo}, s{sStr}"], [2, 3, 4], fill)
        if k == 1:
            spread([f"s_and_b32 m0, s{sM0}, 0x1ffff", dma(NS + 7, 0), dma(NS + 7, 1)], [0, 3, 6], fill)
        if k == 2:
            spread([dma(NS + 7, 2), dma(NS + 7, 3)], [3, 6], fill)
        if 3 <= k <= 6:
            i = 2 * (k - 3)
            spread([("vm", f"buffer_store_dwordx4 {vr(OUT+32+4*i,4)}, v{vXo}, s[{sPT}:{sPT+3}], s{sPo} offen offset:{(i&3)*1024} sc1", ("PS0",)),
                    ("vm", f"buffer_store_dwordx4 {vr(OUT+36+4*i,4)}, v{vXo}, s[{sPT}:{sPT+3}], s{sPo} offen offset:{((i+1)&3)*1024} sc1", ("PS0",))], [3, 7], fill)
            if k == 4: fill[7].append(f"s_add_u32 s{sPo}, s{sPo}, 4096")
        if k == 7:
            spread([f"v_lshlrev_b32 v{vOs}, 20, v{vL}", f"v_add_u32 v{vOs}, s{sFo}, v{vOs}", f"v_mov_b32 v{vFo}, s{sFi}"], [2, 3, 4], fill)
        SG = OPT.get("sgk", 12)
        if k == SG:
            fill[-1][0][2].append(("PS0",))
            spread([("vm", f"buffer_atomic_add v{vOs+1}, v{vOs}, s[{sFL}:{sFL+3}], 0 offen sc1", ("sig",))], [3], fill)
        if k == PS - 6:
            spread([("vm", f"buffer_load_dword v{vFv}, v{vFo}, s[{sFL}:{sFL+3}], 0 offen sc1", ("F",))], [0], fill)
        if 8 <= k <= 11:
            i = k - 8
            spread([("vm", f"buffer_load_dwordx4 {vr(XR+4*i,4)}, v{vXg}, s[{sXs}:{sXs+3}], {'0' if i == 0 else 's%d' % rows[i-1]} offen", ("x",))], [3], fill)
        if k == PS:
            spread([[f"v_readfirstlane_b32 s3, v{vFv}"], ["s_cmp_eq_u32 s3, 0", "s_cbranch_scc1 L2_pp", "L2_ppoll_ok:"]], [0, 2], fill)
        if PS <= k < PS + 4:
            i = 2 * (k - PS)
            spread([("vm", f"buffer_load_dwordx4 {vr(P+4*i,4)}, v{vXo}, s[{sPT}:{sPT+3}], s{sPi} offen offset:{(i&3)*1024} sc1", ("P", i)),
                    ("vm", f"buffer_load_dwordx4 {vr(P+4*i+4,4)}, v{vXo}, s[{sPT}:{sPT+3}], s{sPi} offen offset:{((i+1)&3)*1024} sc1", ("P", i + 1))], [3, 7], fill)
            if k == PS + 1: fill[7].append(f"s_add_u32 s{sPi}, s{sPi}, 4096")
        return weave(m, fill)
    def trans(nh):
        return [("wait", "tr", [("D", nh // 2 + 3)], 0), "s_barrier"] + oreads(0) + oreads(1)
    epi = []
    for h in range(2):
        r = range(16 * h, 16 * h + 16)
        epi += [("wait", ("e", h), [("P", 4 * h + 3), ("x",)], -1)] + [f"v_pk_add_f32 {vr(OUT+i,2)}, {vr(OUT+i,2)}, {vr(P+i,2)}" for i in r[::2]]
        epi += [f"v_exp_f32 v{E+i}, v{OUT+i}" for i in r]
        epi += [f"v_pk_mul_f32 {vr(OUT+i,2)}, {vr(OUT+i,2)}, {vr(S+i,2)}" for i in r[::2]]
        epi += [f"v_pk_add_f32 {vr(E+i,2)}, {vr(E+i,2)}, 1.0 op_sel_hi:[1,0]" for i in r[::2]]
        epi += [f"v_rcp_f32 v{E+i}, v{E+i}" for i in r]
        for q in range(4):
            p = E + 16 * h + 4 * q; o = OUT + 16 * h + 4 * q
            epi += [f"v_pk_mul_f32 {vr(p,2)}, {vr(p,2)}, {vr(o,2)}", f"v_pk_mul_f32 {vr(p+2,2)}, {vr(p+2,2)}, {vr(o+2,2)}",
                    f"v_cvt_pk_bf16_f32 v{p}, v{p}, v{p+1}", f"v_cvt_pk_bf16_f32 v{p+1}, v{p+2}, v{p+3}", f"ds_write_b64 v{vEw+q}, {vr(p,2)} offset:{h*2048}"]
    for i in range(16):
        epi += [f"v_lshlrev_b32 v{OUT+2*i}, 16, v{XR+i}", f"v_and_b32 v{OUT+2*i+1}, 0xffff0000, v{XR+i}"]
        if i == 3:
            epi += ["s_waitcnt lgkmcnt(0)"] + [f"ds_read_b128 {vr(S+4*k,4)}, v{vEr} offset:{k*1024}" for k in range(4)]
    for i in range(4):
        epi += [f"s_waitcnt lgkmcnt({3-i})"]
        for k in range(4):
            epi += [f"v_lshlrev_b32 v{E+2*k}, 16, v{S+4*i+k}", f"v_and_b32 v{E+2*k+1}, 0xffff0000, v{S+4*i+k}"]
        epi += [f"v_pk_add_f32 {vr(OUT+2*(4*i+k),2)}, {vr(OUT+2*(4*i+k),2)}, {vr(E+2*k,2)}" for k in range(4)]
        epi += [f"v_cvt_pk_bf16_f32 v{XR+4*i+k}, v{OUT+2*(4*i+k)}, v{OUT+2*(4*i+k)+1}" for k in range(4)]
        epi += [f"buffer_store_dwordx4 {vr(XR+4*i,4)}, v{vXg}, s[{sO}:{sO+3}], {'0' if i == 0 else 's%d' % rows[i-1]} offen{' sc1' if OPT.get('osc1', 0) else ''}"]
    trs = []
    for nh in NH:
        tr = [("vm", "", ("D", 6))] + list(pro)
        for S_ in range(nh): tr += hstep(S_)
        tr += trans(nh)
        for k in range(32): tr += ostep(k, nh)
        trs.append(tr + epi)
    cnt = resolve(trs)
    a(render(pro, cnt))
    a(stamp(11))
    if OPT.get("p2stamp"):
        a("s_mov_b32 s7, 0", f"s_memtime s[{sST}:{sST+1}]", "s_waitcnt lgkmcnt(0)")
    a("s_waitcnt lgkmcnt(0)")
    for s in range(8):
        a(render(hstep(s), cnt))
    a(".p2align 6")
    a.label("L2_loop")
    for s in range(8, 16):
        body = render(hstep(s), cnt)
        ex = OPT.get("exp", 0)
        if ex & 1: body = [l for l in body if not (l.startswith("buffer_load_dwordx4 a["))]
        if ex & 2: body = [l for l in body if not l.endswith(" lds")]
        if ex & 4: body = [l for l in body if not l.startswith("ds_read")]
        if ex & 8: body = [l for l in body if not l.startswith("s_barrier")]
        if ex & 64: body = [l.replace("vmcnt(27)", "vmcnt(19)").replace("vmcnt(26)", "vmcnt(18)") for l in body]
        a(body)
    a(f"s_add_u32 s{sCnt}, s{sCnt}, 1", f"s_cmp_le_u32 s{sCnt}, s{sLast}", "s_cbranch_scc1 L2_loop")
    if not OPT.get("p2stamp"):
        a(stamp(12))
    a(render(trans(56), cnt))
    for k in range(32):
        a(render(ostep(k, 56), cnt))
    if OPT.get("p2stamp"):
        a(f"v_lshlrev_b32 v252, 1, v253", f"v_lshl_add_u32 v252, v{vL}, 2, v252", "v_add_u32 v252, 0x20000, v252", "buffer_store_dword v254, v252, s[84:87], 0 offen")
    a(stamp(13))
    a.c("---- final: out = x + S' * acc / (1 + 2^acc)")
    a(render(epi, cnt))
    a(stamp(14))
    a("s_endpgm")
    a("L2_chk:", f"v_readfirstlane_b32 s3, v{vFv}", f"s_sub_u32 s{sX0}, s{sE+2}, 4096", f"s_add_u32 s{sX1}, s{sX0}, {HO_TB}", "s_cmp_ge_u32 s3, 16", "s_cbranch_scc1 L2_chk_r",
      poll("L2_opoll", vFv, vFo, sFL, 16), "s_branch L2_chk_r")
    a("L2_osig:", f"buffer_atomic_add v{vOs+1}, v{vOs}, s[{sFL}:{sFL+3}], 0 offen sc1", "s_branch L2_osig_r")
    a("L2_sw:", srd(sB, sP + 6, -4096, 1024 * 2048 + 4096), f"s_mov_b32 s{sSo}, 0", f"s_mov_b32 s{sStr}, 0x40000", f"s_lshl_b32 s3, s{sW}, 15",
      f"v_add_u32 v{vDo}, s3, v{vDo}", f"v_add_u32 v{vDo+1}, {16384-1024}, v{vDo}", f"v_add_u32 v{vDo+2}, {2*16384-2048}, v{vDo}", f"v_add_u32 v{vDo+3}, {3*16384-3072}, v{vDo}",
      "s_branch L2_sw_r")
    a("L2_pp:", poll("L2_ppoll2", vFv, vFo, sFL, 1), "s_branch L2_ppoll_ok")

def kernel():
    a = Asm()
    a.label(KNAME)
    a("s_cmp_ge_u32 s2, 256", "s_cbranch_scc1 L_end")
    if OPT.get("dstamp"):
        a(f"s_memrealtime s[{sST}:{sST+1}]", "s_waitcnt lgkmcnt(0)", f"s_not_b32 s{sST}, s{sST}", f"v_writelane_b32 v254, s{sST}, 0")
    a(f"s_load_dwordx16 s[{sP}:{sP+15}], s[0:1], 0", f"s_load_dwordx4 s[{sP+16}:{sP+19}], s[0:1], 64")
    a(f"v_and_b32 v{vL}, 63, v0", "v_lshrrev_b32 v1, 6, v0", f"v_readfirstlane_b32 s{sW}, v1")
    if OPT["ctouch"]:
        a("s_getpc_b64 s[4:5]", "L_pc:", f"s_sub_u32 s4, s4, L_pc-{KNAME}", "s_subb_u32 s5, s5, 0",
          "s_lshr_b32 s3, s2, 3", "s_lshl_b32 s3, s3, 2", f"s_add_u32 s3, s3, s{sW}", "s_and_b32 s3, s3, 15", "s_lshl_b32 s3, s3, 13",
          f"v_lshlrev_b32 v1, 7, v{vL}", "v_add_u32 v1, s3, v1", f"v_min_u32 v1, L_end-{KNAME}, v1", f"global_load_dword v{vPF+1}, v1, s[4:5]")
    a("s_and_b32 s3, s2, 1", f"s_lshl_b32 s{sMT}, s3, 2", "s_bfe_u32 s3, s2, 0x20003", f"s_add_u32 s{sMT}, s{sMT}, s3",
      "s_bfe_u32 s3, s2, 0x20001", f"s_lshl_b32 s{sIDX}, s3, 2", "s_bfe_u32 s3, s2, 0x20005", f"s_add_u32 s{sIDX}, s{sIDX}, s3",
      f"s_lshr_b32 s{sTH}, s{sW}, 1", f"s_and_b32 s{sNH}, s{sW}, 1", f"s_bfe_u32 s{sTY}, s2, 0x10007")
    a("s_and_b32 s3, s2, 3", f"s_lshl_b32 s{sMT2}, s3, 2", "s_bfe_u32 s3, s2, 0x20003", f"s_add_u32 s{sMT2}, s{sMT2}, s3",
      "s_bfe_u32 s3, s2, 0x10002", f"s_lshl_b32 s{sNT2}, s3, 2", "s_bfe_u32 s3, s2, 0x20005", f"s_add_u32 s{sNT2}, s{sNT2}, s3")
    if OPT.get("exp", 0) & 16: a(f"s_and_b32 s{sMT2}, s{sMT2}, 12")
    if OPT.get("exp", 0) & 32: a(f"s_and_b32 s{sNT2}, s{sNT2}, 4")
    a(f"s_lshl_b32 s3, s{sTY}, 4", f"s_add_u32 s3, s3, s{sIDX}", "s_lshl_b32 s3, s3, 14", f"s_lshl_b32 s4, s{sW}, 12", "s_add_u32 s3, s3, s4",
      f"v_lshl_add_u32 v199, v{vL}, 4, s3")
    a(f"v_lshrrev_b32 v{vT}, 3, v{vL}", f"s_lshl_b32 s3, s{sW}, 6", f"v_add_u32 v{vT}, s3, v{vT}", f"v_lshlrev_b32 v{vT}, 11, v{vT}",
      f"v_lshrrev_b32 v{vT+1}, 4, v{vL}", f"v_and_b32 v{vT+2}, 7, v{vL}", f"v_xor_b32 v{vT+1}, v{vT+1}, v{vT+2}",
      f"v_lshl_add_u32 v{vAoff}, v{vT+1}, 4, v{vT}", f"v_xor_b32 v{vT+3}, 64, v{vAoff}")
    for i in range(1, 8):
        a(f"v_add_u32 v{vAoff+i}, {i*16384-(i&3)*1024}, v{vAoff if i % 2 == 0 else vT+3}")
    a(f"v_and_b32 v{vT}, 15, v{vL}", f"s_lshl_b32 s3, s{sTH}, 7", f"v_add_u32 v{vT}, s3, v{vT}", f"v_lshlrev_b32 v{vT}, 7, v{vT}",
      f"v_lshrrev_b32 v{vT+1}, 4, v{vL}", f"v_bfe_u32 v{vT+2}, v{vL}, 1, 3", f"v_xor_b32 v{vT+1}, v{vT+1}, v{vT+2}",
      f"v_lshl_add_u32 v{vXa}, v{vT+1}, 4, v{vT}", f"v_xor_b32 v{vXa+1}, 64, v{vXa}")
    a("s_waitcnt lgkmcnt(0)")
    a(f"s_lshl_b32 s3, s{sMT}, 19")
    a(srd(sA, sP + 0, "s3", 256 * 2048))
    a(srd(sHO, sP + 18, WS_HO, HO_SIZE), srd(sFL, sP + 18, WS_FLAG, FLAG_SIZE), srd(sSM, sP + 18, WS_SM, SM_SIZE), srd(sDBG, sP + 16, 0, 256))
    if OPT["stamp"]:
        a(srd(84, sP + 18, WS_STAMP + 0x40000, 0x60000))
        a("s_lshl_b32 s3, s2, 2", f"s_add_u32 s3, s3, s{sW}", "s_lshl_b32 s3, s3, 7", "v_mov_b32 v253, s3")
        a(stamp(0))
    a(f"s_cmp_eq_u32 s{sTY}, 1", "s_cbranch_scc1 L1_ffn")
    ool = role_qkv(a)
    phase2(a)
    a(ool)
    role_ffn(a)
    a.label("L_end")
    a("s_endpgm")
    return a

def pre_kernel(mask):
    a = Asm()
    a.label("pre_kernel")
    a("s_cmp_ge_u32 s2, 256", "s_cbranch_scc1 pre_end")
    regs = []
    if mask & 2: regs += [(0, 0, 1 << 22), (1, 0, 1024 * 6144), (5, 0, 1024 * 7168)]
    if mask & 4: regs += [(6, 0, 3584 * 2048), (3, 0, 1 << 21)]
    if mask & 8: regs += [(9, WS_HO, HO_SIZE), (9, WS_KV, 0x400000), (9, WS_PART, PART_SIZE), (7, 0, 1 << 22)]
    for pi, off, size in regs:
        a(f"s_load_dwordx2 s[4:5], s[0:1], {8*pi}", "s_waitcnt lgkmcnt(0)", srd(8, 4, off, size))
        per = size // 256
        sh = 7 if not (mask & 16) else 12
        a(f"s_mul_i32 s3, s2, {per}", f"v_lshlrev_b32 v1, {sh}, v0", "v_add_u32 v1, s3, v1")
        for i in range(-(-per // (256 << sh))):
            a("buffer_load_dword v4, v1, s[8:11], 0 offen", f"v_add_u32 v1, {hex(256 << sh)}, v1")
    if mask & 1:
        a("s_getpc_b64 s[4:5]", "pre_pc:", f"s_sub_u32 s4, s4, pre_pc-{KNAME}", "s_subb_u32 s5, s5, 0", "v_lshlrev_b32 v1, 7, v0")
        for i in range(3):
            a(f"v_min_u32 v2, L_end-{KNAME}, v1", "global_load_dword v4, v2, s[4:5]", "v_add_u32 v1, 0x8000, v1")
    a("s_waitcnt vmcnt(0)")
    a.label("pre_end")
    a("s_endpgm")
    return a

def build():
    a = kernel()
    a.lines = autonop(a.lines)
    bad = check_hazards(a.lines)
    for p in bad:
        print("HAZARD", p, file=sys.stderr)
    out = ["; generated by gen/gen4.py: one persistent kernel, 256 workgroups (one per CU)",
           f"; @launch grid=(256,1,1) block=(256,1,1) lds={LDS_SIZE}",
           '.amdgcn_target "amdgcn-amd-amdhsa--gfx950"', ".text", f".globl {KNAME}", ".p2align 8", f".type {KNAME},@function", a.text(),
           '.section .rodata,"a"', ".p2align 6", f""".amdhsa_kernel {KNAME}
  .amdhsa_next_free_vgpr 480
  .amdhsa_next_free_sgpr 102
  .amdhsa_accum_offset 256
  .amdhsa_group_segment_fixed_size 0
  .amdhsa_kernarg_size 80
  .amdhsa_user_sgpr_count 2
  .amdhsa_user_sgpr_kernarg_segment_ptr 1
  .amdhsa_system_sgpr_workgroup_id_x 1
  .amdhsa_float_denorm_mode_32 3
.end_amdhsa_kernel
"""]
    if "pre" in OPT:
        out[1] = f"; @launch kernel=pre_kernel grid=(256,1,1) block=(256,1,1) lds=0\n; @launch kernel={KNAME} grid=(256,1,1) block=(256,1,1) lds={LDS_SIZE}"
        out[7] += ".globl pre_kernel\n.p2align 8\n.type pre_kernel,@function\n" + pre_kernel(OPT["pre"]).text()
        out.append(".p2align 6\n" + out[-1].replace(KNAME, "pre_kernel").replace("vgpr 480", "vgpr 64").replace("offset 256", "offset 64"))
    return "\n".join(out), len(bad)

if __name__ == "__main__":
    dst = f"cdna_kernels/{NAME}.s"
    for arg in sys.argv[1:]:
        k, v = arg.split("=")
        if k == "out": dst = v
        else: OPT[k] = int(v)
    txt, bad = build()
    open(dst, "w").write(txt)
    print("wrote", dst, len(txt), "bytes; hazards:", bad)
```
